```python
import torch

def _softmax(x, axis=-1):
    return torch.softmax(x, dim=axis)
def _gelu(x):
    return torch.nn.functional.gelu(x, approximate="tanh")
def _silu(x):
    return torch.nn.functional.silu(x)
def _sigmoid(x):
    return torch.sigmoid(x)
def _layernorm(x, axis=-1, eps=1e-5):
    m = x.mean(dim=axis, keepdim=True)
    v = x.var(dim=axis, keepdim=True, unbiased=False)
    return (x - m) / torch.sqrt(v + eps)
def _scatter_add(tgt, idx, src, axis=0):
    return tgt.clone().index_add_(axis, idx, src)
def _segment_sum(src, seg, n):
    out = torch.zeros((n,) + src.shape[1:], dtype=src.dtype)
    return out.index_add_(0, seg, src)
def _pad(x, pw):
    flat = tuple(v for pair in reversed(pw) for v in pair)
    return torch.nn.functional.pad(x, flat)

kernel_name = 'standalone__structured_sparse_n_m__ragged'

def setup_inputs():

    _w = (lambda a: (lambda t: t.to(torch.bfloat16) if t.is_floating_point() else t)(torch.as_tensor(a)))
    B, S, D = 4, 2048, 640
    assert D % 4 == 0, "d_model must be divisible by M=4 for 2:4 sparsity"
    return {
        "x": _w((lambda *s: torch.randn(*s, dtype=torch.bfloat16) * 0.05)(B, S, D)),
        "w": _w((lambda *s: torch.randn(*s, dtype=torch.bfloat16) * 0.05)(D, D)),
        "b": _w((lambda *s: torch.randn(*s, dtype=torch.bfloat16) * 0.05)(D)),
    }

def reference(x, w, b):
    B, S, D = x.shape
    N, M = 2, 4
    G = D // M
    wg = w.reshape(G, M, D)
    mag = torch.abs(wg)
    order = torch.argsort(mag, 1)
    thr = (lambda x, i, axis: torch.take_along_dim(x, i, dim=axis))(mag, order[:, M - N:M - N + 1, :], 1)
    mask = (lambda x, dt: x.to(dt))(mag >= thr, w.dtype)
    wp = (wg * mask).reshape(D, D)
    return torch.einsum("bsd,df->bsf", x, wp) + b
```

```python
import sys, argparse
KN = "standalone__structured_sparse_n_m__ragged_kernel"

class P:
    R = 4
    NB = 5
    L = 2
    NS = 27
    xflags = "nt"
    wflags = ""
    oflags = "sc1"
    rot = 1
    stamps = 0
    fill = 3
    p2rate = 8
    prio = 0
    early = 1
    xlead = None

WSTAGE = 16640
CBS = 4160

class Asm:
    def __init__(s): s.l = []
    def __call__(s, x): s.l.append("  " + x)
    def label(s, x): s.l.append(x + ":")
    def text(s): return "\n".join(s.l) + "\n"

def stamp(a, p, i):
    if p.stamps: a(f"s_memrealtime s[{60+2*i}:{61+2*i}]")

def stamp_out(a, p):
    if not p.stamps: return
    a("s_waitcnt vmcnt(0) lgkmcnt(0)")
    a("s_memrealtime s[66:67]")
    a("s_waitcnt lgkmcnt(0)")
    a("s_lshl_b32 s56, s2, 4"); a("s_add_u32 s56, s56, s32"); a("s_lshl_b32 s56, s56, 5")
    for i in range(8): a(f"v_mov_b32 v{4+i}, s{60+2*i}")
    a("v_mov_b32 v3, s56"); a("v_mbcnt_lo_u32_b32 v2, -1, 0"); a("v_mbcnt_hi_u32_b32 v2, -1, v2"); a("s_nop 1"); a("v_cmp_eq_u32 vcc, 0, v2"); a("s_and_saveexec_b64 s[58:59], vcc")
    a("buffer_store_dwordx4 v[4:7], v3, s[84:87], 0 offen"); a("buffer_store_dwordx4 v[8:11], v3, s[84:87], 0 offen offset:16")

def tables(a, p, nb):
    a("s_mov_b32 s56, s35")
    for c in range(10):
        a(f"s_lshl_b32 s{40+c}, s56, 7")
        if c < 9:
            a("s_add_u32 s56, s56, 1"); a("s_cmp_eq_u32 s56, 10"); a("s_cselect_b32 s56, 0, s56")
    a("s_mov_b32 s56, s36")
    for b in range(nb):
        a(f"s_mul_i32 s{50+b}, s56, 40960"); a(f"s_add_u32 s{50+b}, s{50+b}, s34")
        if b < nb-1:
            a("s_add_u32 s56, s56, 1"); a(f"s_cmp_eq_u32 s56, {nb}"); a("s_cselect_b32 s56, 0, s56")

def consumer(p, nb, tag):
    a = Asm(); R = min(p.R, nb); NB = p.NB; NS = p.NS
    WB = NS*4096; BIAS = WB + 3*WSTAGE
    ACC = lambda b: 0 + 16*(b % R if b >= R else b)
    nacc = R
    XF = 16*R
    VA = XF + 4*NB
    vX = [VA+i for i in range(4)]; vW = VA+4; vD = VA+5; vO = VA+6; vT = VA+7
    assert vT < 96, vT
    slots = []
    for c in range(10):
        for b in range(R): slots.append((b, c, c))
    t = 10
    for b in range(R, nb):
        for c in range(10): slots.append((b, c, t + c//5))
        t += 2
    nint = t
    slot_of = {(b, c): i for i, (b, c, _) in enumerate(slots)}
    xlead = p.xlead if p.xlead is not None else p.L+1
    issue_at = []
    cnt = {}
    for i, (b, c, u) in enumerate(slots):
        lo = -1
        if i >= NS: lo = slots[i-NS][2] + 2
        if b < R: want = max(-1, c - xlead)
        else: want = max(-1, 9 - xlead + 1)
        tt = max(lo, want, issue_at[-1] if issue_at else -1)
        while b >= R and cnt.get(tt, 0) >= p.p2rate: tt += 1
        assert tt <= u-1, (i, b, c, u, tt)
        issue_at.append(tt); cnt[tt] = cnt.get(tt, 0) + 1
    a("v_and_b32 v1, 63, v0")
    a("v_lshrrev_b32 v2, 3, v1"); a("s_lshl_b32 s56, s32, 3"); a("v_add_u32 v2, s56, v2")
    a("v_lshrrev_b32 v3, 1, v2"); a("v_xor_b32 v3, v3, v1"); a("v_and_b32 v3, 7, v3")
    a("v_mul_u32_u24 v2, 1280, v2"); a(f"v_lshl_add_u32 v{vD}, v3, 4, v2")
    a("s_lshl_b32 s37, s32, 10")
    tables(a, p, nb)
    a("s_waitcnt lgkmcnt(0)")
    srds(a, p)
    vm = []
    def dma(i):
        b, c, _ = slots[i]
        a(f"s_add_u32 s56, s{50+b}, s{40+c}")
        a(f"s_add_u32 m0, s37, {(i % NS)*4096}")
        a("s_nop 0")
        a(f"buffer_load_dwordx4 v{vD}, s[16:19], s56 offen {p.xflags} lds")
        vm.append(i)
    for i in range(len(slots)):
        if issue_at[i] == -1: dma(i)
    a("v_and_b32 v2, 31, v1"); a("v_lshrrev_b32 v3, 5, v1"); a("v_lshrrev_b32 v4, 1, v2"); a("v_and_b32 v4, 7, v4")
    a("v_xor_b32 v4, v4, v3"); a("v_lshlrev_b32 v4, 4, v4"); a(f"v_lshl_add_u32 v{vX[0]}, v2, 7, v4")
    for s in range(1, 4): a(f"v_xor_b32 v{vX[s]}, {s*32}, v{vX[0]}")
    a("v_lshlrev_b32 v4, 9, v3"); a("v_bfe_u32 v5, v1, 4, 1"); a("v_lshl_add_u32 v4, v5, 5, v4")
    a("v_bfe_u32 v5, v1, 2, 2"); a("v_lshl_add_u32 v4, v5, 6, v4"); a("v_and_b32 v5, 3, v1"); a("v_lshl_add_u32 v4, v5, 3, v4")
    a(f"s_mul_i32 s56, s32, {CBS}"); a(f"s_add_u32 s56, s56, {WB}"); a(f"v_add_u32 v{vW}, s56, v4")
    a("v_bfe_u32 v5, v1, 1, 2"); a("v_xor_b32 v5, v5, v3"); a("v_lshlrev_b32 v5, 4, v5"); a("v_lshl_add_u32 v5, v2, 6, v5")
    a(f"v_add_u32 v{vO}, s56, v5")
    a("s_lshl_b32 s56, s32, 7"); a(f"s_add_u32 s56, s56, {BIAS}"); a("v_lshlrev_b32 v4, 4, v3"); a(f"v_add_u32 v{vT}, s56, v4")
    if p.prio: a(f"s_setprio {p.prio}")
    mf = []
    for c in range(10):
        for b in range(R):
            for s in range(4): mf.append((b, c, s, c))
    for b in range(R, nb):
        for c in range(10):
            for s in range(4): mf.append((b, c, s, slots[slot_of[(b, c)]][2]))
    lg = []
    def lds(txt, tagi):
        a(txt); lg.append(tagi)
        assert len(lg) <= 15, "too many LDS ops outstanding"
    def wait_lds(tags):
        idx = max([k for k, t_ in enumerate(lg) if t_ in tags], default=-1)
        if idx >= 0:
            n = len(lg) - 1 - idx
            a(f"s_waitcnt lgkmcnt({n})"); del lg[:idx+1]
            return 1
        return 0
    xbase = [0]*4
    def xread(j):
        b, c, s, u = mf[j]
        off = (slot_of[(b, c)] % NS)*4096
        hi = off & ~0xffff
        if xbase[s] != hi:
            a(f"v_xor_b32 v{vX[s]}, 0x10000, v{vX[s]}"); xbase[s] = hi
        if len(lg) >= 15: wait_lds([lg[0]])
        r = XF + 4*(j % NB)
        lds(f"ds_read_b128 v[{r}:{r+3}], v{vX[s]} offset:{off & 0xffff}", ("x", j))
    def wreads(c):
        for s in range(4):
            for q in range(2):
                r = (c*4+s)*4 + 2*q
                if len(lg) >= 15: wait_lds([lg[0]])
                lds(f"ds_read_b64_tr_b16 a[{r}:{r+1}], v{vW} offset:{(c%2)*WSTAGE + s*1024 + q*256}", ("w", c, s))
    def biasread(b):
        for q in range(4):
            r = ACC(b) + 4*q
            if len(lg) >= 15: wait_lds([lg[0]])
            lds(f"ds_read_b128 v[{r}:{r+3}], v{vT} offset:{q*32}", ("b", b))
    cur = [-1]; staged = {}; pend_stage = []
    def boundary(t):
        for i in range(len(slots)):
            if issue_at[i] == t-1 and t-1 >= 0: dma(i)
        need = [k for k, i in enumerate(vm) if slots[i][2] <= t]
        if need:
            n = len(vm) - 1 - max(need)
            a(f"s_waitcnt vmcnt({n})"); del vm[:max(need)+1]
        if pend_stage:
            wait_lds([("o", b) for b in pend_stage])
            for b in pend_stage: staged[b] = t-1
            pend_stage.clear()
        if 1 <= t <= 10: assert not any(x[0] == "w" and x[1] == t-1 for x in lg) or wait_lds([x for x in lg if x[0] == "w" and x[1] == t-1])
        a("s_barrier")
        if t == 0: stamp(a, p, 1)
        if t == 5: stamp(a, p, 2)
        if t == 10: stamp(a, p, 4)
        cur[0] = t
        if t < 10: wreads(t)
    fillq = []
    def epilogue_items(b):
        A = ACC(b); pos = b
        off = (pos//2)*WSTAGE + (pos % 2)*2048
        it = []
        for k in range(8): it.append(f"v_cvt_pk_bf16_f32 v{A+k}, v{A+2*k}, v{A+2*k+1}")
        it.append(f"v_xor_b32 v{A+8}, 32, v{vO}")
        it.append("s_nop 0")
        it += [f"v_permlane32_swap_b32 v{A}, v{A+2}", f"v_permlane32_swap_b32 v{A+1}, v{A+3}",
               f"v_permlane32_swap_b32 v{A+4}, v{A+6}", f"v_permlane32_swap_b32 v{A+5}, v{A+7}"]
        it.append(("lds", f"ds_write_b128 v{vO}, v[{A}:{A+3}] offset:{off}", ("o", b)))
        it.append(("lds", f"ds_write_b128 v{A+8}, v[{A+4}:{A+7}] offset:{off}", ("o", b)))
        it.append(("done", b))
        nxt = b + R
        if nxt < nb and nxt >= R: it.append(("bias", nxt))
        return it
    def emit_fill(n, force=False):
        k = 0
        while fillq and k < n:
            it = fillq[0]
            if isinstance(it, tuple) and it[0] == "gate":
                have = sum(1 for x in a.l[it[1]:] if not x.endswith(":"))
                if have < 12:
                    if not force: return
                    a(f"s_nop {12-have-1}")
                fillq.pop(0); continue
            fillq.pop(0)
            if isinstance(it, str): a(it); k += 1
            elif it[0] == "lds":
                if len(lg) >= 15: wait_lds([lg[0]])
                lds(it[1], it[2]); k += 1
            elif it[0] == "done": pend_stage.append(it[1])
            elif it[0] == "bias": biasread(it[1]); k += 4
    boundary(0)
    for b in range(R): biasread(b)
    nxt_read = 0
    def advance(upto):
        nonlocal nxt_read
        while nxt_read < min(upto, len(mf)):
            u = mf[nxt_read][3]
            while cur[0] < u: boundary(cur[0]+1)
            xread(nxt_read); nxt_read += 1
    advance(NB)
    last_of = {}
    for j, (b, c, s, u) in enumerate(mf): last_of[b] = j
    first_of = {}
    for j, (b, c, s, u) in enumerate(mf): first_of.setdefault(b, j)
    for j, (b, c, s, u) in enumerate(mf):
        if j == first_of[b] and b >= R:
            while any(isinstance(x, tuple) and x[0] == "bias" and x[1] == b for x in fillq): emit_fill(1, True)
        wait_lds([("x", j), ("w", c, s), ("b", b)])
        A = ACC(b); wr = (c*4+s)*4; xr = XF + 4*(j % NB)
        a(f"v_mfma_f32_32x32x16_bf16 v[{A}:{A+15}], a[{wr}:{wr+3}], v[{xr}:{xr+3}], v[{A}:{A+15}]")
        if j == last_of[b]:
            pos = b
            fillq.append(("gate", len(a.l))); fillq.extend(epilogue_items(b))
        advance(j + 1 + NB)
        emit_fill(p.fill)
    emit_fill(100000, True)
    t = cur[0] + 1
    wait_lds([("o", b) for b in pend_stage])
    for b in pend_stage: staged[b] = t-1
    pend_stage.clear()
    a("s_barrier")
    stamp(a, p, 5)
    stamp_out(a, p)
    a("s_endpgm")
    return a.text(), t+1, staged

def srds(a, p):
    a("s_mov_b32 s16, s4"); a("s_and_b32 s17, s5, 0xffff"); a("s_mov_b32 s18, 10485760"); a("s_mov_b32 s19, 0x20000")
    a("s_mov_b32 s20, s6"); a("s_and_b32 s21, s7, 0xffff"); a("s_mov_b32 s22, 819200"); a("s_mov_b32 s23, 0x20000")
    a("s_mov_b32 s24, s10"); a("s_and_b32 s25, s11, 0xffff"); a("s_mov_b32 s26, 10485760"); a("s_mov_b32 s27, 0x20000")
    a("s_mov_b32 s28, s8"); a("s_and_b32 s29, s9, 0xffff"); a("s_mov_b32 s30, 1280"); a("s_mov_b32 s31, 0x20000")
    if p.stamps:
        a("s_mov_b32 s84, s14"); a("s_and_b32 s85, s15, 0xffff"); a("s_mov_b32 s86, 0x100000"); a("s_mov_b32 s87, 0x20000")

def prune(a, S, T):
    for j0 in (0, 2):
        js = (j0, j0+1)
        def A(j, r): return T + (j-j0)*8 + r
        def U(j, k): return T + (j-j0)*8 + 4 + k
        for r in range(4):
            for j in js: a(f"v_and_b32 v{A(j,r)}, s38, v{S+4*r+j}")
        for j in js: a(f"v_pk_max_u16 v{U(j,0)}, v{A(j,0)}, v{A(j,1)}")
        for j in js: a(f"v_pk_min_u16 v{U(j,1)}, v{A(j,0)}, v{A(j,1)}")
        for j in js: a(f"v_pk_max_u16 v{U(j,2)}, v{A(j,2)}, v{A(j,3)}")
        for j in js: a(f"v_pk_min_u16 v{U(j,3)}, v{A(j,2)}, v{A(j,3)}")
        for j in js: a(f"v_pk_min_u16 v{U(j,0)}, v{U(j,0)}, v{U(j,2)}")
        for j in js: a(f"v_pk_max_u16 v{U(j,1)}, v{U(j,1)}, v{U(j,3)}")
        for j in js: a(f"v_pk_max_u16 v{U(j,0)}, v{U(j,0)}, v{U(j,1)}")
        for r in range(4):
            for j in js: a(f"v_pk_sub_i16 v{A(j,r)}, v{A(j,r)}, v{U(j,0)}")
        for r in range(4):
            for j in js: a(f"v_pk_ashrrev_i16 v{A(j,r)}, 15, v{A(j,r)} op_sel_hi:[0,1]")
        for r in range(4):
            for j in js: a(f"v_bfi_b32 v{S+4*r+j}, v{A(j,r)}, 0, v{S+4*r+j}")

def producer(p, nb, nbar, staged):
    a = Asm(); L = p.L; NS = p.NS
    WB = NS*4096; BIAS = WB + 3*WSTAGE
    vG = 1; vS = 2; vR = 3; vO = 4; vO2 = 5; T = 8; ST = 32
    assert ST + 16*L <= 96
    a("s_sub_u32 s39, s32, 4")
    a("v_and_b32 v6, 63, v0")
    a("v_lshrrev_b32 v7, 4, v6"); a("s_lshl_b32 s56, s39, 2"); a("v_add_u32 v7, s56, v7")
    a("v_and_b32 v8, 15, v6"); a("v_mul_u32_u24 v9, 5120, v7"); a(f"v_lshl_add_u32 v{vG}, v8, 4, v9")
    a("s_mov_b32 s38, 0x7fff7fff")
    tables(a, p, nb)
    a("s_lshl_b32 s57, s33, 8")
    for c in range(10):
        a(f"s_mul_i32 s{40+c}, s{40+c}, 640"); a(f"s_add_u32 s{40+c}, s{40+c}, s57")
    for b in range(nb): a(f"s_add_u32 s{50+b}, s{50+b}, s57")
    a("v_lshlrev_b32 v10, 2, v6")
    a("s_waitcnt lgkmcnt(0)")
    srds(a, p)
    vm = []
    a(f"buffer_load_dword v11, v10, s[28:31], s57 offen"); vm.append("bias")
    def wload(c):
        S = ST + 16*(c % L)
        for r in range(4):
            a(f"buffer_load_dwordx4 v[{S+4*r}:{S+4*r+3}], v{vG}, s[20:23], s{40+c} offen offset:{r*1280} {p.wflags}")
            vm.append(("w", c))
    for c in range(L): wload(c)
    a("v_lshrrev_b32 v9, 2, v8"); a(f"v_mul_u32_u24 v9, {CBS}, v9"); a("v_lshl_add_u32 v9, v7, 8, v9"); a("v_and_b32 v12, 3, v8")
    a("v_lshl_add_u32 v9, v12, 4, v9"); a(f"v_add_u32 v{vS}, {WB}, v9")
    a("v_lshrrev_b32 v13, 4, v6"); a("s_lshl_b32 s56, s39, 3"); a("v_add_u32 v13, s56, v13")
    a("v_lshrrev_b32 v14, 1, v13"); a("v_xor_b32 v14, v14, v12"); a("v_and_b32 v14, 3, v14"); a("v_lshlrev_b32 v14, 4, v14")
    a("v_lshl_add_u32 v14, v13, 6, v14"); a("v_lshrrev_b32 v9, 2, v8"); a(f"v_mul_u32_u24 v9, {CBS}, v9"); a("v_add_u32 v14, v14, v9")
    a(f"v_add_u32 v{vR}, {WB}, v14")
    a("v_mul_u32_u24 v13, 1280, v13"); a(f"v_lshl_add_u32 v{vO}, v8, 4, v13"); a(f"v_add_u32 v{vO2}, 5120, v{vO}")
    def wait_vm(tag):
        idx = max([k for k, t_ in enumerate(vm) if t_ == tag], default=-1)
        if idx >= 0:
            a(f"s_waitcnt vmcnt({len(vm)-1-idx})"); del vm[:idx+1]
    wait_vm("bias")
    a("v_lshlrev_b32 v12, 16, v11"); a("v_and_b32 v13, 0xffff0000, v11"); a("v_lshlrev_b32 v10, 3, v6"); a(f"v_add_u32 v10, {BIAS}, v10")
    a("ds_write_b64 v10, v[12:13]")
    if p.prio: a(f"s_setprio {p.prio ^ 1 if p.prio in (0,1) else 0}")
    def do_chunk(c):
        S = ST + 16*(c % L)
        wait_vm(("w", c))
        prune(a, S, T)
        for r in range(4): a(f"ds_write_b128 v{vS}, v[{S+4*r}:{S+4*r+3}] offset:{(c%2)*WSTAGE + r*64}")
        if c + L < 10: wload(c + L)
    do_chunk(0)
    for t in range(nbar):
        a("s_waitcnt lgkmcnt(0)")
        a("s_barrier")
        if t == 0: stamp(a, p, 1)
        if t == 5: stamp(a, p, 2)
        if t == 10: stamp(a, p, 4)
        if t == nbar-1: stamp(a, p, 5)
        if t + 1 < 10: do_chunk(t+1)
        dr = [b for b in sorted(staged) if staged[b] == t-1]
        k = 0
        for b in dr:
            pos = b; off = (pos//2)*WSTAGE + (pos % 2)*2048
            r0 = ST + 8*k
            a(f"ds_read_b128 v[{r0}:{r0+3}], v{vR} offset:{off}")
            a(f"v_xor_b32 v6, 32, v{vR}")
            a(f"ds_read_b128 v[{r0+4}:{r0+7}], v6 offset:{off+256}")
            k += 1
        k = 0
        for b in dr:
            r0 = ST + 8*k
            a(f"s_waitcnt lgkmcnt({2*(len(dr)-1-k)+1})")
            a(f"buffer_store_dwordx4 v[{r0}:{r0+3}], v{vO}, s[24:27], s{50+b} offen {p.oflags}")
            a(f"s_waitcnt lgkmcnt({2*(len(dr)-1-k)})")
            a(f"buffer_store_dwordx4 v[{r0+4}:{r0+7}], v{vO2}, s[24:27], s{50+b} offen {p.oflags}")
            k += 1
    stamp_out(a, p)
    a("s_endpgm")
    return a.text()

def gen(p):
    lds = p.NS*4096 + 3*WSTAGE + 512
    assert lds <= 163840
    a = Asm()
    stamp(a, p, 0)
    if p.stamps:
        for i in (1,2,4,5,6,7): a(f"s_mov_b32 s{60+2*i}, 0")
    a("s_load_dwordx4 s[4:7], s[0:1], 0"); a("s_load_dwordx4 s[8:11], s[0:1], 16")
    if p.stamps: a("s_load_dwordx4 s[12:15], s[0:1], 32")
    a("s_cmp_ge_u32 s2, 256"); a("s_cbranch_scc1 L_exit")
    a("s_and_b32 s56, s2, 7"); a("s_lshr_b32 s57, s2, 3"); a("s_lshl_b32 s56, s56, 5"); a("s_add_u32 s56, s56, s57")
    a("s_cmp_eq_u32 s56, 255"); a("s_cbranch_scc1 L_exit")
    a("v_lshrrev_b32 v1, 6, v0")
    a("s_mul_i32 s57, s56, 205"); a("s_lshr_b32 s57, s57, 10")
    a("v_readfirstlane_b32 s32, v1")
    a("s_mul_i32 s58, s57, 5"); a("s_sub_u32 s33, s56, s58")
    if p.rot:
        a("s_add_u32 s58, s33, s57"); a("s_mul_i32 s59, s58, 205"); a("s_lshr_b32 s59, s59, 10"); a("s_mul_i32 s59, s59, 5")
        a("s_sub_u32 s35, s58, s59"); a("s_lshl_b32 s35, s35, 1"); a("s_mov_b32 s36, s33")
    else:
        a("s_mov_b32 s35, 0"); a("s_mov_b32 s36, 0")
    if p.early:
        a("s_sub_u32 s58, s57, 1"); a("s_cmp_eq_u32 s57, 0"); a("s_cselect_b32 s57, 50, s58")
    a("s_mul_i32 s34, s57, 204800")
    a("s_cmp_eq_u32 s57, 50"); a("s_cbranch_scc1 L_six")
    a("s_cmp_ge_u32 s32, 4"); a("s_cbranch_scc1 L_p5")
    c5, n5, st5 = consumer(p, 5, "5"); p5 = producer(p, 5, n5, st5)
    c6, n6, st6 = consumer(p, 6, "6"); p6 = producer(p, 6, n6, st6)
    body = a.text() + c5 + "L_exit:\n  s_endpgm\nL_p5:\n" + p5 + "L_six:\n  s_cmp_ge_u32 s32, 4\n  s_cbranch_scc1 L_p6\n" + c6 + "L_p6:\n" + p6
    hdr = open("standalone__structured_sparse_n_m__ragged.s.ref").read().split("; Override")[0]
    return hdr + f"""; Generated by my own generator script (gen.py): tiles of 160(192) rows x 128 columns, 4 MFMA waves + 4 pruning waves.
; @launch grid=(256,1,1) block=(512,1,1) lds={lds}
.amdgcn_target "amdgcn-amd-amdhsa--gfx950"
.text
.globl {KN}
.p2align 8
.type {KN},@function
{KN}:
{body}.section .rodata,"a"
.p2align 6
.amdhsa_kernel {KN}
  .amdhsa_next_free_vgpr 256
  .amdhsa_next_free_sgpr 96
  .amdhsa_accum_offset 96
  .amdhsa_group_segment_fixed_size 0
  .amdhsa_kernarg_size 48
  .amdhsa_user_sgpr_count 2
  .amdhsa_user_sgpr_kernarg_segment_ptr 1
  .amdhsa_system_sgpr_workgroup_id_x 1
.end_amdhsa_kernel
""", lds

if __name__ == "__main__":
    out = sys.argv[1]
    p = P()
    for kv in sys.argv[2:]:
        k, v = kv.split("=", 1)
        old = getattr(P, k)
        setattr(p, k, v.replace("+", " ") if isinstance(old, str) else int(v))
    s, lds = gen(p)
    open(out, "w").write(s)
    from mk import build
    build(out)
    print(out, "lds", lds, "lines", s.count("\n"))
```

```python
import sys, argparse
KN = "standalone__structured_sparse_n_m__ragged_kernel"

class P:
    R = 4
    NB = 5
    L = 2
    NS = 27
    xflags = "nt"
    wflags = ""
    oflags = "sc1"
    rot = 1
    stamps = 0
    fill = 3
    p2rate = 8
    prio = 0
    early = 1
    xlead = None
    diag = ""

WSTAGE = 16640
CBS = 4160

class Asm:
    def __init__(s): s.l = []
    def __call__(s, x): s.l.append("  " + x)
    def label(s, x): s.l.append(x + ":")
    def text(s): return "\n".join(s.l) + "\n"

def stamp(a, p, i):
    if p.stamps: a(f"s_memrealtime s[{60+2*i}:{61+2*i}]")

def stamp_out(a, p):
    if not p.stamps: return
    a("s_waitcnt vmcnt(0) lgkmcnt(0)")
    a("s_memrealtime s[66:67]")
    a("s_waitcnt lgkmcnt(0)")
    if p.diag:
        i, j, K = map(int, p.diag.split(","))
        lab = f"L_spin{len(a.l)}_{id(a)%100000}"
        a(f"s_sub_u32 s56, s{60+2*j}, s{60+2*i}"); a(f"s_mul_i32 s56, s56, {K}"); a("s_min_u32 s56, s56, 20000")
        a.label(lab)
        a("s_memrealtime s[58:59]"); a("s_waitcnt lgkmcnt(0)"); a("s_sub_u32 s57, s58, s66"); a("s_cmp_lt_u32 s57, s56"); a(f"s_cbranch_scc1 {lab}")
        return
    a("s_lshl_b32 s56, s2, 4"); a("s_add_u32 s56, s56, s32"); a("s_lshl_b32 s56, s56, 5")
    for i in range(8): a(f"v_mov_b32 v{4+i}, s{60+2*i}")
    a("v_mov_b32 v3, s56"); a("v_mbcnt_lo_u32_b32 v2, -1, 0"); a("v_mbcnt_hi_u32_b32 v2, -1, v2"); a("s_nop 1"); a("v_cmp_eq_u32 vcc, 0, v2"); a("s_and_saveexec_b64 s[58:59], vcc")
    a("buffer_store_dwordx4 v[4:7], v3, s[84:87], 0 offen"); a("buffer_store_dwordx4 v[8:11], v3, s[84:87], 0 offen offset:16")

def tables(a, p, nb):
    a("s_mov_b32 s56, s35")
    for c in range(10):
        a(f"s_lshl_b32 s{40+c}, s56, 7")
        if c < 9:
            a("s_add_u32 s56, s56, 1"); a("s_cmp_eq_u32 s56, 10"); a("s_cselect_b32 s56, 0, s56")
    a("s_mov_b32 s56, s36")
    for b in range(nb):
        a(f"s_mul_i32 s{50+b}, s56, 40960"); a(f"s_add_u32 s{50+b}, s{50+b}, s34")
        if b < nb-1:
            a("s_add_u32 s56, s56, 1"); a(f"s_cmp_eq_u32 s56, {nb}"); a("s_cselect_b32 s56, 0, s56")

def consumer(p, nb, tag):
    a = Asm(); R = min(p.R, nb); NB = p.NB; NS = p.NS
    WB = NS*4096; BIAS = WB + 3*WSTAGE
    ACC = lambda b: 0 + 16*(b % R if b >= R else b)
    nacc = R
    XF = 16*R
    VA = XF + 4*NB
    vX = [VA+i for i in range(4)]; vW = VA+4; vD = VA+5; vO = VA+6; vT = VA+7
    assert vT < 96, vT
    slots = []
    for c in range(10):
        for b in range(R): slots.append((b, c, c))
    t = 10
    for b in range(R, nb):
        for c in range(10): slots.append((b, c, t + c//5))
        t += 2
    nint = t
    slot_of = {(b, c): i for i, (b, c, _) in enumerate(slots)}
    xlead = p.xlead if p.xlead is not None else p.L+1
    issue_at = []
    cnt = {}
    for i, (b, c, u) in enumerate(slots):
        lo = -1
        if i >= NS: lo = slots[i-NS][2] + 2
        if b < R: want = max(-1, c - xlead)
        else: want = max(-1, 9 - xlead + 1)
        tt = max(lo, want, issue_at[-1] if issue_at else -1)
        while b >= R and cnt.get(tt, 0) >= p.p2rate: tt += 1
        assert tt <= u-1, (i, b, c, u, tt)
        issue_at.append(tt); cnt[tt] = cnt.get(tt, 0) + 1
    a("v_and_b32 v1, 63, v0")
    a("v_lshrrev_b32 v2, 3, v1"); a("s_lshl_b32 s56, s32, 3"); a("v_add_u32 v2, s56, v2")
    a("v_lshrrev_b32 v3, 1, v2"); a("v_xor_b32 v3, v3, v1"); a("v_and_b32 v3, 7, v3")
    a("v_mul_u32_u24 v2, 1280, v2"); a(f"v_lshl_add_u32 v{vD}, v3, 4, v2")
    a("s_lshl_b32 s37, s32, 10")
    tables(a, p, nb)
    a("s_waitcnt lgkmcnt(0)")
    srds(a, p)
    vm = []
    def dma(i):
        b, c, _ = slots[i]
        a(f"s_add_u32 s56, s{50+b}, s{40+c}")
        a(f"s_add_u32 m0, s37, {(i % NS)*4096}")
        a("s_nop 0")
        a(f"buffer_load_dwordx4 v{vD}, s[16:19], s56 offen {p.xflags} lds")
        vm.append(i)
    for i in range(len(slots)):
        if issue_at[i] == -1: dma(i)
    a("v_and_b32 v2, 31, v1"); a("v_lshrrev_b32 v3, 5, v1"); a("v_lshrrev_b32 v4, 1, v2"); a("v_and_b32 v4, 7, v4")
    a("v_xor_b32 v4, v4, v3"); a("v_lshlrev_b32 v4, 4, v4"); a(f"v_lshl_add_u32 v{vX[0]}, v2, 7, v4")
    for s in range(1, 4): a(f"v_xor_b32 v{vX[s]}, {s*32}, v{vX[0]}")
    a("v_lshlrev_b32 v4, 9, v3"); a("v_bfe_u32 v5, v1, 4, 1"); a("v_lshl_add_u32 v4, v5, 5, v4")
    a("v_bfe_u32 v5, v1, 2, 2"); a("v_lshl_add_u32 v4, v5, 6, v4"); a("v_and_b32 v5, 3, v1"); a("v_lshl_add_u32 v4, v5, 3, v4")
    a(f"s_mul_i32 s56, s32, {CBS}"); a(f"s_add_u32 s56, s56, {WB}"); a(f"v_add_u32 v{vW}, s56, v4")
    a("v_bfe_u32 v5, v1, 1, 2"); a("v_xor_b32 v5, v5, v3"); a("v_lshlrev_b32 v5, 4, v5"); a("v_lshl_add_u32 v5, v2, 6, v5")
    a(f"v_add_u32 v{vO}, s56, v5")
    a("s_lshl_b32 s56, s32, 7"); a(f"s_add_u32 s56, s56, {BIAS}"); a("v_lshlrev_b32 v4, 4, v3"); a(f"v_add_u32 v{vT}, s56, v4")
    if p.prio: a(f"s_setprio {p.prio}")
    mf = []
    for c in range(10):
        for b in range(R):
            for s in range(4): mf.append((b, c, s, c))
    for b in range(R, nb):
        for c in range(10):
            for s in range(4): mf.append((b, c, s, slots[slot_of[(b, c)]][2]))
    lg = []
    def lds(txt, tagi):
        a(txt); lg.append(tagi)
        assert len(lg) <= 15, "too many LDS ops outstanding"
    def wait_lds(tags):
        idx = max([k for k, t_ in enumerate(lg) if t_ in tags], default=-1)
        if idx >= 0:
            n = len(lg) - 1 - idx
            a(f"s_waitcnt lgkmcnt({n})"); del lg[:idx+1]
            return 1
        return 0
    xbase = [0]*4
    def xread(j):
        b, c, s, u = mf[j]
        off = (slot_of[(b, c)] % NS)*4096
        hi = off & ~0xffff
        if xbase[s] != hi:
            a(f"v_xor_b32 v{vX[s]}, 0x10000, v{vX[s]}"); xbase[s] = hi
        if len(lg) >= 15: wait_lds([lg[0]])
        r = XF + 4*(j % NB)
        lds(f"ds_read_b128 v[{r}:{r+3}], v{vX[s]} offset:{off & 0xffff}", ("x", j))
    def wreads(c):
        for s in range(4):
            for q in range(2):
                r = (c*4+s)*4 + 2*q
                if len(lg) >= 15: wait_lds([lg[0]])
                lds(f"ds_read_b64_tr_b16 a[{r}:{r+1}], v{vW} offset:{(c%2)*WSTAGE + s*1024 + q*256}", ("w", c, s))
    def biasread(b):
        for q in range(4):
            r = ACC(b) + 4*q
            if len(lg) >= 15: wait_lds([lg[0]])
            lds(f"ds_read_b128 v[{r}:{r+3}], v{vT} offset:{q*32}", ("b", b))
    cur = [-1]; staged = {}; pend_stage = []
    def boundary(t):
        for i in range(len(slots)):
            if issue_at[i] == t-1 and t-1 >= 0: dma(i)
        need = [k for k, i in enumerate(vm) if slots[i][2] <= t]
        if need:
            n = len(vm) - 1 - max(need)
            a(f"s_waitcnt vmcnt({n})"); del vm[:max(need)+1]
        if pend_stage:
            wait_lds([("o", b) for b in pend_stage])
            for b in pend_stage: staged[b] = t-1
            pend_stage.clear()
        if 1 <= t <= 10: assert not any(x[0] == "w" and x[1] == t-1 for x in lg) or wait_lds([x for x in lg if x[0] == "w" and x[1] == t-1])
        a("s_barrier")
        if t == 0: stamp(a, p, 1)
        if t == 5: stamp(a, p, 2)
        if t == 10: stamp(a, p, 4)
        cur[0] = t
        if t < 10: wreads(t)
    fillq = []
    def epilogue_items(b):
        A = ACC(b); pos = b
        off = (pos//2)*WSTAGE + (pos % 2)*2048
        it = []
        for k in range(8): it.append(f"v_cvt_pk_bf16_f32 v{A+k}, v{A+2*k}, v{A+2*k+1}")
        it.append(f"v_xor_b32 v{A+8}, 32, v{vO}")
        it.append("s_nop 0")
        it += [f"v_permlane32_swap_b32 v{A}, v{A+2}", f"v_permlane32_swap_b32 v{A+1}, v{A+3}",
               f"v_permlane32_swap_b32 v{A+4}, v{A+6}", f"v_permlane32_swap_b32 v{A+5}, v{A+7}"]
        it.append(("lds", f"ds_write_b128 v{vO}, v[{A}:{A+3}] offset:{off}", ("o", b)))
        it.append(("lds", f"ds_write_b128 v{A+8}, v[{A+4}:{A+7}] offset:{off}", ("o", b)))
        it.append(("done", b))
        nxt = b + R
        if nxt < nb and nxt >= R: it.append(("bias", nxt))
        return it
    def emit_fill(n, force=False):
        k = 0
        while fillq and k < n:
            it = fillq[0]
            if isinstance(it, tuple) and it[0] == "gate":
                have = sum(1 for x in a.l[it[1]:] if not x.endswith(":"))
                if have < 12:
                    if not force: return
                    a(f"s_nop {12-have-1}")
                fillq.pop(0); continue
            fillq.pop(0)
            if isinstance(it, str): a(it); k += 1
            elif it[0] == "lds":
                if len(lg) >= 15: wait_lds([lg[0]])
                lds(it[1], it[2]); k += 1
            elif it[0] == "done": pend_stage.append(it[1])
            elif it[0] == "bias": biasread(it[1]); k += 4
    boundary(0)
    for b in range(R): biasread(b)
    nxt_read = 0
    def advance(upto):
        nonlocal nxt_read
        while nxt_read < min(upto, len(mf)):
            u = mf[nxt_read][3]
            while cur[0] < u: boundary(cur[0]+1)
            xread(nxt_read); nxt_read += 1
    advance(NB)
    last_of = {}
    for j, (b, c, s, u) in enumerate(mf): last_of[b] = j
    first_of = {}
    for j, (b, c, s, u) in enumerate(mf): first_of.setdefault(b, j)
    for j, (b, c, s, u) in enumerate(mf):
        if j == first_of[b] and b >= R:
            while any(isinstance(x, tuple) and x[0] == "bias" and x[1] == b for x in fillq): emit_fill(1, True)
        wait_lds([("x", j), ("w", c, s), ("b", b)])
        A = ACC(b); wr = (c*4+s)*4; xr = XF + 4*(j % NB)
        a(f"v_mfma_f32_32x32x16_bf16 v[{A}:{A+15}], a[{wr}:{wr+3}], v[{xr}:{xr+3}], v[{A}:{A+15}]")
        if j == last_of[b]:
            pos = b
            fillq.append(("gate", len(a.l))); fillq.extend(epilogue_items(b))
        advance(j + 1 + NB)
        emit_fill(p.fill)
    emit_fill(100000, True)
    t = cur[0] + 1
    wait_lds([("o", b) for b in pend_stage])
    for b in pend_stage: staged[b] = t-1
    pend_stage.clear()
    a("s_barrier")
    stamp(a, p, 5)
    stamp_out(a, p)
    a("s_endpgm")
    return a.text(), t+1, staged

def srds(a, p):
    a("s_mov_b32 s16, s4"); a("s_and_b32 s17, s5, 0xffff"); a("s_mov_b32 s18, 10485760"); a("s_mov_b32 s19, 0x20000")
    a("s_mov_b32 s20, s6"); a("s_and_b32 s21, s7, 0xffff"); a("s_mov_b32 s22, 819200"); a("s_mov_b32 s23, 0x20000")
    a("s_mov_b32 s24, s10"); a("s_and_b32 s25, s11, 0xffff"); a("s_mov_b32 s26, 10485760"); a("s_mov_b32 s27, 0x20000")
    a("s_mov_b32 s28, s8"); a("s_and_b32 s29, s9, 0xffff"); a("s_mov_b32 s30, 1280"); a("s_mov_b32 s31, 0x20000")
    if p.stamps:
        a("s_mov_b32 s84, s14"); a("s_and_b32 s85, s15, 0xffff"); a("s_mov_b32 s86, 0x100000"); a("s_mov_b32 s87, 0x20000")

def prune(a, S, T):
    for j0 in (0, 2):
        js = (j0, j0+1)
        def A(j, r): return T + (j-j0)*8 + r
        def U(j, k): return T + (j-j0)*8 + 4 + k
        for r in range(4):
            for j in js: a(f"v_and_b32 v{A(j,r)}, s38, v{S+4*r+j}")
        for j in js: a(f"v_pk_max_u16 v{U(j,0)}, v{A(j,0)}, v{A(j,1)}")
        for j in js: a(f"v_pk_min_u16 v{U(j,1)}, v{A(j,0)}, v{A(j,1)}")
        for j in js: a(f"v_pk_max_u16 v{U(j,2)}, v{A(j,2)}, v{A(j,3)}")
        for j in js: a(f"v_pk_min_u16 v{U(j,3)}, v{A(j,2)}, v{A(j,3)}")
        for j in js: a(f"v_pk_min_u16 v{U(j,0)}, v{U(j,0)}, v{U(j,2)}")
        for j in js: a(f"v_pk_max_u16 v{U(j,1)}, v{U(j,1)}, v{U(j,3)}")
        for j in js: a(f"v_pk_max_u16 v{U(j,0)}, v{U(j,0)}, v{U(j,1)}")
        for r in range(4):
            for j in js: a(f"v_pk_sub_i16 v{A(j,r)}, v{A(j,r)}, v{U(j,0)}")
        for r in range(4):
            for j in js: a(f"v_pk_ashrrev_i16 v{A(j,r)}, 15, v{A(j,r)} op_sel_hi:[0,1]")
        for r in range(4):
            for j in js: a(f"v_bfi_b32 v{S+4*r+j}, v{A(j,r)}, 0, v{S+4*r+j}")

def producer(p, nb, nbar, staged):
    a = Asm(); L = p.L; NS = p.NS
    WB = NS*4096; BIAS = WB + 3*WSTAGE
    vG = 1; vS = 2; vR = 3; vO = 4; vO2 = 5; T = 8; ST = 32
    assert ST + 16*L <= 96
    a("s_sub_u32 s39, s32, 4")
    a("v_and_b32 v6, 63, v0")
    a("v_lshrrev_b32 v7, 4, v6"); a("s_lshl_b32 s56, s39, 2"); a("v_add_u32 v7, s56, v7")
    a("v_and_b32 v8, 15, v6"); a("v_mul_u32_u24 v9, 5120, v7"); a(f"v_lshl_add_u32 v{vG}, v8, 4, v9")
    a("s_mov_b32 s38, 0x7fff7fff")
    tables(a, p, nb)
    a("s_lshl_b32 s57, s33, 8")
    for c in range(10):
        a(f"s_mul_i32 s{40+c}, s{40+c}, 640"); a(f"s_add_u32 s{40+c}, s{40+c}, s57")
    for b in range(nb): a(f"s_add_u32 s{50+b}, s{50+b}, s57")
    a("v_lshlrev_b32 v10, 2, v6")
    a("s_waitcnt lgkmcnt(0)")
    srds(a, p)
    vm = []
    a(f"buffer_load_dword v11, v10, s[28:31], s57 offen"); vm.append("bias")
    def wload(c):
        S = ST + 16*(c % L)
        for r in range(4):
            a(f"buffer_load_dwordx4 v[{S+4*r}:{S+4*r+3}], v{vG}, s[20:23], s{40+c} offen offset:{r*1280} {p.wflags}")
            vm.append(("w", c))
    for c in range(L): wload(c)
    a("v_lshrrev_b32 v9, 2, v8"); a(f"v_mul_u32_u24 v9, {CBS}, v9"); a("v_lshl_add_u32 v9, v7, 8, v9"); a("v_and_b32 v12, 3, v8")
    a("v_lshl_add_u32 v9, v12, 4, v9"); a(f"v_add_u32 v{vS}, {WB}, v9")
    a("v_lshrrev_b32 v13, 4, v6"); a("s_lshl_b32 s56, s39, 3"); a("v_add_u32 v13, s56, v13")
    a("v_lshrrev_b32 v14, 1, v13"); a("v_xor_b32 v14, v14, v12"); a("v_and_b32 v14, 3, v14"); a("v_lshlrev_b32 v14, 4, v14")
    a("v_lshl_add_u32 v14, v13, 6, v14"); a("v_lshrrev_b32 v9, 2, v8"); a(f"v_mul_u32_u24 v9, {CBS}, v9"); a("v_add_u32 v14, v14, v9")
    a(f"v_add_u32 v{vR}, {WB}, v14")
    a("v_mul_u32_u24 v13, 1280, v13"); a(f"v_lshl_add_u32 v{vO}, v8, 4, v13"); a(f"v_add_u32 v{vO2}, 5120, v{vO}")
    def wait_vm(tag):
        idx = max([k for k, t_ in enumerate(vm) if t_ == tag], default=-1)
        if idx >= 0:
            a(f"s_waitcnt vmcnt({len(vm)-1-idx})"); del vm[:idx+1]
    wait_vm("bias")
    a("v_lshlrev_b32 v12, 16, v11"); a("v_and_b32 v13, 0xffff0000, v11"); a("v_lshlrev_b32 v10, 3, v6"); a(f"v_add_u32 v10, {BIAS}, v10")
    a("ds_write_b64 v10, v[12:13]")
    if p.prio: a(f"s_setprio {p.prio ^ 1 if p.prio in (0,1) else 0}")
    def do_chunk(c):
        S = ST + 16*(c % L)
        wait_vm(("w", c))
        prune(a, S, T)
        for r in range(4): a(f"ds_write_b128 v{vS}, v[{S+4*r}:{S+4*r+3}] offset:{(c%2)*WSTAGE + r*64}")
        if c + L < 10: wload(c + L)
    do_chunk(0)
    for t in range(nbar):
        a("s_waitcnt lgkmcnt(0)")
        a("s_barrier")
        if t == 0: stamp(a, p, 1)
        if t == 5: stamp(a, p, 2)
        if t == 10: stamp(a, p, 4)
        if t == nbar-1: stamp(a, p, 5)
        if t + 1 < 10: do_chunk(t+1)
        dr = [b for b in sorted(staged) if staged[b] == t-1]
        k = 0
        for b in dr:
            pos = b; off = (pos//2)*WSTAGE + (pos % 2)*2048
            r0 = ST + 8*k
            a(f"ds_read_b128 v[{r0}:{r0+3}], v{vR} offset:{off}")
            a(f"v_xor_b32 v6, 32, v{vR}")
            a(f"ds_read_b128 v[{r0+4}:{r0+7}], v6 offset:{off+256}")
            k += 1
        k = 0
        for b in dr:
            r0 = ST + 8*k
            a(f"s_waitcnt lgkmcnt({2*(len(dr)-1-k)+1})")
            a(f"buffer_store_dwordx4 v[{r0}:{r0+3}], v{vO}, s[24:27], s{50+b} offen {p.oflags}")
            a(f"s_waitcnt lgkmcnt({2*(len(dr)-1-k)})")
            a(f"buffer_store_dwordx4 v[{r0+4}:{r0+7}], v{vO2}, s[24:27], s{50+b} offen {p.oflags}")
            k += 1
    stamp_out(a, p)
    a("s_endpgm")
    return a.text()

def gen(p):
    lds = p.NS*4096 + 3*WSTAGE + 512
    assert lds <= 163840
    a = Asm()
    stamp(a, p, 0)
    if p.stamps:
        for i in (1,2,4,5,6,7): a(f"s_mov_b32 s{60+2*i}, 0")
    a("s_load_dwordx4 s[4:7], s[0:1], 0"); a("s_load_dwordx4 s[8:11], s[0:1], 16")
    if p.stamps: a("s_load_dwordx4 s[12:15], s[0:1], 32")
    a("s_cmp_ge_u32 s2, 256"); a("s_cbranch_scc1 L_exit")
    a("s_and_b32 s56, s2, 7"); a("s_lshr_b32 s57, s2, 3"); a("s_lshl_b32 s56, s56, 5"); a("s_add_u32 s56, s56, s57")
    a("s_cmp_eq_u32 s56, 255"); a("s_cbranch_scc1 L_exit")
    a("v_lshrrev_b32 v1, 6, v0")
    a("s_mul_i32 s57, s56, 205"); a("s_lshr_b32 s57, s57, 10")
    a("v_readfirstlane_b32 s32, v1")
    a("s_mul_i32 s58, s57, 5"); a("s_sub_u32 s33, s56, s58")
    if p.rot:
        a("s_add_u32 s58, s33, s57"); a("s_mul_i32 s59, s58, 205"); a("s_lshr_b32 s59, s59, 10"); a("s_mul_i32 s59, s59, 5")
        a("s_sub_u32 s35, s58, s59"); a("s_lshl_b32 s35, s35, 1"); a("s_mov_b32 s36, s33")
    else:
        a("s_mov_b32 s35, 0"); a("s_mov_b32 s36, 0")
    if p.early:
        a("s_sub_u32 s58, s57, 1"); a("s_cmp_eq_u32 s57, 0"); a("s_cselect_b32 s57, 50, s58")
    a("s_mul_i32 s34, s57, 204800")
    a("s_cmp_eq_u32 s57, 50"); a("s_cbranch_scc1 L_six")
    a("s_cmp_ge_u32 s32, 4"); a("s_cbranch_scc1 L_p5")
    c5, n5, st5 = consumer(p, 5, "5"); p5 = producer(p, 5, n5, st5)
    c6, n6, st6 = consumer(p, 6, "6"); p6 = producer(p, 6, n6, st6)
    body = a.text() + c5 + "L_exit:\n  s_endpgm\nL_p5:\n" + p5 + "L_six:\n  s_cmp_ge_u32 s32, 4\n  s_cbranch_scc1 L_p6\n" + c6 + "L_p6:\n" + p6
    hdr = open("standalone__structured_sparse_n_m__ragged.s.ref").read().split("; Override")[0]
    return hdr + f"""; Generated by my own generator script (gen.py): tiles of 160(192) rows x 128 columns, 4 MFMA waves + 4 pruning waves.
; @launch grid=(256,1,1) block=(512,1,1) lds={lds}
.amdgcn_target "amdgcn-amd-amdhsa--gfx950"
.text
.globl {KN}
.p2align 8
.type {KN},@function
{KN}:
{body}.section .rodata,"a"
.p2align 6
.amdhsa_kernel {KN}
  .amdhsa_next_free_vgpr 256
  .amdhsa_next_free_sgpr 96
  .amdhsa_accum_offset 96
  .amdhsa_group_segment_fixed_size 0
  .amdhsa_kernarg_size 48
  .amdhsa_user_sgpr_count 2
  .amdhsa_user_sgpr_kernarg_segment_ptr 1
  .amdhsa_system_sgpr_workgroup_id_x 1
.end_amdhsa_kernel
""", lds

if __name__ == "__main__":
    out = sys.argv[1]
    p = P()
    for kv in sys.argv[2:]:
        k, v = kv.split("=", 1)
        old = getattr(P, k)
        setattr(p, k, v.replace("+", " ") if isinstance(old, str) else int(v))
    s, lds = gen(p)
    open(out, "w").write(s)
    from mk import build
    build(out)
    print(out, "lds", lds, "lines", s.count("\n"))
```

```python
import sys
KN = "standalone__structured_sparse_n_m__ragged_kernel"

class P:
    NB = 5; NS = 27
    xflags = "nt"; wflags = ""; oflags = "sc1"
    rot = 1; stamps = 0; fill = 3; early = 1
    xlead = 3; xlead6 = 2
    cprio = 0; aprio = 0; bprio = 0; proprio = 1
    prebar = 1; b0 = 1; split = 46
    tail = "01,2,3,4"; tail6 = "01,23,4,5"
    diag = ""
    nomfma = 0; noprune = 0; noxread = 0; noload = 0
    xv = 0; xwpos = 100; xreg = 0; now = 0; nox = 0; xb = 2; dprio = 0; nowrite = 0

WSTAGE = 16640
CBS = 4160

class Asm:
    def __init__(s): s.l = []
    def __call__(s, x): s.l.append("  " + x)
    def label(s, x): s.l.append(x + ":")
    def text(s): return "\n".join(s.l) + "\n"

S3 = [96] + [60+2*i for i in range(10)] + [98, 86, 88]
def st3(a, p, i):
    if p.stamps == 3: a(f"s_memtime s[{S3[i]}:{S3[i]+1}]")
def stamp(a, p, i):
    if p.stamps == 3:
        if i == 0: st3(a, p, 0); a("s_memrealtime s[88:89]")
        return
    if p.stamps: a(f"s_memrealtime s[{60+2*i}:{61+2*i}]")
def pstamp(a, p, i):
    if p.stamps == 2: stamp(a, p, i)
def bstamps(a, p, t):
    if not p.stamps or p.stamps == 3: return
    if p.stamps == 2:
        if t == 0: stamp(a, p, 1)
        return
    if t == 0: stamp(a, p, 1); a("s_memtime s[72:73]")
    if t == 5: stamp(a, p, 2)
    if t == 9: stamp(a, p, 4); a("s_memtime s[74:75]")
def stamp_out(a, p):
    if not p.stamps: return
    if p.stamps == 3:
        st3(a, p, 11)
        a("s_waitcnt vmcnt(0) lgkmcnt(0)"); st3(a, p, 12); a("s_waitcnt lgkmcnt(0)")
        a("s_mov_b32 s16, s14"); a("s_and_b32 s17, s15, 0xffff"); a("s_mov_b32 s18, 0x100000"); a("s_mov_b32 s19, 0x20000")
        a("s_lshl_b32 s56, s2, 4"); a("s_add_u32 s56, s56, s32"); a("s_lshl_b32 s56, s56, 6")
        for i in range(14): a(f"v_mov_b32 v{4+i}, s{S3[i]}")
        a("v_mov_b32 v3, s56"); a("v_mbcnt_lo_u32_b32 v2, -1, 0"); a("v_mbcnt_hi_u32_b32 v2, -1, v2"); a("s_nop 1"); a("v_cmp_eq_u32 vcc, 0, v2"); a("s_and_saveexec_b64 s[58:59], vcc")
        for i in range(4): a(f"buffer_store_dwordx4 v[{4+4*i}:{7+4*i}], v3, s[16:19], 0 offen offset:{16*i}")
        return
    a("s_waitcnt vmcnt(0) lgkmcnt(0)")
    a("s_memrealtime s[66:67]")
    a("s_waitcnt lgkmcnt(0)")
    if p.diag:
        i, j, K = map(int, p.diag.split(","))
        lab = f"L_spin{len(a.l)}_{id(a)%100000}"
        a(f"s_sub_u32 s56, s{60+2*j}, s{60+2*i}"); a(f"s_mul_i32 s56, s56, {K}") if K >= 0 else a(f"s_lshr_b32 s56, s56, {-K}"); a("s_min_u32 s56, s56, 20000")
        a.label(lab)
        a("s_memrealtime s[58:59]"); a("s_waitcnt lgkmcnt(0)"); a("s_sub_u32 s57, s58, s66"); a("s_cmp_lt_u32 s57, s56"); a(f"s_cbranch_scc1 {lab}")
        return
    a("s_mov_b32 s84, s14"); a("s_and_b32 s85, s15, 0xffff"); a("s_mov_b32 s86, 0x100000"); a("s_mov_b32 s87, 0x20000")
    a("s_lshl_b32 s56, s2, 4"); a("s_add_u32 s56, s56, s32"); a("s_lshl_b32 s56, s56, 5")
    for i in range(8): a(f"v_mov_b32 v{4+i}, s{60+2*i}")
    a("v_mov_b32 v3, s56"); a("v_mbcnt_lo_u32_b32 v2, -1, 0"); a("v_mbcnt_hi_u32_b32 v2, -1, v2"); a("s_nop 1"); a("v_cmp_eq_u32 vcc, 0, v2"); a("s_and_saveexec_b64 s[58:59], vcc")
    a("buffer_store_dwordx4 v[4:7], v3, s[84:87], 0 offen"); a("buffer_store_dwordx4 v[8:11], v3, s[84:87], 0 offen offset:16")

def srd(a, d, ptr, n):
    a(f"s_mov_b32 s{d}, s{ptr}"); a(f"s_and_b32 s{d+1}, s{ptr+1}, 0xffff"); a(f"s_mov_b32 s{d+2}, {n}"); a(f"s_mov_b32 s{d+3}, 0x20000")

def ktable(a, dst, c0, c1, unit, first):
    for c in range(c0, c1):
        if c == 0: a(f"s_mov_b32 s{dst}, s{first}")
        else:
            a(f"s_add_u32 s{dst+c}, s{dst+c-1}, {unit}"); a(f"s_cmp_eq_u32 s{dst+c}, s57"); a(f"s_cselect_b32 s{dst+c}, s58, s{dst+c}")
def btable(a, nb):
    a("s_mul_i32 s50, s36, 40960"); a("s_add_u32 s50, s50, s34"); a(f"s_add_u32 s57, s34, {nb*40960}")
    for b in range(1, nb):
        a(f"s_add_u32 s{50+b}, s{49+b}, 40960"); a(f"s_cmp_eq_u32 s{50+b}, s57"); a(f"s_cselect_b32 s{50+b}, s34, s{50+b}")

def dma_voff(a, lane, wave_s, dst, t1, t2):
    a(f"v_lshrrev_b32 v{t1}, 3, v{lane}"); a(f"s_lshl_b32 s56, s{wave_s}, 3"); a(f"v_add_u32 v{t1}, s56, v{t1}")
    a(f"v_lshrrev_b32 v{t2}, 1, v{t1}"); a(f"v_xor_b32 v{t2}, v{t2}, v{lane}"); a(f"v_and_b32 v{t2}, 7, v{t2}")
    a(f"v_mul_u32_u24 v{t1}, 1280, v{t1}"); a(f"v_lshl_add_u32 v{dst}, v{t2}, 4, v{t1}")
    a(f"s_lshl_b32 s37, s{wave_s}, 10")

def slot(p, nb, b, c): return ((c*nb + b) % p.NS)*4096
def dma_txt(p, nb, b, c, vD):
    if p.noload: return []
    if p.nox: return [f"buffer_load_dword v100, v{vD}, s[16:19], 0 offen offset:4095"] if c < 0 else ["s_nop 0"]
    if p.xreg: return [f"s_add_u32 s56, s{50+b}, s{40+c}", f"buffer_load_dwordx4 v[{100+4*b}:{103+4*b}], v{vD}, s[16:19], s56 offen {p.xflags}"]
    return [f"s_add_u32 m0, s37, {slot(p, nb, b, c)}", f"s_add_u32 s56, s{50+b}, s{40+c}",
            f"buffer_load_dwordx4 v{vD}, s[16:19], s56 offen {p.xflags} lds"]
def xl(p, nb):
    v = p.xlead if nb == 5 else p.xlead6
    assert (v + 2 - p.xv)*nb <= p.NS and (p.xv < 2 or v >= 3), (v, nb)
    return v
def groups(p, nb): return [[int(ch) for ch in g] for g in (p.tail if nb == 5 else p.tail6).split(",")]

def consumer(p, nb):
    a = Asm(); NB = p.NB; XL = xl(p, nb)
    WB = p.NS*4096; BIAS = WB + 3*WSTAGE
    ACC = lambda b: 16*b
    WF = 96; XF = 128; VA = XF + 4*NB
    vX = [VA+i for i in range(4)]; vW = VA+4; vD = VA+5; vO = VA+6; vT = VA+7
    assert vT < 168, vT
    vm = []
    a("v_and_b32 v1, 63, v0")
    pstamp(a, p, 2)
    dma_voff(a, 1, 32, vD, 2, 3)
    btable(a, nb)
    a("s_mov_b32 s57, 1280"); a("s_mov_b32 s58, 0")
    ktable(a, 40, 0, XL, 128, 35)
    a("s_waitcnt lgkmcnt(0)")
    pstamp(a, p, 5)
    srd(a, 16, 4, 10485760)
    if p.prebar: a("s_barrier")
    for c in range(XL):
        for b in range(nb):
            for x in dma_txt(p, nb, b, c, vD): a(x)
            vm.append(c)
    pstamp(a, p, 6)
    a("v_and_b32 v2, 31, v1"); a("v_lshrrev_b32 v3, 5, v1"); a("v_lshrrev_b32 v4, 1, v2"); a("v_and_b32 v4, 7, v4")
    a("v_xor_b32 v4, v4, v3"); a("v_lshlrev_b32 v4, 4, v4"); a(f"v_lshl_add_u32 v{vX[0]}, v2, 7, v4")
    for s in range(1, 4): a(f"v_xor_b32 v{vX[s]}, {s*32}, v{vX[0]}")
    a("v_lshlrev_b32 v4, 9, v3"); a("v_bfe_u32 v5, v1, 4, 1"); a("v_lshl_add_u32 v4, v5, 5, v4")
    a("v_bfe_u32 v5, v1, 2, 2"); a("v_lshl_add_u32 v4, v5, 6, v4"); a("v_and_b32 v5, 3, v1"); a("v_lshl_add_u32 v4, v5, 3, v4")
    a(f"s_mul_i32 s56, s32, {CBS}"); a(f"s_add_u32 s56, s56, {WB}"); a(f"v_add_u32 v{vW}, s56, v4")
    a("v_bfe_u32 v5, v1, 1, 2"); a("v_xor_b32 v5, v5, v3"); a("v_lshlrev_b32 v5, 4, v5"); a("v_lshl_add_u32 v5, v2, 6, v5")
    a(f"v_add_u32 v{vO}, s56, v5")
    a("s_lshl_b32 s56, s32, 7"); a(f"s_add_u32 s56, s56, {BIAS}"); a("v_lshlrev_b32 v4, 4, v3"); a(f"v_add_u32 v{vT}, s56, v4")
    if p.cprio: a(f"s_setprio {p.cprio}")
    mf = [(b, c, s) for c in range(10) for b in range(nb) for s in range(4)]
    lg = []
    def wait_lds(tags):
        idx = max([k for k, t_ in enumerate(lg) if t_ in tags], default=-1)
        if idx >= 0:
            a(f"s_waitcnt lgkmcnt({len(lg)-1-idx})"); del lg[:idx+1]
    def lds(txt, tagi):
        if len(lg) >= 15: wait_lds([lg[0]])
        a(txt); lg.append(tagi)
    xbase = [0]*4
    def xread(j):
        b, c, s = mf[j]
        off = slot(p, nb, b, c)
        hi = off & ~0xffff
        if xbase[s] != hi:
            a(f"v_xor_b32 v{vX[s]}, 0x10000, v{vX[s]}"); xbase[s] = hi
        r = XF + 4*(j % NB)
        if not p.noxread: lds(f"ds_read_b128 v[{r}:{r+3}], v{vX[s]} offset:{off & 0xffff}", ("x", j))
    def wread(c, s):
        for q in range(2):
            r = WF + 16*(c % 2) + 4*s + 2*q
            lds(f"ds_read_b64_tr_b16 v[{r}:{r+1}], v{vW} offset:{(c%3)*WSTAGE + s*1024 + q*256}", ("w", c, s))
    cur = [-1]
    def boundary(t):
        need = [k for k, c in enumerate(vm) if c <= t]
        if need and not p.noload and not p.nox:
            a(f"s_waitcnt vmcnt({len(vm)-1-max(need)})"); del vm[:max(need)+1]
        wait_lds([x for x in lg if x[0] == "w" and x[1] == t-1])
        st3(a, p, 1+t)
        a("s_barrier")
        bstamps(a, p, t)
        cur[0] = t
    fillq = []
    grp = groups(p, nb); done = set(); gi = [0]
    def epilogue_items(b):
        A = ACC(b); off = ((b//2 + 1) % 3)*WSTAGE + (b % 2)*2048
        it = [f"v_cvt_pk_bf16_f32 v{A+k}, v{A+2*k}, v{A+2*k+1}" for k in range(8)]
        it += [f"v_xor_b32 v{A+8}, 32, v{vO}", "s_nop 0",
               f"v_permlane32_swap_b32 v{A}, v{A+2}", f"v_permlane32_swap_b32 v{A+1}, v{A+3}",
               f"v_permlane32_swap_b32 v{A+4}, v{A+6}", f"v_permlane32_swap_b32 v{A+5}, v{A+7}",
               ("lds", f"ds_write_b128 v{vO}, v[{A}:{A+3}] offset:{off}", ("o", b)),
               ("lds", f"ds_write_b128 v{A+8}, v[{A+4}:{A+7}] offset:{off}", ("o", b)), ("done", b)]
        return it
    pend = []
    def tailbar():
        g = grp[gi[0]]
        wait_lds([("o", b) for b in g]); a("s_barrier"); gi[0] += 1
    def emit_fill(n, force=False):
        k = 0
        if pend and not force:
            pend[0] -= 1
            if pend[0] <= 0: pend.pop(0); tailbar()
        while fillq and k < n:
            it = fillq[0]
            if isinstance(it, tuple) and it[0] == "gate":
                have = len(a.l) - it[1]
                if have < 12:
                    if not force: return
                    a(f"s_nop {12-have-1}")
                fillq.pop(0); continue
            fillq.pop(0)
            if isinstance(it, str): a(it); k += 1
            elif it[0] == "lds": lds(it[1], it[2]); k += 1
            elif it[0] == "done":
                done.add(it[1])
                g = gi[0] + len(pend)
                if g < len(grp) and all(b in done for b in grp[g]):
                    if force:
                        while pend: pend.pop(0); tailbar()
                        tailbar()
                    else: pend.append(2)
    boundary(0)
    wread(0, 0)
    for q in range(4):
        r = ACC(nb-1) + 4*q
        lds(f"ds_read_b128 v[{r}:{r+3}], v{vT} offset:{q*32}", ("b",))
    nxt = [0]; wq = [(0, 1), (0, 2), (0, 3)]
    def advance(upto):
        while nxt[0] < min(upto, len(mf)):
            c = mf[nxt[0]][1]
            if cur[0] < c:
                boundary(c); wq.extend((c, s) for s in range(4))
            xread(nxt[0]); nxt[0] += 1
            if wq: wread(*wq.pop(0))
    advance(NB)
    for j, (b, c, s) in enumerate(mf):
        assert (c, s) not in wq
        wait_lds([("x", j), ("w", c, s), ("b",)])
        A = ACC(b); wr = WF + 16*(c % 2) + 4*s; xr = XF + 4*(j % NB)
        C = ACC(nb-1) if (c == 0 and s == 0) else A
        if not p.nomfma: a(f"v_mfma_f32_32x32x16_bf16 v[{A}:{A+15}], v[{wr}:{wr+3}], v[{xr}:{xr+3}], v[{C}:{C+15}]")
        if c == 9 and s == 3:
            fillq.append(("gate", len(a.l))); fillq.extend(epilogue_items(b))
        advance(j + 1 + NB)
        emit_fill(p.fill)
    if p.stamps == 1: stamp(a, p, 5)
    emit_fill(100000, True)
    while pend: pend.pop(0); tailbar()
    assert gi[0] == len(grp)
    stamp_out(a, p)
    a("s_endpgm")
    return a.text()

def prune_all(S, T):
    o = []
    for j0 in (0, 2):
        js = (j0, j0+1)
        A = lambda j, r: T + (j-j0)*8 + r
        U = lambda j, k: T + (j-j0)*8 + 4 + k
        for r in range(4):
            for j in js: o.append(f"v_and_b32 v{A(j,r)}, s38, v{S+4*r+j}")
        for j in js: o.append(f"v_pk_max_u16 v{U(j,0)}, v{A(j,0)}, v{A(j,1)}")
        for j in js: o.append(f"v_pk_min_u16 v{U(j,1)}, v{A(j,0)}, v{A(j,1)}")
        for j in js: o.append(f"v_pk_max_u16 v{U(j,2)}, v{A(j,2)}, v{A(j,3)}")
        for j in js: o.append(f"v_pk_min_u16 v{U(j,3)}, v{A(j,2)}, v{A(j,3)}")
        for j in js: o.append(f"v_pk_min_u16 v{U(j,0)}, v{U(j,0)}, v{U(j,2)}")
        for j in js: o.append(f"v_pk_max_u16 v{U(j,1)}, v{U(j,1)}, v{U(j,3)}")
        for j in js: o.append(f"v_pk_max_u16 v{U(j,0)}, v{U(j,0)}, v{U(j,1)}")
        for r in range(4):
            for j in js: o.append(f"v_pk_sub_i16 v{A(j,r)}, v{A(j,r)}, v{U(j,0)}")
        for r in range(4):
            for j in js: o.append(f"v_pk_ashrrev_i16 v{A(j,r)}, 15, v{A(j,r)} op_sel_hi:[0,1]")
        for r in range(4):
            for j in js: o.append(f"v_bfi_b32 v{S+4*r+j}, v{A(j,r)}, 0, v{S+4*r+j}")
    return o

def producer(p, nb, X):
    a = Asm(); XL = xl(p, nb)
    WB = p.NS*4096; BIAS = WB + 3*WSTAGE
    vG = 1; vS = 2; vR = 3; vO = 4; vD = 7; T = 8; ST = 32; DR = 64
    WK = 80
    prio = p.aprio if X == 0 else p.bprio
    if X == 0 and p.proprio: a(f"s_setprio {p.proprio}")
    elif prio: a(f"s_setprio {prio}")
    a(f"s_sub_u32 s39, s32, {4+4*X}"); a("v_and_b32 v6, 63, v0")
    pstamp(a, p, 2)
    a("v_lshrrev_b32 v24, 4, v6"); a("s_lshl_b32 s56, s39, 2"); a("v_add_u32 v24, s56, v24")
    a("v_and_b32 v25, 15, v6"); a("v_mul_u32_u24 v9, 5120, v24"); a(f"v_lshl_add_u32 v{vG}, v25, 4, v9")
    a("s_lshl_b32 s59, s33, 8")
    if X: a("s_add_u32 s58, s59, 81920")
    else: a("s_mov_b32 s58, s59")
    a("s_mul_i32 s56, s35, 640"); a(f"s_add_u32 s{WK}, s56, s58")
    if X == 0: a("v_lshlrev_b32 v10, 2, v6")
    a("s_waitcnt lgkmcnt(0)")
    pstamp(a, p, 5)
    srd(a, 20, 6, 819200)
    vm = []
    SR = lambda c: ST + 16*((c//2) % 2)
    def wload1(c, r):
        vm.append(("w", c))
        if p.noload or p.now: return []
        return [f"buffer_load_dwordx4 v[{SR(c)+4*r}:{SR(c)+4*r+3}], v{vG}, s[20:23], s{WK+c//2} offen offset:{r*1280} {p.wflags}"]
    XR = lambda b, c: 96 + 24*((c//2) % 2) + 4*b
    def xdma(b, c):
        vm.append(("x", c))
        if p.xv: return [f"s_add_u32 s56, s{50+b}, s{40+c}", f"buffer_load_dwordx4 v[{XR(b,c)}:{XR(b,c)+3}], v{vD}, s[16:19], s56 offen {p.xflags}"]
        return dma_txt(p, nb, b, c, vD)
    def xwr(c):
        if not p.xv or c >= 10 or c < XL: return []
        def one(b):
            if b == 0: wait_vm(lambda t_: t_ == ("x", c))
            off = slot(p, nb, b, c)
            return [f"ds_write_b128 v{30 + (off >> 16)}, v[{XR(b,c)}:{XR(b,c)+3}] offset:{off & 0xffff}"]
        return [(lambda b=b: one(b)) for b in range(nb)]
    def emit(l):
        for y in l: a(y)
    if X == 0:
        for r in range(4): emit(wload1(0, r))
        srd(a, 28, 8, 1280)
        a("buffer_load_dword v27, v10, s[28:31], s59 offen"); vm.append("bias")
        if p.prebar: a("s_barrier")
    else:
        if p.prebar: a("s_barrier")
        for r in range(4): emit(wload1(1, r))
    a("s_add_u32 s57, s58, 819200")
    ktable(a, WK, 1, 5, 163840, WK)
    pstamp(a, p, 6)
    a("s_mov_b32 s38, 0x7fff7fff")
    srd(a, 16, 4, 10485760)
    dma_voff(a, 6, 39, vD, 12, 13)
    btable(a, nb)
    a("s_mov_b32 s57, 1280"); a("s_mov_b32 s58, 0")
    ktable(a, 40, 0, 10, 128, 35)
    for b in range(nb): a(f"s_add_u32 s{90+b}, s{50+b}, s59")
    srd(a, 24, 10, 10485760)
    a("v_lshrrev_b32 v9, 2, v25"); a(f"v_mul_u32_u24 v9, {CBS}, v9"); a("v_lshl_add_u32 v14, v24, 8, v9"); a("v_and_b32 v12, 3, v25")
    a("v_lshl_add_u32 v14, v12, 4, v14"); a(f"v_add_u32 v{vS}, {WB}, v14")
    a("v_lshrrev_b32 v13, 4, v6"); a("s_lshl_b32 s56, s39, 3")
    if X: a("s_add_u32 s56, s56, 4")
    a("v_add_u32 v13, s56, v13")
    a("v_lshrrev_b32 v14, 1, v13"); a("v_xor_b32 v14, v14, v12"); a("v_and_b32 v14, 3, v14"); a("v_lshlrev_b32 v14, 4, v14")
    a("v_lshl_add_u32 v14, v13, 6, v14"); a("v_add_u32 v14, v14, v9"); a(f"v_add_u32 v{vR}, {WB}, v14")
    a("v_mul_u32_u24 v13, 1280, v13"); a(f"v_lshl_add_u32 v{vO}, v25, 4, v13")
    if X == 0: a("v_lshlrev_b32 v26, 3, v6"); a(f"v_add_u32 v26, {BIAS}, v26")
    if p.xv: a("v_lshlrev_b32 v30, 4, v6"); a("v_add_u32 v30, s37, v30"); a("v_add_u32 v31, 0x10000, v30")
    def wait_vm(pred):
        idx = max([k for k, t_ in enumerate(vm) if pred(t_)], default=-1)
        if idx >= 0:
            n = len(vm)-1-idx
            if p.noload: n = 0
            if p.now: n = sum(1 for t_ in vm[idx+1:] if t_[0] != "w")
            if p.nox: n = sum(1 for t_ in vm[idx+1:] if t_[0] != "x")
            a(f"s_waitcnt vmcnt({n})"); del vm[:idx+1]
    def pr(c): return [] if p.noprune else prune_all(SR(c), T)
    def writes(c):
        if p.nowrite: return
        for r in range(4): a(f"ds_write_b128 v{vS}, v[{SR(c)+4*r}:{SR(c)+4*r+3}] offset:{(c%3)*WSTAGE + r*64}")
    def stream(valu, mem):
        n = len(mem); k = 0
        for i, x in enumerate(valu):
            while k < n and i * n >= k * len(valu):
                emit(mem[k]()); k += 1
            a(x)
        while k < n:
            emit(mem[k]()); k += 1
    wl = lambda c: [(lambda r=r: wload1(c, r)) for r in range(4)] if c < 10 else []
    xs = lambda c: [(lambda b=b: xdma(b, c)) for b in range(nb)] if c < 10 else []
    rest = []
    if X == 0:
        wait_vm(lambda t_: t_ == ("w", 0))
        pstamp(a, p, 7)
        stream(pr(0), wl(2))
        writes(0)
        wait_vm(lambda t_: t_ == "bias")
        a("v_lshlrev_b32 v28, 16, v27"); a("v_and_b32 v29, 0xffff0000, v27"); a("ds_write_b64 v26, v[28:29]")
        if p.proprio != prio: a(f"s_setprio {prio}")
    else:
        if p.b0:
            wait_vm(lambda t_: t_ == ("w", 1))
            pstamp(a, p, 7)
            v = pr(1); stream(v[:p.split], wl(3)); rest = v[p.split:]
        else:
            stream([], wl(3)); rest = pr(1)
    late = [0]
    for t in range(10):
        if not p.xv: wait_vm(lambda t_: t_[0] == "x" and t_[1] <= t)
        a(f"s_waitcnt lgkmcnt({late[0]})"); late[0] = 0
        st3(a, p, 1+t)
        a("s_barrier")
        bstamps(a, p, t)
        if t % 2 == X:
            c = t + 2
            xw = xwr(t - 1 + XL) if p.xv == 1 else []
            if c < 10:
                wait_vm(lambda t_: t_ == ("w", c))
                v = pr(c); v1 = v[:p.split]; rest = v[p.split:]
                k = len(v1)*p.xwpos//100
                w4 = wl(c+2); kw = (len(w4)*p.xwpos + 99)//100
                stream(v1[:k], w4[:kw]); stream(v1[k:], xw + w4[kw:])
            else: stream([], xw)
            if xw and XL >= 3: late[0] = len(xw)
        else:
            c = t + 1
            if c < 10:
                wait_vm(lambda t_: t_ == ("w", c))
                if p.dprio: a(f"s_setprio {p.dprio}")
                x = xs(t+XL)
                if p.xv == 2: stream([], xwr(t - 2 + XL))
                stream(rest, x[:p.xb])
                writes(c)
                if p.dprio: a(f"s_setprio {prio}")
                stream([], x[p.xb:])
    for g in groups(p, nb):
        a("s_barrier")
        for b in g:
            off = ((b//2 + 1) % 3)*WSTAGE + (b % 2)*2048; r0 = DR + 4*b
            a(f"ds_read_b128 v[{r0}:{r0+3}], v{vR} offset:{off}")
        for k, b in enumerate(g):
            r0 = DR + 4*b
            a(f"s_waitcnt lgkmcnt({len(g)-1-k})")
            a(f"buffer_store_dwordx4 v[{r0}:{r0+3}], v{vO}, s[24:27], s{90+b} offen {p.oflags}")
    if p.stamps == 1: stamp(a, p, 5)
    stamp_out(a, p)
    a("s_endpgm")
    return a.text()

def gen(p):
    lds = p.NS*4096 + 3*WSTAGE + 512
    assert lds <= 163840
    a = Asm()
    stamp(a, p, 0)
    a("s_load_dwordx4 s[4:7], s[0:1], 0"); a("s_load_dwordx4 s[8:11], s[0:1], 16")
    if p.stamps:
        a("s_load_dwordx4 s[12:15], s[0:1], 32")
        if p.stamps != 3:
            for i in (1,2,4,5,6,7): a(f"s_mov_b32 s{60+2*i}, 0")
    a("v_lshrrev_b32 v1, 6, v0")
    a("s_and_b32 s56, s2, 7"); a("s_lshr_b32 s57, s2, 3"); a("s_lshl_b32 s56, s56, 5"); a("s_add_u32 s56, s56, s57")
    a("v_readfirstlane_b32 s32, v1")
    a("s_cmp_ge_u32 s2, 255"); a("s_cbranch_scc1 L_exit")
    a("s_mul_i32 s57, s56, 205"); a("s_lshr_b32 s57, s57, 10")
    a("s_mul_i32 s58, s57, 5"); a("s_sub_u32 s33, s56, s58")
    if p.rot & 1:
        a("s_add_u32 s58, s33, s57"); a("s_mul_i32 s59, s58, 205"); a("s_lshr_b32 s59, s59, 10"); a("s_mul_i32 s59, s59, 5")
        a("s_sub_u32 s35, s58, s59"); a("s_lshl_b32 s35, s35, 8")
    elif p.rot & 4:
        a("s_mul_i32 s59, s57, 205"); a("s_lshr_b32 s59, s59, 10"); a("s_mul_i32 s59, s59, 5")
        a("s_sub_u32 s35, s57, s59"); a("s_lshl_b32 s35, s35, 8")
    else: a("s_mov_b32 s35, 0")
    if p.rot & 3: a("s_mov_b32 s36, s33")
    else: a("s_mov_b32 s36, 0")
    if p.early:
        a("s_sub_u32 s58, s57, 1"); a("s_cmp_eq_u32 s57, 0"); a("s_cselect_b32 s57, 50, s58")
    a("s_mul_i32 s34, s57, 204800")
    a("s_cmp_eq_u32 s57, 50"); a("s_cbranch_scc1 L_six")
    a("s_cmp_lt_u32 s32, 4"); a("s_cbranch_scc1 L_c5")
    a("s_cmp_ge_u32 s32, 8"); a("s_cbranch_scc1 L_b5")
    body = a.text() + producer(p, 5, 0) + "L_exit:\n  s_endpgm\nL_b5:\n" + producer(p, 5, 1) + "L_c5:\n" + consumer(p, 5)
    body += "L_six:\n  s_cmp_lt_u32 s32, 4\n  s_cbranch_scc1 L_c6\n  s_cmp_ge_u32 s32, 8\n  s_cbranch_scc1 L_b6\n"
    body += producer(p, 6, 0) + "L_b6:\n" + producer(p, 6, 1) + "L_c6:\n" + consumer(p, 6)
    hdr = open("standalone__structured_sparse_n_m__ragged.s.ref").read().split("; Override")[0]
    return hdr + f"""; Generated by my own generator script: tiles of 160(192) rows x 128 columns, 4 MFMA waves + 8 load/prune waves.
; @launch grid=(256,1,1) block=(768,1,1) lds={lds}
.amdgcn_target "amdgcn-amd-amdhsa--gfx950"
.text
.globl {KN}
.p2align 8
.type {KN},@function
{KN}:
{body}.section .rodata,"a"
.p2align 6
.amdhsa_kernel {KN}
  .amdhsa_next_free_vgpr 168
  .amdhsa_next_free_sgpr 100
  .amdhsa_accum_offset 168
  .amdhsa_group_segment_fixed_size 0
  .amdhsa_kernarg_size 48
  .amdhsa_user_sgpr_count 2
  .amdhsa_user_sgpr_kernarg_segment_ptr 1
  .amdhsa_system_sgpr_workgroup_id_x 1
.end_amdhsa_kernel
""", lds

if __name__ == "__main__":
    out = sys.argv[1]
    p = P()
    for kv in sys.argv[2:]:
        k, v = kv.split("=", 1)
        old = getattr(P, k)
        setattr(p, k, v.replace("+", " ") if isinstance(old, str) else int(v))
    s, lds = gen(p)
    open(out, "w").write(s)
    from mk import build
    build(out)
    print(out, "lds", lds, "lines", s.count("\n"))
```

```python
import sys
KN = "standalone__structured_sparse_n_m__ragged_kernel"

class P:
    NB = 5; NS = 27
    xflags = "nt"; wflags = ""; oflags = "sc1"
    rot = 1; stamps = 0; fill = 3; early = 1
    xlead = 3; xlead6 = 2
    cprio = 0; aprio = 0; bprio = 0; proprio = 1
    prebar = 1; b0 = 1; split = 46
    tail = "01,2,3,4"; tail6 = "01,23,4,5"
    diag = ""
    nomfma = 0; noprune = 0; noxread = 0; noload = 0
    poll = 0; lags = ""; lags6 = ""; xp = 13; xp6 = 12; gate = 16; wrate = 1; estop = 1; two = 0; walt = 0; tst = 0; flags = 1; xv = 0; xwpos = 100; xreg = 0; now = 0; nox = 0; xb = 2; dprio = 0; nowrite = 0

WSTAGE = 16640
CBS = 4160

class Asm:
    def __init__(s): s.l = []
    def __call__(s, x): s.l.append("  " + x)
    def label(s, x): s.l.append(x + ":")
    def text(s): return "\n".join(s.l) + "\n"

S3 = [96] + [60+2*i for i in range(10)] + [98, 86, 88]
def st3(a, p, i, tail=False):
    if p.stamps == 3 and (tail == bool(p.tst) or i in (0, 10, 11, 12)): a(f"s_memtime s[{S3[i]}:{S3[i]+1}]")
def stamp(a, p, i):
    if p.stamps == 3:
        if i == 0: st3(a, p, 0); a("s_memrealtime s[88:89]")
        return
    if p.stamps: a(f"s_memrealtime s[{60+2*i}:{61+2*i}]")
def pstamp(a, p, i):
    if p.stamps == 2: stamp(a, p, i)
def bstamps(a, p, t):
    if not p.stamps or p.stamps == 3: return
    if p.stamps == 2:
        if t == 0: stamp(a, p, 1)
        return
    if t == 0: stamp(a, p, 1); a("s_memtime s[72:73]")
    if t == 5: stamp(a, p, 2)
    if t == 9: stamp(a, p, 4); a("s_memtime s[74:75]")
def stamp_out(a, p):
    if not p.stamps: return
    if p.stamps == 3:
        st3(a, p, 11)
        a("s_waitcnt vmcnt(0) lgkmcnt(0)"); st3(a, p, 12); a("s_waitcnt lgkmcnt(0)")
        a("s_mov_b32 s16, s14"); a("s_and_b32 s17, s15, 0xffff"); a("s_mov_b32 s18, 0x100000"); a("s_mov_b32 s19, 0x20000")
        a("s_lshl_b32 s56, s2, 4"); a("s_add_u32 s56, s56, s32"); a("s_lshl_b32 s56, s56, 6")
        for i in range(14): a(f"v_mov_b32 v{4+i}, s{S3[i]}")
        a("v_mov_b32 v3, s56"); a("v_mbcnt_lo_u32_b32 v2, -1, 0"); a("v_mbcnt_hi_u32_b32 v2, -1, v2"); a("s_nop 1"); a("v_cmp_eq_u32 vcc, 0, v2"); a("s_and_saveexec_b64 s[58:59], vcc")
        for i in range(4): a(f"buffer_store_dwordx4 v[{4+4*i}:{7+4*i}], v3, s[16:19], 0 offen offset:{16*i}")
        return
    a("s_waitcnt vmcnt(0) lgkmcnt(0)")
    a("s_memrealtime s[66:67]")
    a("s_waitcnt lgkmcnt(0)")
    if p.diag:
        i, j, K = map(int, p.diag.split(","))
        lab = f"L_spin{len(a.l)}_{id(a)%100000}"
        a(f"s_sub_u32 s56, s{60+2*j}, s{60+2*i}"); a(f"s_mul_i32 s56, s56, {K}") if K >= 0 else a(f"s_lshr_b32 s56, s56, {-K}"); a("s_min_u32 s56, s56, 20000")
        a.label(lab)
        a("s_memrealtime s[58:59]"); a("s_waitcnt lgkmcnt(0)"); a("s_sub_u32 s57, s58, s66"); a("s_cmp_lt_u32 s57, s56"); a(f"s_cbranch_scc1 {lab}")
        return
    a("s_mov_b32 s84, s14"); a("s_and_b32 s85, s15, 0xffff"); a("s_mov_b32 s86, 0x100000"); a("s_mov_b32 s87, 0x20000")
    a("s_lshl_b32 s56, s2, 4"); a("s_add_u32 s56, s56, s32"); a("s_lshl_b32 s56, s56, 5")
    for i in range(8): a(f"v_mov_b32 v{4+i}, s{60+2*i}")
    a("v_mov_b32 v3, s56"); a("v_mbcnt_lo_u32_b32 v2, -1, 0"); a("v_mbcnt_hi_u32_b32 v2, -1, v2"); a("s_nop 1"); a("v_cmp_eq_u32 vcc, 0, v2"); a("s_and_saveexec_b64 s[58:59], vcc")
    a("buffer_store_dwordx4 v[4:7], v3, s[84:87], 0 offen"); a("buffer_store_dwordx4 v[8:11], v3, s[84:87], 0 offen offset:16")

def srd(a, d, ptr, n):
    a(f"s_mov_b32 s{d}, s{ptr}"); a(f"s_and_b32 s{d+1}, s{ptr+1}, 0xffff"); a(f"s_mov_b32 s{d+2}, {n}"); a(f"s_mov_b32 s{d+3}, 0x20000")

def ktable(a, dst, c0, c1, unit, first):
    for c in range(c0, c1):
        if c == 0: a(f"s_mov_b32 s{dst}, s{first}")
        else:
            a(f"s_add_u32 s{dst+c}, s{dst+c-1}, {unit}"); a(f"s_cmp_eq_u32 s{dst+c}, s57"); a(f"s_cselect_b32 s{dst+c}, s58, s{dst+c}")
def btable(a, nb):
    a("s_mul_i32 s50, s36, 40960"); a("s_add_u32 s50, s50, s34"); a(f"s_add_u32 s57, s34, {nb*40960}")
    for b in range(1, nb):
        a(f"s_add_u32 s{50+b}, s{49+b}, 40960"); a(f"s_cmp_eq_u32 s{50+b}, s57"); a(f"s_cselect_b32 s{50+b}, s34, s{50+b}")

def dma_voff(a, lane, wave_s, dst, t1, t2):
    a(f"v_lshrrev_b32 v{t1}, 3, v{lane}"); a(f"s_lshl_b32 s56, s{wave_s}, 3"); a(f"v_add_u32 v{t1}, s56, v{t1}")
    a(f"v_lshrrev_b32 v{t2}, 1, v{t1}"); a(f"v_xor_b32 v{t2}, v{t2}, v{lane}"); a(f"v_and_b32 v{t2}, 7, v{t2}")
    a(f"v_mul_u32_u24 v{t1}, 1280, v{t1}"); a(f"v_lshl_add_u32 v{dst}, v{t2}, 4, v{t1}")
    a(f"s_lshl_b32 s37, s{wave_s}, 10")

def slot(p, nb, b, c):
    if p.two: return ((c % (p.NS//nb))*nb + b)*4096
    return ((c*nb + b) % p.NS)*4096
def stage_off(p, nb, b):
    WB = p.NS*4096
    if not p.two: return WB + ((b//2 + 1) % 3)*WSTAGE + (b % 2)*2048
    A2 = 0 if nb == 5 else 12*4096
    if nb == 5: return A2 if b == 4 else WB + (1 + b//2)*WSTAGE + (b % 2)*2048
    r, j = divmod(b, 3)
    return A2 + r*2048 if j == 2 else WB + (1 + r)*WSTAGE + j*2048
def sched(p, nb):
    lg = [int(ch) for ch in (p.lags if nb == 5 else p.lags6)] or [0]*nb
    bc = []
    for t in range(9):
        for b in sorted(range(nb), key=lambda b: (-lg[b], b)):
            if t - lg[b] >= 0: bc.append((b, t - lg[b], t))
    for b in sorted(range(nb), key=lambda b: (lg[b], b)):
        for c in range(9 - lg[b], 10): bc.append((b, c, 9))
    mf = [(b, c, s, t) for b, c, t in bc for s in range(4)]
    if max(lg) == 0: P = xl(p, nb)*nb
    else: P = p.xp if nb == 5 else p.xp6
    at = [-1 if i < P else (i - P)//nb for i in range(len(bc))]
    for i, (b, c, t) in enumerate(bc):
        assert at[i] <= max(-1, t - 2), (i, at[i], t)
        if i >= p.NS: assert at[i] >= bc[i - p.NS][2] + 2, (i, at[i], bc[i - p.NS])
    return mf, bc, at, max(2, max(lg) + 1)
def dma_i(p, nb, bc, i, vD):
    b, c, t = bc[i]
    if p.noload: return []
    return [f"s_add_u32 m0, s37, {(i % p.NS)*4096}", f"s_add_u32 s56, s{50+b}, s{40+c}",
            f"buffer_load_dwordx4 v{vD}, s[16:19], s56 offen {p.xflags} lds"]
def dma_txt(p, nb, b, c, vD):
    if p.noload: return []
    if p.nox: return [f"buffer_load_dword v100, v{vD}, s[16:19], 0 offen offset:4095"] if c < 0 else ["s_nop 0"]
    if p.xreg: return [f"s_add_u32 s56, s{50+b}, s{40+c}", f"buffer_load_dwordx4 v[{100+4*b}:{103+4*b}], v{vD}, s[16:19], s56 offen {p.xflags}"]
    return [f"s_add_u32 m0, s37, {slot(p, nb, b, c)}", f"s_add_u32 s56, s{50+b}, s{40+c}",
            f"buffer_load_dwordx4 v{vD}, s[16:19], s56 offen {p.xflags} lds"]
def xl(p, nb):
    v = p.xlead if nb == 5 else p.xlead6
    assert (not p.two or v + 2 <= p.NS//nb) and (v + 2 - p.xv)*nb <= p.NS and v*nb <= p.NS and (p.xv < 2 or v >= p.xv + 1), (v, nb)
    return v
def groups(p, nb): return [[int(ch) for ch in g] for g in (p.tail if nb == 5 else p.tail6).split(",")]

def consumer(p, nb):
    a = Asm(); NB = p.NB; XL = xl(p, nb)
    WB = p.NS*4096; BIAS = WB + 3*WSTAGE
    ACC = lambda b: 16*b
    mf, bc, at, nW = sched(p, nb)
    idx_of = {(b, c): i for i, (b, c, _) in enumerate(bc)}
    WF = 128 - 16*nW; XF = 128; VA = XF + 4*NB
    assert WF >= 16*nb
    vX = [VA+i for i in range(4)]; vW = VA+4; vD = VA+5; vO = VA+6; vT = VA+7
    assert vT < 168, vT
    FL = BIAS + 512
    vm = []
    a("v_and_b32 v1, 63, v0")
    pstamp(a, p, 2)
    dma_voff(a, 1, 32, vD, 2, 3)
    btable(a, nb)
    a("s_mov_b32 s57, 1280"); a("s_mov_b32 s58, 0")
    pro = [i for i in range(len(bc)) if at[i] == -1]
    ktable(a, 40, 0, max(bc[i][1] for i in pro) + 1, 128, 35)
    a("s_waitcnt lgkmcnt(0)")
    pstamp(a, p, 5)
    srd(a, 16, 4, 10485760)
    if p.prebar: a("s_barrier")
    for i in pro:
        for x in dma_i(p, nb, bc, i, vD): a(x)
        vm.append(bc[i][2])
    pstamp(a, p, 6)
    a("v_and_b32 v2, 31, v1"); a("v_lshrrev_b32 v3, 5, v1"); a("v_lshrrev_b32 v4, 1, v2"); a("v_and_b32 v4, 7, v4")
    a("v_xor_b32 v4, v4, v3"); a("v_lshlrev_b32 v4, 4, v4"); a(f"v_lshl_add_u32 v{vX[0]}, v2, 7, v4")
    for s in range(1, 4): a(f"v_xor_b32 v{vX[s]}, {s*32}, v{vX[0]}")
    a("v_lshlrev_b32 v4, 9, v3"); a("v_bfe_u32 v5, v1, 4, 1"); a("v_lshl_add_u32 v4, v5, 5, v4")
    a("v_bfe_u32 v5, v1, 2, 2"); a("v_lshl_add_u32 v4, v5, 6, v4"); a("v_and_b32 v5, 3, v1"); a("v_lshl_add_u32 v4, v5, 3, v4")
    a(f"s_mul_i32 s56, s32, {CBS}"); a(f"s_add_u32 s56, s56, {WB}"); a(f"v_add_u32 v{vW}, s56, v4")
    a("v_bfe_u32 v5, v1, 1, 2"); a("v_xor_b32 v5, v5, v3"); a("v_lshlrev_b32 v5, 4, v5"); a("v_lshl_add_u32 v5, v2, 6, v5")
    a(f"v_add_u32 v{vO}, s56, v5")
    a("s_lshl_b32 s56, s32, 7"); a(f"s_add_u32 s56, s56, {BIAS}"); a("v_lshlrev_b32 v4, 4, v3"); a(f"v_add_u32 v{vT}, s56, v4")
    if p.cprio: a(f"s_setprio {p.cprio}")
    lastW = {}
    for k, (b, c, s, u) in enumerate(mf): lastW[(c, s)] = k
    lg = []
    def wait_lds(tags):
        idx = max([k for k, t_ in enumerate(lg) if t_ in tags], default=-1)
        if idx >= 0:
            a(f"s_waitcnt lgkmcnt({len(lg)-1-idx})"); del lg[:idx+1]
    def lds(txt, tagi):
        if len(lg) >= 15: wait_lds([lg[0]])
        a(txt); lg.append(tagi)
    xbase = [0]*4
    def xread(j):
        b, c, s, u = mf[j]
        off = (idx_of[(b, c)] % p.NS)*4096
        hi = off & ~0xffff
        if xbase[s] != hi:
            a(f"v_xor_b32 v{vX[s]}, 0x10000, v{vX[s]}"); xbase[s] = hi
        r = XF + 4*(j % NB)
        if not p.noxread: lds(f"ds_read_b128 v[{r}:{r+3}], v{vX[s]} offset:{off & 0xffff}", ("x", j))
    def wread(c, s):
        for q in range(2):
            r = WF + 16*(c % nW) + 4*s + 2*q
            lds(f"ds_read_b64_tr_b16 v[{r}:{r+1}], v{vW} offset:{(c%3)*WSTAGE + s*1024 + q*256}", ("w", c, s))
    cur = [-1]
    def boundary(t):
        need = [k for k, c in enumerate(vm) if c <= t]
        if need and not p.noload and not p.nox:
            a(f"s_waitcnt vmcnt({len(vm)-1-max(need)})"); del vm[:max(need)+1]
        wait_lds([x for x in lg if x[0] == "w" and x[1] == t-1])
        st3(a, p, 1+t)
        a("s_barrier")
        bstamps(a, p, t)
        cur[0] = t
    fillq = []
    grp = groups(p, nb); done = set(); gi = [0]
    def epilogue_items(b):
        A = ACC(b); off = ((b//2 + 1) % 3)*WSTAGE + (b % 2)*2048
        it = [f"v_cvt_pk_bf16_f32 v{A+k}, v{A+2*k}, v{A+2*k+1}" for k in range(8)]
        it = it[:4] + it[4:6] + [f"v_permlane32_swap_b32 v{A}, v{A+2}", f"v_permlane32_swap_b32 v{A+1}, v{A+3}", it[6],
               ("lds", f"ds_write_b128 v{vO}, v[{A}:{A+3}] offset:{off}", ("o", b)), it[7], f"v_xor_b32 v{A+8}, 32, v{vO}", "s_nop 0",
               f"v_permlane32_swap_b32 v{A+4}, v{A+6}", f"v_permlane32_swap_b32 v{A+5}, v{A+7}",
               ("lds", f"ds_write_b128 v{A+8}, v[{A+4}:{A+7}] offset:{off}", ("o", b))]
        if p.flags: it.append(("lds", f"ds_write_b8 v{vD}, v{vT} offset:{4*b}", ("f", b)))
        else: it.append(("done", b))
        return it
    pend = []
    def tailbar():
        g = grp[gi[0]]
        wait_lds([("o", b) for b in g]); a("s_barrier"); gi[0] += 1
    def emit_fill(n, force=False):
        k = 0
        if pend and not force:
            pend[0] -= 1
            if pend[0] <= 0: pend.pop(0); tailbar()
        while fillq and k < n:
            it = fillq[0]
            if isinstance(it, tuple) and it[0] == "gate":
                have = sum(8 if "v_mfma" in x else 1 for x in a.l[it[1]:])
                if have < p.gate:
                    if not force: return
                    if have < 12: a(f"s_nop {12-have-1}")
                fillq.pop(0); continue
            fillq.pop(0)
            if isinstance(it, str): a(it); k += 1
            elif it[0] == "lds":
                lds(it[1], it[2]); k += 1
                if it[2][0] == "f": st3(a, p, 1 + it[2][1], True)
            elif it[0] == "done":
                done.add(it[1])
                g = gi[0] + len(pend)
                if g < len(grp) and all(b in done for b in grp[g]):
                    if force:
                        while pend: pend.pop(0); tailbar()
                        tailbar()
                    else: pend.append(2)
    boundary(0)
    wread(0, 0)
    for q in range(4):
        r = ACC(nb-1) + 4*q
        lds(f"ds_read_b128 v[{r}:{r+3}], v{vT} offset:{q*32}", ("b",))
    nxt = [0]; wq = [(0, 1), (0, 2), (0, 3)]
    def advance(upto):
        while nxt[0] < min(upto, len(mf)):
            c = mf[nxt[0]][3]
            if cur[0] < c:
                boundary(c); wq.extend((c, s) for s in range(4))
            xread(nxt[0]); nxt[0] += 1
            if wq and lastW.get((wq[0][0] - nW, wq[0][1]), -1) < upto - NB: wread(*wq.pop(0))
    advance(NB)
    for j, (b, c, s, u) in enumerate(mf):
        if p.flags and j == 8: a(f"s_add_u32 s56, s32, {FL}"); a(f"v_mov_b32 v{vD}, s56"); a(f"v_mov_b32 v{vT}, 1")
        while (c, s) in wq:
            assert lastW.get((wq[0][0] - nW, wq[0][1]), -1) < j
            wread(*wq.pop(0))
        wait_lds([("x", j), ("w", c, s), ("b",)])
        A = ACC(b); wr = WF + 16*(c % nW) + 4*s; xr = XF + 4*(j % NB)
        C = ACC(nb-1) if (c == 0 and s == 0) else A
        if not p.nomfma: a(f"v_mfma_f32_32x32x16_bf16 v[{A}:{A+15}], v[{wr}:{wr+3}], v[{xr}:{xr+3}], v[{C}:{C+15}]")
        if c == 9 and s == 3:
            fillq.append(("gate", len(a.l))); fillq.extend(epilogue_items(b))
        advance(j + 1 + NB)
        emit_fill(p.fill)
    if p.stamps == 1: stamp(a, p, 5)
    emit_fill(100000, True)
    while pend: pend.pop(0); tailbar()
    assert p.flags or gi[0] == len(grp)
    stamp_out(a, p)
    a("s_endpgm")
    return a.text()

def consumer2(p, nb):
    a = Asm(); NB = p.NB; XL = xl(p, nb)
    WB = p.NS*4096; BIAS = WB + 3*WSTAGE; FL = BIAS + 512
    RB = nb//2
    WF = 96; XF = 128; VA = XF + 4*NB
    vX = [VA+i for i in range(4)]; vY = [VA+4+i for i in range(4)]
    vW = [VA+8, VA+9]; vO = [VA+10, VA+11]; vD = VA+12; vT = [VA+13, VA+14]; vF = VA+15
    assert vF < 168, vF
    vm = []
    a("v_and_b32 v1, 63, v0")
    pstamp(a, p, 2)
    dma_voff(a, 1, 32, vD, 2, 3)
    btable(a, nb)
    a("s_mov_b32 s57, 1280"); a("s_mov_b32 s58, 0")
    ktable(a, 40, 0, XL, 128, 35)
    a("s_waitcnt lgkmcnt(0)")
    pstamp(a, p, 5)
    srd(a, 16, 4, 10485760)
    if p.prebar: a("s_barrier")
    for c in range(XL):
        for b in range(nb):
            for x in dma_txt(p, nb, b, c, vD): a(x)
            vm.append(c)
    pstamp(a, p, 6)
    a("s_lshr_b32 s20, s32, 1"); a("s_and_b32 s21, s32, 1")
    a("s_lshl_b32 s22, s21, 1"); a("s_add_u32 s22, s22, s20"); a("s_xor_b32 s23, s22, 1")
    a("v_and_b32 v2, 31, v1"); a("v_lshrrev_b32 v3, 5, v1"); a("v_lshrrev_b32 v4, 1, v2"); a("v_and_b32 v4, 7, v4")
    a("v_xor_b32 v4, v4, v3"); a("v_lshlrev_b32 v4, 4, v4"); a(f"v_lshl_add_u32 v{vY[0]}, v2, 7, v4")
    for s in range(1, 4): a(f"v_xor_b32 v{vY[s]}, {s*32}, v{vY[0]}")
    a(f"s_mul_i32 s56, s20, {RB*4096}")
    for s in range(4): a(f"v_add_u32 v{vX[s]}, s56, v{vY[s]}")
    a("v_lshlrev_b32 v4, 9, v3"); a("v_bfe_u32 v5, v1, 4, 1"); a("v_lshl_add_u32 v4, v5, 5, v4")
    a("v_bfe_u32 v5, v1, 2, 2"); a("v_lshl_add_u32 v4, v5, 6, v4"); a("v_and_b32 v5, 3, v1"); a("v_lshl_add_u32 v4, v5, 3, v4")
    a("v_bfe_u32 v5, v1, 1, 2"); a("v_xor_b32 v5, v5, v3"); a("v_lshlrev_b32 v5, 4, v5"); a("v_lshl_add_u32 v5, v2, 6, v5")
    a("v_lshlrev_b32 v6, 4, v3")
    for q in range(2):
        a(f"s_mul_i32 s24, s{22+q}, {CBS}"); a(f"s_add_u32 s25, s24, {WB}"); a(f"v_add_u32 v{vW[q]}, s25, v4")
        a(f"v_add_u32 v{vO[q]}, s24, v5")
        a(f"s_lshl_b32 s56, s{22+q}, 7"); a(f"s_add_u32 s56, s56, {BIAS}"); a(f"v_add_u32 v{vT[q]}, s56, v6")
    a(f"s_mul_i32 s26, s20, {WSTAGE}"); a(f"s_add_u32 s26, s26, {WB + WSTAGE}")
    a(f"s_lshl_b32 s27, s20, 11")
    if nb == 6: a(f"s_add_u32 s27, s27, {12*4096}")
    else: a("s_mov_b32 s27, 0")
    a(f"s_mul_i32 s28, s20, {4*RB}"); a("s_add_u32 s28, s28, s21"); a(f"s_add_u32 s28, s28, {FL}"); a(f"s_add_u32 s29, s32, {FL+16}")
    if p.cprio: a(f"s_setprio {p.cprio}")
    NX = 3
    tiles = lambda j: [(2*j, 0), (2*j+1, 1)] if (nb == 6 or j < 2) else [(4, 0)]
    hold = [4, 5 if nb == 6 else 3]
    fr = []; mf = []
    for c in range(10):
        order = [(j, s) for s in range(4) for j in range(NX)] if c < 9 else [(j, s) for j in range(NX) for s in range(4)]
        for j, s in order:
            fr.append((j, c, s))
            for i, q in tiles(j): mf.append((i, q, c, s, len(fr)-1))
    lastW = {}; lastF = {}; lastA = {}
    for k, (i, q, c, s, f) in enumerate(mf): lastW[(c, s, q)] = k; lastF[f] = k; lastA[i] = k
    lg = []
    def wait_lds(tags):
        idx = max([k for k, t_ in enumerate(lg) if t_ in tags], default=-1)
        if idx >= 0:
            a(f"s_waitcnt lgkmcnt({len(lg)-1-idx})"); del lg[:idx+1]
    def lds(txt, tagi):
        if len(lg) >= 15: wait_lds([lg[0]])
        a(txt); lg.append(tagi)
    xbase = {}
    def xread(f):
        j, c, s = fr[f]
        shared = nb == 5 and j == 2
        v = vY[s] if shared else vX[s]
        off = slot(p, nb, 4 if shared else j, c)
        hi = off & ~0xffff
        if xbase.get(v, 0) != hi:
            a(f"v_xor_b32 v{v}, 0x10000, v{v}"); xbase[v] = hi
        r = XF + 4*(f % NB)
        if not p.noxread: lds(f"ds_read_b128 v[{r}:{r+3}], v{v} offset:{off & 0xffff}", ("x", f))
    def wread(c, s, q):
        for u in range(2):
            r = WF + 16*q + 4*s + 2*u
            lds(f"ds_read_b64_tr_b16 v[{r}:{r+1}], v{vW[q]} offset:{(c%3)*WSTAGE + s*1024 + u*256}", ("w", c, s, q))
    cur = [-1]
    def boundary(t):
        need = [k for k, c in enumerate(vm) if c <= t]
        if need and not p.noload and not p.nox:
            a(f"s_waitcnt vmcnt({len(vm)-1-max(need)})"); del vm[:max(need)+1]
        st3(a, p, 1+t)
        a("s_barrier")
        bstamps(a, p, t)
        cur[0] = t
    fillq = []
    def epilogue_items(i, q):
        A = 16*i; j = i//2
        base = "s27" if j == 2 else "s26"; off = 0 if j == 2 else j*2048
        it = [f"v_cvt_pk_bf16_f32 v{A+k}, v{A+2*k}, v{A+2*k+1}" for k in range(8)]
        it += [f"v_add_u32 v{A+9}, {base}, v{vO[q]}", f"v_xor_b32 v{A+8}, 32, v{A+9}",
               f"v_permlane32_swap_b32 v{A}, v{A+2}", f"v_permlane32_swap_b32 v{A+1}, v{A+3}",
               ("lds", f"ds_write_b128 v{A+9}, v[{A}:{A+3}] offset:{off}", ("o", i)),
               f"v_permlane32_swap_b32 v{A+4}, v{A+6}", f"v_permlane32_swap_b32 v{A+5}, v{A+7}", ("stop",),
               ("lds", f"ds_write_b128 v{A+8}, v[{A+4}:{A+7}] offset:{off}", ("o", i)), ("stop",)]
        if nb == 5 and j == 2: it += [f"v_mov_b32 v{vF}, s29", ("lds", f"ds_write_b8 v{vF}, v{vD}", ("f", j))]
        elif q == 1: it.append(("lds", f"ds_write_b8 v{vF}, v{vD} offset:{4*j}", ("f", j)))
        return it
    def emit_fill(n, force=False):
        k = 0
        while fillq and k < n:
            it = fillq[0]
            if isinstance(it, tuple) and it[0] == "gate":
                have = len(a.l) - it[1]
                if have < 12:
                    if not force: return
                    a(f"s_nop {12-have-1}")
                fillq.pop(0); continue
            fillq.pop(0)
            if isinstance(it, str): a(it); k += 1
            elif it[0] == "stop":
                if not force and p.estop: return
            elif it[0] == "lds":
                lds(it[1], it[2]); k += 1
                if it[2][0] == "f": st3(a, p, 1 + it[2][1], True)
    boundary(0)
    wread(0, 0, 0); wread(0, 0, 1)
    nxt = [0]; wq = [(0, s, q) for s in range(1, 4) for q in range(2)]
    xread(0); nxt[0] = 1
    for q in range(2):
        for u in range(4):
            r = 16*hold[q] + 4*u
            lds(f"ds_read_b128 v[{r}:{r+3}], v{vT[q]} offset:{u*32}", ("b", q))
    def advance(k):
        while nxt[0] < len(fr) and (nxt[0] < NB or lastF[nxt[0]-NB] < k):
            c = fr[nxt[0]][1]
            if cur[0] < c:
                boundary(c); wq.extend((c, s, q) for s in range(4) for q in range(2))
            xread(nxt[0]); nxt[0] += 1
        n = 0
        while wq and n < p.wrate and lastW.get((wq[0][0]-1, wq[0][1], wq[0][2]), -1) < k:
            wread(*wq.pop(0)); n += 1
    advance(0)
    for k, (i, q, c, s, f) in enumerate(mf):
        if k == 12: a(f"v_mov_b32 v{vF}, s28"); a(f"v_mov_b32 v{vD}, 1")
        while (c, s, q) in wq: wread(*wq.pop(0))
        wait_lds([("x", f), ("w", c, s, q), ("b", q)])
        A = 16*i; wr = WF + 16*q + 4*s; xr = XF + 4*(f % NB)
        C = 16*hold[q] if (c == 0 and s == 0) else A
        if not p.nomfma: a(f"v_mfma_f32_32x32x16_bf16 v[{A}:{A+15}], v[{wr}:{wr+3}], v[{xr}:{xr+3}], v[{C}:{C+15}]")
        if k == lastA[i]:
            fillq.append(("gate", len(a.l))); fillq.extend(epilogue_items(i, q))
        advance(k + 1)
        emit_fill(p.fill)
    if p.stamps == 1: stamp(a, p, 5)
    emit_fill(100000, True)
    stamp_out(a, p)
    a("s_endpgm")
    return a.text()

def prune_all(S, T):
    o = []
    for j0 in (0, 2):
        js = (j0, j0+1)
        A = lambda j, r: T + (j-j0)*8 + r
        U = lambda j, k: T + (j-j0)*8 + 4 + k
        for r in range(4):
            for j in js: o.append(f"v_and_b32 v{A(j,r)}, s38, v{S+4*r+j}")
        for j in js: o.append(f"v_pk_max_u16 v{U(j,0)}, v{A(j,0)}, v{A(j,1)}")
        for j in js: o.append(f"v_pk_min_u16 v{U(j,1)}, v{A(j,0)}, v{A(j,1)}")
        for j in js: o.append(f"v_pk_max_u16 v{U(j,2)}, v{A(j,2)}, v{A(j,3)}")
        for j in js: o.append(f"v_pk_min_u16 v{U(j,3)}, v{A(j,2)}, v{A(j,3)}")
        for j in js: o.append(f"v_pk_min_u16 v{U(j,0)}, v{U(j,0)}, v{U(j,2)}")
        for j in js: o.append(f"v_pk_max_u16 v{U(j,1)}, v{U(j,1)}, v{U(j,3)}")
        for j in js: o.append(f"v_pk_max_u16 v{U(j,0)}, v{U(j,0)}, v{U(j,1)}")
        for r in range(4):
            for j in js: o.append(f"v_pk_sub_i16 v{A(j,r)}, v{A(j,r)}, v{U(j,0)}")
        for r in range(4):
            for j in js: o.append(f"v_pk_ashrrev_i16 v{A(j,r)}, 15, v{A(j,r)} op_sel_hi:[0,1]")
        for r in range(4):
            for j in js: o.append(f"v_bfi_b32 v{S+4*r+j}, v{A(j,r)}, 0, v{S+4*r+j}")
    return o

def producer(p, nb, X):
    a = Asm(); XL = xl(p, nb)
    WB = p.NS*4096; BIAS = WB + 3*WSTAGE
    vG = 1; vS = 2; vR = 3; vO = 4; vD = 7; T = 8; ST = 32; DR = 64
    WK = 80
    prio = p.aprio if X == 0 else p.bprio
    if X == 0 and p.proprio: a(f"s_setprio {p.proprio}")
    elif prio: a(f"s_setprio {prio}")
    a(f"s_sub_u32 s39, s32, {4+4*X}"); a("v_and_b32 v6, 63, v0")
    pstamp(a, p, 2)
    a("v_lshrrev_b32 v24, 4, v6"); a("s_lshl_b32 s56, s39, 2"); a("v_add_u32 v24, s56, v24")
    a("v_and_b32 v25, 15, v6"); a("v_mul_u32_u24 v9, 5120, v24"); a(f"v_lshl_add_u32 v{vG}, v25, 4, v9")
    a("s_lshl_b32 s59, s33, 8")
    if X: a("s_add_u32 s58, s59, 81920")
    else: a("s_mov_b32 s58, s59")
    a("s_mul_i32 s56, s35, 640"); a(f"s_add_u32 s{WK}, s56, s58")
    if X == 0: a("v_lshlrev_b32 v10, 2, v6")
    a("s_waitcnt lgkmcnt(0)")
    pstamp(a, p, 5)
    srd(a, 20, 6, 819200)
    vm = []
    SR = lambda c: ST + 16*((c//2) % 2)
    def wload1(c, r):
        vm.append(("w", c))
        if p.noload or p.now: return []
        return [f"buffer_load_dwordx4 v[{SR(c)+4*r}:{SR(c)+4*r+3}], v{vG}, s[20:23], s{WK+c//2} offen offset:{r*1280} {p.wflags}"]
    XR = lambda b, c: 96 + 24*((c//2) % 2) + 4*b
    def xdma(b, c):
        vm.append(("x", c))
        if p.xv: return [f"s_add_u32 s56, s{50+b}, s{40+c}", f"buffer_load_dwordx4 v[{XR(b,c)}:{XR(b,c)+3}], v{vD}, s[16:19], s56 offen {p.xflags}"]
        return dma_txt(p, nb, b, c, vD)
    def xwr(c):
        if not p.xv or c >= 10 or c < XL: return []
        def one(b):
            if b == 0: wait_vm(lambda t_: t_ == ("x", c))
            off = slot(p, nb, b, c)
            return [f"ds_write_b128 v{30 + (off >> 16)}, v[{XR(b,c)}:{XR(b,c)+3}] offset:{off & 0xffff}"]
        return [(lambda b=b: one(b)) for b in range(nb)]
    def emit(l):
        for y in l: a(y)
    if X == 0:
        for r in range(4): emit(wload1(0, r))
        srd(a, 28, 8, 1280)
        a("buffer_load_dword v27, v10, s[28:31], s59 offen"); vm.append("bias")
        if p.prebar: a("s_barrier")
    else:
        if p.prebar: a("s_barrier")
        for r in range(4): emit(wload1(1, r))
    a("s_add_u32 s57, s58, 819200")
    ktable(a, WK, 1, 5, 163840, WK)
    pstamp(a, p, 6)
    a("s_mov_b32 s38, 0x7fff7fff")
    srd(a, 16, 4, 10485760)
    dma_voff(a, 6, 39, vD, 12, 13)
    btable(a, nb)
    a("s_mov_b32 s57, 1280"); a("s_mov_b32 s58, 0")
    ktable(a, 40, 0, 10, 128, 35)
    for b in range(nb): a(f"s_add_u32 s{90+b}, s{50+b}, s59")
    srd(a, 24, 10, 10485760)
    a("v_lshrrev_b32 v9, 2, v25"); a(f"v_mul_u32_u24 v9, {CBS}, v9"); a("v_lshl_add_u32 v14, v24, 8, v9"); a("v_and_b32 v12, 3, v25")
    a("v_lshl_add_u32 v14, v12, 4, v14"); a(f"v_add_u32 v{vS}, {WB}, v14")
    a("v_lshrrev_b32 v13, 4, v6"); a("s_lshl_b32 s56, s39, 3")
    if X: a("s_add_u32 s56, s56, 4")
    a("v_add_u32 v13, s56, v13")
    a("v_lshrrev_b32 v14, 1, v13"); a("v_xor_b32 v14, v14, v12"); a("v_and_b32 v14, 3, v14"); a("v_lshlrev_b32 v14, 4, v14")
    a("v_lshl_add_u32 v14, v13, 6, v14"); a("v_add_u32 v14, v14, v9"); a(f"v_add_u32 v{vR}, {WB}, v14")
    a("v_mul_u32_u24 v13, 1280, v13"); a(f"v_lshl_add_u32 v{vO}, v25, 4, v13")
    if X == 0: a("v_lshlrev_b32 v26, 3, v6"); a(f"v_add_u32 v26, {BIAS}, v26")
    if p.flags:
        a(f"v_mov_b32 v5, {BIAS + 512}"); a("s_mov_b32 s3, 0x01010101")
        if X == 1: a("v_lshl_add_u32 v28, v6, 2, v5"); a("v_mov_b32 v29, 0"); a("ds_write_b32 v28, v29")
    if p.xv: a("v_lshlrev_b32 v30, 4, v6"); a("v_add_u32 v30, s37, v30"); a("v_add_u32 v31, 0x10000, v30")
    def wait_vm(pred):
        idx = max([k for k, t_ in enumerate(vm) if pred(t_)], default=-1)
        if idx >= 0:
            n = len(vm)-1-idx
            if p.noload: n = 0
            if p.now: n = sum(1 for t_ in vm[idx+1:] if t_[0] != "w")
            if p.nox: n = sum(1 for t_ in vm[idx+1:] if t_[0] != "x")
            a(f"s_waitcnt vmcnt({n})"); del vm[:idx+1]
    def pr(c): return [] if p.noprune else prune_all(SR(c), T)
    def writes(c, only=None):
        if p.nowrite: return
        for r in (range(4) if only is None else [only]): a(f"ds_write_b128 v{vS}, v[{SR(c)+4*r}:{SR(c)+4*r+3}] offset:{(c%3)*WSTAGE + r*64}")
    def stream(valu, mem):
        n = len(mem); k = 0
        for i, x in enumerate(valu):
            while k < n and i * n >= k * len(valu):
                emit(mem[k]()); k += 1
            a(x)
        while k < n:
            emit(mem[k]()); k += 1
    wl = lambda c: [(lambda r=r: wload1(c, r)) for r in range(4)] if c < 10 else []
    xs = lambda c: [(lambda b=b: xdma(b, c)) for b in range(nb)] if c < 10 else []
    if not p.two and not p.xv:
        mf_, bc, at, nW = sched(p, nb)
        def xdi(i):
            vm.append(("x", bc[i][2])); return dma_i(p, nb, bc, i, vD)
        xs = lambda c: [(lambda i=i: xdi(i)) for i in range(len(bc)) if at[i] == c - XL]
    rest = []
    if X == 0:
        wait_vm(lambda t_: t_ == ("w", 0))
        pstamp(a, p, 7)
        stream(pr(0), wl(2))
        writes(0)
        wait_vm(lambda t_: t_ == "bias")
        a("v_lshlrev_b32 v28, 16, v27"); a("v_and_b32 v29, 0xffff0000, v27"); a("ds_write_b64 v26, v[28:29]")
        if p.proprio != prio: a(f"s_setprio {prio}")
    else:
        if p.b0:
            wait_vm(lambda t_: t_ == ("w", 1))
            pstamp(a, p, 7)
            v = pr(1); stream(v[:p.split], wl(3)); rest = v[p.split:]
        else:
            stream([], wl(3)); rest = pr(1)
    late = [0]
    for t in range(10):
        if not p.xv: wait_vm(lambda t_: t_[0] == "x" and t_[1] <= t)
        a(f"s_waitcnt lgkmcnt({late[0]})"); late[0] = 0
        st3(a, p, 1+t)
        a("s_barrier")
        bstamps(a, p, t)
        if t % 2 == X:
            c = t + 2
            xw = xwr(t - 1 + XL) if p.xv == 1 else []
            if p.xv == 3:
                xw = xwr(t - 3 + XL); m = []
                w4 = wl(c+2) if c < 10 else []
                while xw or w4:
                    if xw: m.append(xw.pop(0))
                    if w4: m.append(w4.pop(0))
                if c < 10:
                    wait_vm(lambda t_: t_ == ("w", c))
                    v = pr(c); stream(v[:p.split], m); rest = v[p.split:]
                else: stream([], m)
            elif c < 10:
                wait_vm(lambda t_: t_ == ("w", c))
                v = pr(c); v1 = v[:p.split]; rest = v[p.split:]
                k = len(v1)*p.xwpos//100
                w4 = wl(c+2); kw = (len(w4)*p.xwpos + 99)//100
                stream(v1[:k], w4[:kw]); stream(v1[k:], xw + w4[kw:])
            else: stream([], xw)
            if xw and XL >= 3: late[0] = len(xw)
        else:
            c = t + 1
            if c < 10:
                wait_vm(lambda t_: t_ == ("w", c))
                if p.dprio: a(f"s_setprio {p.dprio}")
                x = xs(t+XL)
                if p.xv == 2: stream([], xwr(t - 2 + XL))
                stream(rest, x[:p.xb])
                x = x[p.xb:]
                if p.walt:
                    for r in range(4):
                        writes(c, r)
                        if x: emit(x.pop(0)())
                else: writes(c)
                if p.dprio: a(f"s_setprio {prio}")
                stream([], x)
    if p.flags:
        order = list(range(nb))
        if p.two:
            order = [0, 2, 1, 3, 4] if nb == 5 else [0, 3, 1, 4, 2, 5]
            a("s_movk_i32 s3, 0x0101"); a(f"v_subrev_u32 v29, {WB}, v{vR}")
        for b in order:
            off = stage_off(p, nb, b); r0 = DR + 4*b
            lab = f"L_poll{nb}_{X}_{b}"
            if p.two and nb == 5 and b == 4: a("s_mov_b32 s3, 0x01010101")
            if p.poll:
                a(f"s_branch {lab}_in"); a.label(lab + "_s"); a(f"s_sleep {p.poll % 10}"); a.label(lab + "_in")
                a(f"ds_read_b32 v28, v5 offset:{4*b}"); a("s_waitcnt lgkmcnt(0)"); a("v_cmp_ne_u32 vcc, s3, v28"); a(f"s_cbranch_vccnz {lab}_s")
                a(f"ds_read_b128 v[{r0}:{r0+3}], v{vR} offset:{off-WB}" if off >= WB else f"ds_read_b128 v[{r0}:{r0+3}], v29 offset:{off}")
                a("s_waitcnt lgkmcnt(0)")
                a(f"buffer_store_dwordx4 v[{r0}:{r0+3}], v{vO}, s[24:27], s{90+b} offen {p.oflags}")
                st3(a, p, 1 + b, True)
                continue
            a.label(lab)
            a(f"ds_read_b32 v28, v5 offset:{4*b}")
            a(f"ds_read_b128 v[{r0}:{r0+3}], v{vR} offset:{off-WB}" if off >= WB else f"ds_read_b128 v[{r0}:{r0+3}], v29 offset:{off}")
            a("s_waitcnt lgkmcnt(0)")
            a("v_cmp_ne_u32 vcc, s3, v28")
            a(f"s_cbranch_vccnz {lab}")
            a(f"buffer_store_dwordx4 v[{r0}:{r0+3}], v{vO}, s[24:27], s{90+b} offen {p.oflags}")
            st3(a, p, 1 + b, True)
    for g in ([] if p.flags else groups(p, nb)):
        a("s_barrier")
        for b in g:
            off = ((b//2 + 1) % 3)*WSTAGE + (b % 2)*2048; r0 = DR + 4*b
            a(f"ds_read_b128 v[{r0}:{r0+3}], v{vR} offset:{off}")
        for k, b in enumerate(g):
            r0 = DR + 4*b
            a(f"s_waitcnt lgkmcnt({len(g)-1-k})")
            a(f"buffer_store_dwordx4 v[{r0}:{r0+3}], v{vO}, s[24:27], s{90+b} offen {p.oflags}")
    if p.stamps == 1: stamp(a, p, 5)
    stamp_out(a, p)
    a("s_endpgm")
    return a.text()

def gen(p):
    lds = p.NS*4096 + 3*WSTAGE + 512 + 256
    assert lds <= 163840
    a = Asm()
    stamp(a, p, 0)
    a("s_load_dwordx4 s[4:7], s[0:1], 0"); a("s_load_dwordx4 s[8:11], s[0:1], 16")
    if p.stamps:
        a("s_load_dwordx4 s[12:15], s[0:1], 32")
        if p.stamps != 3:
            for i in (1,2,4,5,6,7): a(f"s_mov_b32 s{60+2*i}, 0")
    a("v_lshrrev_b32 v1, 6, v0")
    a("s_and_b32 s56, s2, 7"); a("s_lshr_b32 s57, s2, 3"); a("s_lshl_b32 s56, s56, 5"); a("s_add_u32 s56, s56, s57")
    a("v_readfirstlane_b32 s32, v1")
    a("s_cmp_ge_u32 s2, 255"); a("s_cbranch_scc1 L_exit")
    a("s_mul_i32 s57, s56, 205"); a("s_lshr_b32 s57, s57, 10")
    a("s_mul_i32 s58, s57, 5"); a("s_sub_u32 s33, s56, s58")
    if p.rot & 1:
        a("s_add_u32 s58, s33, s57"); a("s_mul_i32 s59, s58, 205"); a("s_lshr_b32 s59, s59, 10"); a("s_mul_i32 s59, s59, 5")
        a("s_sub_u32 s35, s58, s59"); a("s_lshl_b32 s35, s35, 8")
    elif p.rot & 4:
        a("s_mul_i32 s59, s57, 205"); a("s_lshr_b32 s59, s59, 10"); a("s_mul_i32 s59, s59, 5")
        a("s_sub_u32 s35, s57, s59"); a("s_lshl_b32 s35, s35, 8")
    else: a("s_mov_b32 s35, 0")
    if p.rot & 3: a("s_mov_b32 s36, s33")
    else: a("s_mov_b32 s36, 0")
    if p.early:
        a("s_sub_u32 s58, s57, 1"); a("s_cmp_eq_u32 s57, 0"); a("s_cselect_b32 s57, 50, s58")
    a("s_mul_i32 s34, s57, 204800")
    a("s_cmp_eq_u32 s57, 50"); a("s_cbranch_scc1 L_six")
    a("s_cmp_lt_u32 s32, 4"); a("s_cbranch_scc1 L_c5")
    a("s_cmp_ge_u32 s32, 8"); a("s_cbranch_scc1 L_b5")
    body = a.text() + producer(p, 5, 0) + "L_exit:\n  s_endpgm\nL_b5:\n" + producer(p, 5, 1) + "L_c5:\n" + (consumer2 if p.two else consumer)(p, 5)
    body += "L_six:\n  s_cmp_lt_u32 s32, 4\n  s_cbranch_scc1 L_c6\n  s_cmp_ge_u32 s32, 8\n  s_cbranch_scc1 L_b6\n"
    body += producer(p, 6, 0) + "L_b6:\n" + producer(p, 6, 1) + "L_c6:\n" + (consumer2 if p.two else consumer)(p, 6)
    hdr = open("standalone__structured_sparse_n_m__ragged.s.ref").read().split("; Override")[0]
    return hdr + f"""; Generated by my own generator script: tiles of 160(192) rows x 128 columns, 4 MFMA waves + 8 load/prune waves.
; @launch grid=(256,1,1) block=(768,1,1) lds={lds}
.amdgcn_target "amdgcn-amd-amdhsa--gfx950"
.text
.globl {KN}
.p2align 8
.type {KN},@function
{KN}:
{body}.section .rodata,"a"
.p2align 6
.amdhsa_kernel {KN}
  .amdhsa_next_free_vgpr 168
  .amdhsa_next_free_sgpr 100
  .amdhsa_accum_offset 168
  .amdhsa_group_segment_fixed_size 0
  .amdhsa_kernarg_size 48
  .amdhsa_user_sgpr_count 2
  .amdhsa_user_sgpr_kernarg_segment_ptr 1
  .amdhsa_system_sgpr_workgroup_id_x 1
.end_amdhsa_kernel
""", lds

if __name__ == "__main__":
    out = sys.argv[1]
    p = P()
    for kv in sys.argv[2:]:
        k, v = kv.split("=", 1)
        old = getattr(P, k)
        setattr(p, k, v.replace("+", " ") if isinstance(old, str) else int(v))
    s, lds = gen(p)
    open(out, "w").write(s)
    from mk import build
    build(out)
    print(out, "lds", lds, "lines", s.count("\n"))
```

```python
import sys
KN = "standalone__structured_sparse_n_m__ragged_kernel"

class P:
    NB = 5; NS = 27
    xflags = "nt"; wflags = ""; oflags = "sc1"
    rot = 1; stamps = 0; fill = 3; early = 1
    xlead = 3; xlead6 = 2
    cprio = 0; aprio = 0; bprio = 0; proprio = 1
    prebar = 1; b0 = 1; split = 46
    tail = "01,2,3,4"; tail6 = "01,23,4,5"
    diag = ""
    nomfma = 0; noprune = 0; noxread = 0; noload = 0
    map = 0; poll = 0; lags = ""; lags6 = ""; xp = 13; xp6 = 12; gate = 16; wrate = 1; estop = 1; two = 0; walt = 0; tst = 0; flags = 1; xv = 0; xwpos = 100; xreg = 0; now = 0; nox = 0; xb = 2; dprio = 0; nowrite = 0

WSTAGE = 16640
CBS = 4160

class Asm:
    def __init__(s): s.l = []
    def __call__(s, x): s.l.append("  " + x)
    def label(s, x): s.l.append(x + ":")
    def text(s): return "\n".join(s.l) + "\n"

S3 = [96] + [60+2*i for i in range(10)] + [98, 86, 88]
def st3(a, p, i, tail=False):
    if p.stamps == 3 and (tail == bool(p.tst) or i in (0, 10, 11, 12)): a(f"s_memtime s[{S3[i]}:{S3[i]+1}]")
def stamp(a, p, i):
    if p.stamps == 3:
        if i == 0: st3(a, p, 0); a("s_memrealtime s[88:89]")
        return
    if p.stamps: a(f"s_memrealtime s[{60+2*i}:{61+2*i}]")
def pstamp(a, p, i):
    if p.stamps == 2: stamp(a, p, i)
def bstamps(a, p, t):
    if not p.stamps or p.stamps == 3: return
    if p.stamps == 2:
        if t == 0: stamp(a, p, 1)
        return
    if t == 0: stamp(a, p, 1); a("s_memtime s[72:73]")
    if t == 5: stamp(a, p, 2)
    if t == 9: stamp(a, p, 4); a("s_memtime s[74:75]")
def stamp_out(a, p):
    if not p.stamps: return
    if p.stamps == 3:
        st3(a, p, 11)
        a("s_waitcnt vmcnt(0) lgkmcnt(0)"); st3(a, p, 12); a("s_waitcnt lgkmcnt(0)")
        a("s_mov_b32 s16, s14"); a("s_and_b32 s17, s15, 0xffff"); a("s_mov_b32 s18, 0x100000"); a("s_mov_b32 s19, 0x20000")
        a("s_lshl_b32 s56, s2, 4"); a("s_add_u32 s56, s56, s32"); a("s_lshl_b32 s56, s56, 6")
        for i in range(14): a(f"v_mov_b32 v{4+i}, s{S3[i]}")
        a("v_mov_b32 v3, s56"); a("v_mbcnt_lo_u32_b32 v2, -1, 0"); a("v_mbcnt_hi_u32_b32 v2, -1, v2"); a("s_nop 1"); a("v_cmp_eq_u32 vcc, 0, v2"); a("s_and_saveexec_b64 s[58:59], vcc")
        for i in range(4): a(f"buffer_store_dwordx4 v[{4+4*i}:{7+4*i}], v3, s[16:19], 0 offen offset:{16*i}")
        return
    a("s_waitcnt vmcnt(0) lgkmcnt(0)")
    a("s_memrealtime s[66:67]")
    a("s_waitcnt lgkmcnt(0)")
    if p.diag:
        i, j, K = map(int, p.diag.split(","))
        lab = f"L_spin{len(a.l)}_{id(a)%100000}"
        a(f"s_sub_u32 s56, s{60+2*j}, s{60+2*i}"); a(f"s_mul_i32 s56, s56, {K}") if K >= 0 else a(f"s_lshr_b32 s56, s56, {-K}"); a("s_min_u32 s56, s56, 20000")
        a.label(lab)
        a("s_memrealtime s[58:59]"); a("s_waitcnt lgkmcnt(0)"); a("s_sub_u32 s57, s58, s66"); a("s_cmp_lt_u32 s57, s56"); a(f"s_cbranch_scc1 {lab}")
        return
    a("s_mov_b32 s84, s14"); a("s_and_b32 s85, s15, 0xffff"); a("s_mov_b32 s86, 0x100000"); a("s_mov_b32 s87, 0x20000")
    a("s_lshl_b32 s56, s2, 4"); a("s_add_u32 s56, s56, s32"); a("s_lshl_b32 s56, s56, 5")
    for i in range(8): a(f"v_mov_b32 v{4+i}, s{60+2*i}")
    a("v_mov_b32 v3, s56"); a("v_mbcnt_lo_u32_b32 v2, -1, 0"); a("v_mbcnt_hi_u32_b32 v2, -1, v2"); a("s_nop 1"); a("v_cmp_eq_u32 vcc, 0, v2"); a("s_and_saveexec_b64 s[58:59], vcc")
    a("buffer_store_dwordx4 v[4:7], v3, s[84:87], 0 offen"); a("buffer_store_dwordx4 v[8:11], v3, s[84:87], 0 offen offset:16")

def srd(a, d, ptr, n):
    a(f"s_mov_b32 s{d}, s{ptr}"); a(f"s_and_b32 s{d+1}, s{ptr+1}, 0xffff"); a(f"s_mov_b32 s{d+2}, {n}"); a(f"s_mov_b32 s{d+3}, 0x20000")

def ktable(a, dst, c0, c1, unit, first):
    for c in range(c0, c1):
        if c == 0: a(f"s_mov_b32 s{dst}, s{first}")
        else:
            a(f"s_add_u32 s{dst+c}, s{dst+c-1}, {unit}"); a(f"s_cmp_eq_u32 s{dst+c}, s57"); a(f"s_cselect_b32 s{dst+c}, s58, s{dst+c}")
def btable(a, nb):
    a("s_mul_i32 s50, s36, 40960"); a("s_add_u32 s50, s50, s34"); a(f"s_add_u32 s57, s34, {nb*40960}")
    for b in range(1, nb):
        a(f"s_add_u32 s{50+b}, s{49+b}, 40960"); a(f"s_cmp_eq_u32 s{50+b}, s57"); a(f"s_cselect_b32 s{50+b}, s34, s{50+b}")

def dma_voff(a, lane, wave_s, dst, t1, t2):
    a(f"v_lshrrev_b32 v{t1}, 3, v{lane}"); a(f"s_lshl_b32 s56, s{wave_s}, 3"); a(f"v_add_u32 v{t1}, s56, v{t1}")
    a(f"v_lshrrev_b32 v{t2}, 1, v{t1}"); a(f"v_xor_b32 v{t2}, v{t2}, v{lane}"); a(f"v_and_b32 v{t2}, 7, v{t2}")
    a(f"v_mul_u32_u24 v{t1}, 1280, v{t1}"); a(f"v_lshl_add_u32 v{dst}, v{t2}, 4, v{t1}")
    a(f"s_lshl_b32 s37, s{wave_s}, 10")

def slot(p, nb, b, c):
    if p.two: return ((c % (p.NS//nb))*nb + b)*4096
    return ((c*nb + b) % p.NS)*4096
def stage_off(p, nb, b):
    WB = p.NS*4096
    if not p.two: return WB + ((b//2 + 1) % 3)*WSTAGE + (b % 2)*2048
    A2 = 0 if nb == 5 else 12*4096
    if nb == 5: return A2 if b == 4 else WB + (1 + b//2)*WSTAGE + (b % 2)*2048
    r, j = divmod(b, 3)
    return A2 + r*2048 if j == 2 else WB + (1 + r)*WSTAGE + j*2048
def sched(p, nb):
    lg = [int(ch) for ch in (p.lags if nb == 5 else p.lags6)] or [0]*nb
    bc = []
    for t in range(9):
        for b in sorted(range(nb), key=lambda b: (-lg[b], b)):
            if t - lg[b] >= 0: bc.append((b, t - lg[b], t))
    for b in sorted(range(nb), key=lambda b: (lg[b], b)):
        for c in range(9 - lg[b], 10): bc.append((b, c, 9))
    mf = [(b, c, s, t) for b, c, t in bc for s in range(4)]
    if max(lg) == 0: P = xl(p, nb)*nb
    else: P = p.xp if nb == 5 else p.xp6
    at = [-1 if i < P else (i - P)//nb for i in range(len(bc))]
    for i, (b, c, t) in enumerate(bc):
        assert at[i] <= max(-1, t - 2), (i, at[i], t)
        if i >= p.NS: assert at[i] >= bc[i - p.NS][2] + 2, (i, at[i], bc[i - p.NS])
    return mf, bc, at, max(2, max(lg) + 1)
def dma_i(p, nb, bc, i, vD):
    b, c, t = bc[i]
    if p.noload: return []
    return [f"s_add_u32 m0, s37, {(i % p.NS)*4096}", f"s_add_u32 s56, s{50+b}, s{40+c}",
            f"buffer_load_dwordx4 v{vD}, s[16:19], s56 offen {p.xflags} lds"]
def dma_txt(p, nb, b, c, vD):
    if p.noload: return []
    if p.nox: return [f"buffer_load_dword v100, v{vD}, s[16:19], 0 offen offset:4095"] if c < 0 else ["s_nop 0"]
    if p.xreg: return [f"s_add_u32 s56, s{50+b}, s{40+c}", f"buffer_load_dwordx4 v[{100+4*b}:{103+4*b}], v{vD}, s[16:19], s56 offen {p.xflags}"]
    return [f"s_add_u32 m0, s37, {slot(p, nb, b, c)}", f"s_add_u32 s56, s{50+b}, s{40+c}",
            f"buffer_load_dwordx4 v{vD}, s[16:19], s56 offen {p.xflags} lds"]
def xl(p, nb):
    v = p.xlead if nb == 5 else p.xlead6
    assert (not p.two or v + 2 <= p.NS//nb) and (v + 2 - p.xv)*nb <= p.NS and v*nb <= p.NS and (p.xv < 2 or v >= p.xv + 1), (v, nb)
    return v
def groups(p, nb): return [[int(ch) for ch in g] for g in (p.tail if nb == 5 else p.tail6).split(",")]

def consumer(p, nb):
    a = Asm(); NB = p.NB; XL = xl(p, nb)
    WB = p.NS*4096; BIAS = WB + 3*WSTAGE
    ACC = lambda b: 16*b
    mf, bc, at, nW = sched(p, nb)
    idx_of = {(b, c): i for i, (b, c, _) in enumerate(bc)}
    WF = 128 - 16*nW; XF = 128; VA = XF + 4*NB
    assert WF >= 16*nb
    vX = [VA+i for i in range(4)]; vW = VA+4; vD = VA+5; vO = VA+6; vT = VA+7
    assert vT < 168, vT
    FL = BIAS + 512
    vm = []
    a("v_and_b32 v1, 63, v0")
    pstamp(a, p, 2)
    dma_voff(a, 1, 32, vD, 2, 3)
    btable(a, nb)
    a("s_mov_b32 s57, 1280"); a("s_mov_b32 s58, 0")
    pro = [i for i in range(len(bc)) if at[i] == -1]
    ktable(a, 40, 0, max(bc[i][1] for i in pro) + 1, 128, 35)
    a("s_waitcnt lgkmcnt(0)")
    pstamp(a, p, 5)
    srd(a, 16, 4, 10485760)
    if p.prebar: a("s_barrier")
    for i in pro:
        for x in dma_i(p, nb, bc, i, vD): a(x)
        vm.append(bc[i][2])
    pstamp(a, p, 6)
    a("v_and_b32 v2, 31, v1"); a("v_lshrrev_b32 v3, 5, v1"); a("v_lshrrev_b32 v4, 1, v2"); a("v_and_b32 v4, 7, v4")
    a("v_xor_b32 v4, v4, v3"); a("v_lshlrev_b32 v4, 4, v4"); a(f"v_lshl_add_u32 v{vX[0]}, v2, 7, v4")
    for s in range(1, 4): a(f"v_xor_b32 v{vX[s]}, {s*32}, v{vX[0]}")
    a("v_lshlrev_b32 v4, 9, v3"); a("v_bfe_u32 v5, v1, 4, 1"); a("v_lshl_add_u32 v4, v5, 5, v4")
    a("v_bfe_u32 v5, v1, 2, 2"); a("v_lshl_add_u32 v4, v5, 6, v4"); a("v_and_b32 v5, 3, v1"); a("v_lshl_add_u32 v4, v5, 3, v4")
    a(f"s_mul_i32 s56, s32, {CBS}"); a(f"s_add_u32 s56, s56, {WB}"); a(f"v_add_u32 v{vW}, s56, v4")
    a("v_bfe_u32 v5, v1, 1, 2"); a("v_xor_b32 v5, v5, v3"); a("v_lshlrev_b32 v5, 4, v5"); a("v_lshl_add_u32 v5, v2, 6, v5")
    a(f"v_add_u32 v{vO}, s56, v5")
    a("s_lshl_b32 s56, s32, 7"); a(f"s_add_u32 s56, s56, {BIAS}"); a("v_lshlrev_b32 v4, 4, v3"); a(f"v_add_u32 v{vT}, s56, v4")
    if p.cprio: a(f"s_setprio {p.cprio}")
    lastW = {}
    for k, (b, c, s, u) in enumerate(mf): lastW[(c, s)] = k
    lg = []
    def wait_lds(tags):
        idx = max([k for k, t_ in enumerate(lg) if t_ in tags], default=-1)
        if idx >= 0:
            a(f"s_waitcnt lgkmcnt({len(lg)-1-idx})"); del lg[:idx+1]
    def lds(txt, tagi):
        if len(lg) >= 15: wait_lds([lg[0]])
        a(txt); lg.append(tagi)
    xbase = [0]*4
    def xread(j):
        b, c, s, u = mf[j]
        off = (idx_of[(b, c)] % p.NS)*4096
        hi = off & ~0xffff
        if xbase[s] != hi:
            a(f"v_xor_b32 v{vX[s]}, 0x10000, v{vX[s]}"); xbase[s] = hi
        r = XF + 4*(j % NB)
        if not p.noxread: lds(f"ds_read_b128 v[{r}:{r+3}], v{vX[s]} offset:{off & 0xffff}", ("x", j))
    def wread(c, s):
        for q in range(2):
            r = WF + 16*(c % nW) + 4*s + 2*q
            lds(f"ds_read_b64_tr_b16 v[{r}:{r+1}], v{vW} offset:{(c%3)*WSTAGE + s*1024 + q*256}", ("w", c, s))
    cur = [-1]
    def boundary(t):
        need = [k for k, c in enumerate(vm) if c <= t]
        if need and not p.noload and not p.nox:
            a(f"s_waitcnt vmcnt({len(vm)-1-max(need)})"); del vm[:max(need)+1]
        wait_lds([x for x in lg if x[0] == "w" and x[1] == t-1])
        st3(a, p, 1+t)
        a("s_barrier")
        bstamps(a, p, t)
        cur[0] = t
    fillq = []
    grp = groups(p, nb); done = set(); gi = [0]
    def epilogue_items(b):
        A = ACC(b); off = ((b//2 + 1) % 3)*WSTAGE + (b % 2)*2048
        it = [f"v_cvt_pk_bf16_f32 v{A+k}, v{A+2*k}, v{A+2*k+1}" for k in range(8)]
        it = it[:4] + it[4:6] + [f"v_permlane32_swap_b32 v{A}, v{A+2}", f"v_permlane32_swap_b32 v{A+1}, v{A+3}", it[6],
               ("lds", f"ds_write_b128 v{vO}, v[{A}:{A+3}] offset:{off}", ("o", b)), it[7], f"v_xor_b32 v{A+8}, 32, v{vO}", "s_nop 0",
               f"v_permlane32_swap_b32 v{A+4}, v{A+6}", f"v_permlane32_swap_b32 v{A+5}, v{A+7}",
               ("lds", f"ds_write_b128 v{A+8}, v[{A+4}:{A+7}] offset:{off}", ("o", b))]
        if p.flags: it.append(("lds", f"ds_write_b8 v{vD}, v{vT} offset:{4*b}", ("f", b)))
        else: it.append(("done", b))
        return it
    pend = []
    def tailbar():
        g = grp[gi[0]]
        wait_lds([("o", b) for b in g]); a("s_barrier"); gi[0] += 1
    def emit_fill(n, force=False):
        k = 0
        if pend and not force:
            pend[0] -= 1
            if pend[0] <= 0: pend.pop(0); tailbar()
        while fillq and k < n:
            it = fillq[0]
            if isinstance(it, tuple) and it[0] == "gate":
                have = sum(8 if "v_mfma" in x else 1 for x in a.l[it[1]:])
                if have < p.gate:
                    if not force: return
                    if have < 12: a(f"s_nop {12-have-1}")
                fillq.pop(0); continue
            fillq.pop(0)
            if isinstance(it, str): a(it); k += 1
            elif it[0] == "lds":
                lds(it[1], it[2]); k += 1
                if it[2][0] == "f": st3(a, p, 1 + it[2][1], True)
            elif it[0] == "done":
                done.add(it[1])
                g = gi[0] + len(pend)
                if g < len(grp) and all(b in done for b in grp[g]):
                    if force:
                        while pend: pend.pop(0); tailbar()
                        tailbar()
                    else: pend.append(2)
    boundary(0)
    wread(0, 0)
    for q in range(4):
        r = ACC(nb-1) + 4*q
        lds(f"ds_read_b128 v[{r}:{r+3}], v{vT} offset:{q*32}", ("b",))
    nxt = [0]; wq = [(0, 1), (0, 2), (0, 3)]
    def advance(upto):
        while nxt[0] < min(upto, len(mf)):
            c = mf[nxt[0]][3]
            if cur[0] < c:
                boundary(c); wq.extend((c, s) for s in range(4))
            xread(nxt[0]); nxt[0] += 1
            if wq and lastW.get((wq[0][0] - nW, wq[0][1]), -1) < upto - NB: wread(*wq.pop(0))
    advance(NB)
    for j, (b, c, s, u) in enumerate(mf):
        if p.flags and j == 8: a(f"s_add_u32 s56, s32, {FL}"); a(f"v_mov_b32 v{vD}, s56"); a(f"v_mov_b32 v{vT}, 1")
        while (c, s) in wq:
            assert lastW.get((wq[0][0] - nW, wq[0][1]), -1) < j
            wread(*wq.pop(0))
        wait_lds([("x", j), ("w", c, s), ("b",)])
        A = ACC(b); wr = WF + 16*(c % nW) + 4*s; xr = XF + 4*(j % NB)
        C = ACC(nb-1) if (c == 0 and s == 0) else A
        if not p.nomfma: a(f"v_mfma_f32_32x32x16_bf16 v[{A}:{A+15}], v[{wr}:{wr+3}], v[{xr}:{xr+3}], v[{C}:{C+15}]")
        if c == 9 and s == 3:
            fillq.append(("gate", len(a.l))); fillq.extend(epilogue_items(b))
        advance(j + 1 + NB)
        emit_fill(p.fill)
    if p.stamps == 1: stamp(a, p, 5)
    emit_fill(100000, True)
    while pend: pend.pop(0); tailbar()
    assert p.flags or gi[0] == len(grp)
    stamp_out(a, p)
    a("s_endpgm")
    return a.text()

def consumer2(p, nb):
    a = Asm(); NB = p.NB; XL = xl(p, nb)
    WB = p.NS*4096; BIAS = WB + 3*WSTAGE; FL = BIAS + 512
    RB = nb//2
    WF = 96; XF = 128; VA = XF + 4*NB
    vX = [VA+i for i in range(4)]; vY = [VA+4+i for i in range(4)]
    vW = [VA+8, VA+9]; vO = [VA+10, VA+11]; vD = VA+12; vT = [VA+13, VA+14]; vF = VA+15
    assert vF < 168, vF
    vm = []
    a("v_and_b32 v1, 63, v0")
    pstamp(a, p, 2)
    dma_voff(a, 1, 32, vD, 2, 3)
    btable(a, nb)
    a("s_mov_b32 s57, 1280"); a("s_mov_b32 s58, 0")
    ktable(a, 40, 0, XL, 128, 35)
    a("s_waitcnt lgkmcnt(0)")
    pstamp(a, p, 5)
    srd(a, 16, 4, 10485760)
    if p.prebar: a("s_barrier")
    for c in range(XL):
        for b in range(nb):
            for x in dma_txt(p, nb, b, c, vD): a(x)
            vm.append(c)
    pstamp(a, p, 6)
    a("s_lshr_b32 s20, s32, 1"); a("s_and_b32 s21, s32, 1")
    a("s_lshl_b32 s22, s21, 1"); a("s_add_u32 s22, s22, s20"); a("s_xor_b32 s23, s22, 1")
    a("v_and_b32 v2, 31, v1"); a("v_lshrrev_b32 v3, 5, v1"); a("v_lshrrev_b32 v4, 1, v2"); a("v_and_b32 v4, 7, v4")
    a("v_xor_b32 v4, v4, v3"); a("v_lshlrev_b32 v4, 4, v4"); a(f"v_lshl_add_u32 v{vY[0]}, v2, 7, v4")
    for s in range(1, 4): a(f"v_xor_b32 v{vY[s]}, {s*32}, v{vY[0]}")
    a(f"s_mul_i32 s56, s20, {RB*4096}")
    for s in range(4): a(f"v_add_u32 v{vX[s]}, s56, v{vY[s]}")
    a("v_lshlrev_b32 v4, 9, v3"); a("v_bfe_u32 v5, v1, 4, 1"); a("v_lshl_add_u32 v4, v5, 5, v4")
    a("v_bfe_u32 v5, v1, 2, 2"); a("v_lshl_add_u32 v4, v5, 6, v4"); a("v_and_b32 v5, 3, v1"); a("v_lshl_add_u32 v4, v5, 3, v4")
    a("v_bfe_u32 v5, v1, 1, 2"); a("v_xor_b32 v5, v5, v3"); a("v_lshlrev_b32 v5, 4, v5"); a("v_lshl_add_u32 v5, v2, 6, v5")
    a("v_lshlrev_b32 v6, 4, v3")
    for q in range(2):
        a(f"s_mul_i32 s24, s{22+q}, {CBS}"); a(f"s_add_u32 s25, s24, {WB}"); a(f"v_add_u32 v{vW[q]}, s25, v4")
        a(f"v_add_u32 v{vO[q]}, s24, v5")
        a(f"s_lshl_b32 s56, s{22+q}, 7"); a(f"s_add_u32 s56, s56, {BIAS}"); a(f"v_add_u32 v{vT[q]}, s56, v6")
    a(f"s_mul_i32 s26, s20, {WSTAGE}"); a(f"s_add_u32 s26, s26, {WB + WSTAGE}")
    a(f"s_lshl_b32 s27, s20, 11")
    if nb == 6: a(f"s_add_u32 s27, s27, {12*4096}")
    else: a("s_mov_b32 s27, 0")
    a(f"s_mul_i32 s28, s20, {4*RB}"); a("s_add_u32 s28, s28, s21"); a(f"s_add_u32 s28, s28, {FL}"); a(f"s_add_u32 s29, s32, {FL+16}")
    if p.cprio: a(f"s_setprio {p.cprio}")
    NX = 3
    tiles = lambda j: [(2*j, 0), (2*j+1, 1)] if (nb == 6 or j < 2) else [(4, 0)]
    hold = [4, 5 if nb == 6 else 3]
    fr = []; mf = []
    for c in range(10):
        order = [(j, s) for s in range(4) for j in range(NX)] if c < 9 else [(j, s) for j in range(NX) for s in range(4)]
        for j, s in order:
            fr.append((j, c, s))
            for i, q in tiles(j): mf.append((i, q, c, s, len(fr)-1))
    lastW = {}; lastF = {}; lastA = {}
    for k, (i, q, c, s, f) in enumerate(mf): lastW[(c, s, q)] = k; lastF[f] = k; lastA[i] = k
    lg = []
    def wait_lds(tags):
        idx = max([k for k, t_ in enumerate(lg) if t_ in tags], default=-1)
        if idx >= 0:
            a(f"s_waitcnt lgkmcnt({len(lg)-1-idx})"); del lg[:idx+1]
    def lds(txt, tagi):
        if len(lg) >= 15: wait_lds([lg[0]])
        a(txt); lg.append(tagi)
    xbase = {}
    def xread(f):
        j, c, s = fr[f]
        shared = nb == 5 and j == 2
        v = vY[s] if shared else vX[s]
        off = slot(p, nb, 4 if shared else j, c)
        hi = off & ~0xffff
        if xbase.get(v, 0) != hi:
            a(f"v_xor_b32 v{v}, 0x10000, v{v}"); xbase[v] = hi
        r = XF + 4*(f % NB)
        if not p.noxread: lds(f"ds_read_b128 v[{r}:{r+3}], v{v} offset:{off & 0xffff}", ("x", f))
    def wread(c, s, q):
        for u in range(2):
            r = WF + 16*q + 4*s + 2*u
            lds(f"ds_read_b64_tr_b16 v[{r}:{r+1}], v{vW[q]} offset:{(c%3)*WSTAGE + s*1024 + u*256}", ("w", c, s, q))
    cur = [-1]
    def boundary(t):
        need = [k for k, c in enumerate(vm) if c <= t]
        if need and not p.noload and not p.nox:
            a(f"s_waitcnt vmcnt({len(vm)-1-max(need)})"); del vm[:max(need)+1]
        st3(a, p, 1+t)
        a("s_barrier")
        bstamps(a, p, t)
        cur[0] = t
    fillq = []
    def epilogue_items(i, q):
        A = 16*i; j = i//2
        base = "s27" if j == 2 else "s26"; off = 0 if j == 2 else j*2048
        it = [f"v_cvt_pk_bf16_f32 v{A+k}, v{A+2*k}, v{A+2*k+1}" for k in range(8)]
        it += [f"v_add_u32 v{A+9}, {base}, v{vO[q]}", f"v_xor_b32 v{A+8}, 32, v{A+9}",
               f"v_permlane32_swap_b32 v{A}, v{A+2}", f"v_permlane32_swap_b32 v{A+1}, v{A+3}",
               ("lds", f"ds_write_b128 v{A+9}, v[{A}:{A+3}] offset:{off}", ("o", i)),
               f"v_permlane32_swap_b32 v{A+4}, v{A+6}", f"v_permlane32_swap_b32 v{A+5}, v{A+7}", ("stop",),
               ("lds", f"ds_write_b128 v{A+8}, v[{A+4}:{A+7}] offset:{off}", ("o", i)), ("stop",)]
        if nb == 5 and j == 2: it += [f"v_mov_b32 v{vF}, s29", ("lds", f"ds_write_b8 v{vF}, v{vD}", ("f", j))]
        elif q == 1: it.append(("lds", f"ds_write_b8 v{vF}, v{vD} offset:{4*j}", ("f", j)))
        return it
    def emit_fill(n, force=False):
        k = 0
        while fillq and k < n:
            it = fillq[0]
            if isinstance(it, tuple) and it[0] == "gate":
                have = len(a.l) - it[1]
                if have < 12:
                    if not force: return
                    a(f"s_nop {12-have-1}")
                fillq.pop(0); continue
            fillq.pop(0)
            if isinstance(it, str): a(it); k += 1
            elif it[0] == "stop":
                if not force and p.estop: return
            elif it[0] == "lds":
                lds(it[1], it[2]); k += 1
                if it[2][0] == "f": st3(a, p, 1 + it[2][1], True)
    boundary(0)
    wread(0, 0, 0); wread(0, 0, 1)
    nxt = [0]; wq = [(0, s, q) for s in range(1, 4) for q in range(2)]
    xread(0); nxt[0] = 1
    for q in range(2):
        for u in range(4):
            r = 16*hold[q] + 4*u
            lds(f"ds_read_b128 v[{r}:{r+3}], v{vT[q]} offset:{u*32}", ("b", q))
    def advance(k):
        while nxt[0] < len(fr) and (nxt[0] < NB or lastF[nxt[0]-NB] < k):
            c = fr[nxt[0]][1]
            if cur[0] < c:
                boundary(c); wq.extend((c, s, q) for s in range(4) for q in range(2))
            xread(nxt[0]); nxt[0] += 1
        n = 0
        while wq and n < p.wrate and lastW.get((wq[0][0]-1, wq[0][1], wq[0][2]), -1) < k:
            wread(*wq.pop(0)); n += 1
    advance(0)
    for k, (i, q, c, s, f) in enumerate(mf):
        if k == 12: a(f"v_mov_b32 v{vF}, s28"); a(f"v_mov_b32 v{vD}, 1")
        while (c, s, q) in wq: wread(*wq.pop(0))
        wait_lds([("x", f), ("w", c, s, q), ("b", q)])
        A = 16*i; wr = WF + 16*q + 4*s; xr = XF + 4*(f % NB)
        C = 16*hold[q] if (c == 0 and s == 0) else A
        if not p.nomfma: a(f"v_mfma_f32_32x32x16_bf16 v[{A}:{A+15}], v[{wr}:{wr+3}], v[{xr}:{xr+3}], v[{C}:{C+15}]")
        if k == lastA[i]:
            fillq.append(("gate", len(a.l))); fillq.extend(epilogue_items(i, q))
        advance(k + 1)
        emit_fill(p.fill)
    if p.stamps == 1: stamp(a, p, 5)
    emit_fill(100000, True)
    stamp_out(a, p)
    a("s_endpgm")
    return a.text()

def prune_all(S, T):
    o = []
    for j0 in (0, 2):
        js = (j0, j0+1)
        A = lambda j, r: T + (j-j0)*8 + r
        U = lambda j, k: T + (j-j0)*8 + 4 + k
        for r in range(4):
            for j in js: o.append(f"v_and_b32 v{A(j,r)}, s38, v{S+4*r+j}")
        for j in js: o.append(f"v_pk_max_u16 v{U(j,0)}, v{A(j,0)}, v{A(j,1)}")
        for j in js: o.append(f"v_pk_min_u16 v{U(j,1)}, v{A(j,0)}, v{A(j,1)}")
        for j in js: o.append(f"v_pk_max_u16 v{U(j,2)}, v{A(j,2)}, v{A(j,3)}")
        for j in js: o.append(f"v_pk_min_u16 v{U(j,3)}, v{A(j,2)}, v{A(j,3)}")
        for j in js: o.append(f"v_pk_min_u16 v{U(j,0)}, v{U(j,0)}, v{U(j,2)}")
        for j in js: o.append(f"v_pk_max_u16 v{U(j,1)}, v{U(j,1)}, v{U(j,3)}")
        for j in js: o.append(f"v_pk_max_u16 v{U(j,0)}, v{U(j,0)}, v{U(j,1)}")
        for r in range(4):
            for j in js: o.append(f"v_pk_sub_i16 v{A(j,r)}, v{A(j,r)}, v{U(j,0)}")
        for r in range(4):
            for j in js: o.append(f"v_pk_ashrrev_i16 v{A(j,r)}, 15, v{A(j,r)} op_sel_hi:[0,1]")
        for r in range(4):
            for j in js: o.append(f"v_bfi_b32 v{S+4*r+j}, v{A(j,r)}, 0, v{S+4*r+j}")
    return o

def producer(p, nb, X):
    a = Asm(); XL = xl(p, nb)
    WB = p.NS*4096; BIAS = WB + 3*WSTAGE
    vG = 1; vS = 2; vR = 3; vO = 4; vD = 7; T = 8; ST = 32; DR = 64
    WK = 80
    prio = p.aprio if X == 0 else p.bprio
    if X == 0 and p.proprio: a(f"s_setprio {p.proprio}")
    elif prio: a(f"s_setprio {prio}")
    a(f"s_sub_u32 s39, s32, {4+4*X}"); a("v_and_b32 v6, 63, v0")
    pstamp(a, p, 2)
    a("v_lshrrev_b32 v24, 4, v6"); a("s_lshl_b32 s56, s39, 2"); a("v_add_u32 v24, s56, v24")
    a("v_and_b32 v25, 15, v6"); a("v_mul_u32_u24 v9, 5120, v24"); a(f"v_lshl_add_u32 v{vG}, v25, 4, v9")
    a("s_lshl_b32 s59, s33, 8")
    if X: a("s_add_u32 s58, s59, 81920")
    else: a("s_mov_b32 s58, s59")
    a("s_mul_i32 s56, s35, 640"); a(f"s_add_u32 s{WK}, s56, s58")
    if X == 0: a("v_lshlrev_b32 v10, 2, v6")
    a("s_waitcnt lgkmcnt(0)")
    pstamp(a, p, 5)
    srd(a, 20, 6, 819200)
    vm = []
    SR = lambda c: ST + 16*((c//2) % 2)
    def wload1(c, r):
        vm.append(("w", c))
        if p.noload or p.now: return []
        return [f"buffer_load_dwordx4 v[{SR(c)+4*r}:{SR(c)+4*r+3}], v{vG}, s[20:23], s{WK+c//2} offen offset:{r*1280} {p.wflags}"]
    XR = lambda b, c: 96 + 24*((c//2) % 2) + 4*b
    def xdma(b, c):
        vm.append(("x", c))
        if p.xv: return [f"s_add_u32 s56, s{50+b}, s{40+c}", f"buffer_load_dwordx4 v[{XR(b,c)}:{XR(b,c)+3}], v{vD}, s[16:19], s56 offen {p.xflags}"]
        return dma_txt(p, nb, b, c, vD)
    def xwr(c):
        if not p.xv or c >= 10 or c < XL: return []
        def one(b):
            if b == 0: wait_vm(lambda t_: t_ == ("x", c))
            off = slot(p, nb, b, c)
            return [f"ds_write_b128 v{30 + (off >> 16)}, v[{XR(b,c)}:{XR(b,c)+3}] offset:{off & 0xffff}"]
        return [(lambda b=b: one(b)) for b in range(nb)]
    def emit(l):
        for y in l: a(y)
    if X == 0:
        for r in range(4): emit(wload1(0, r))
        srd(a, 28, 8, 1280)
        a("buffer_load_dword v27, v10, s[28:31], s59 offen"); vm.append("bias")
        if p.prebar: a("s_barrier")
    else:
        if p.prebar: a("s_barrier")
        for r in range(4): emit(wload1(1, r))
    a("s_add_u32 s57, s58, 819200")
    ktable(a, WK, 1, 5, 163840, WK)
    pstamp(a, p, 6)
    a("s_mov_b32 s38, 0x7fff7fff")
    srd(a, 16, 4, 10485760)
    dma_voff(a, 6, 39, vD, 12, 13)
    btable(a, nb)
    a("s_mov_b32 s57, 1280"); a("s_mov_b32 s58, 0")
    ktable(a, 40, 0, 10, 128, 35)
    for b in range(nb): a(f"s_add_u32 s{90+b}, s{50+b}, s59")
    srd(a, 24, 10, 10485760)
    a("v_lshrrev_b32 v9, 2, v25"); a(f"v_mul_u32_u24 v9, {CBS}, v9"); a("v_lshl_add_u32 v14, v24, 8, v9"); a("v_and_b32 v12, 3, v25")
    a("v_lshl_add_u32 v14, v12, 4, v14"); a(f"v_add_u32 v{vS}, {WB}, v14")
    a("v_lshrrev_b32 v13, 4, v6"); a("s_lshl_b32 s56, s39, 3")
    if X: a("s_add_u32 s56, s56, 4")
    a("v_add_u32 v13, s56, v13")
    a("v_lshrrev_b32 v14, 1, v13"); a("v_xor_b32 v14, v14, v12"); a("v_and_b32 v14, 3, v14"); a("v_lshlrev_b32 v14, 4, v14")
    a("v_lshl_add_u32 v14, v13, 6, v14"); a("v_add_u32 v14, v14, v9"); a(f"v_add_u32 v{vR}, {WB}, v14")
    a("v_mul_u32_u24 v13, 1280, v13"); a(f"v_lshl_add_u32 v{vO}, v25, 4, v13")
    if X == 0: a("v_lshlrev_b32 v26, 3, v6"); a(f"v_add_u32 v26, {BIAS}, v26")
    if p.flags:
        a(f"v_mov_b32 v5, {BIAS + 512}"); a("s_mov_b32 s3, 0x01010101")
        if X == 1: a("v_lshl_add_u32 v28, v6, 2, v5"); a("v_mov_b32 v29, 0"); a("ds_write_b32 v28, v29")
    if p.xv: a("v_lshlrev_b32 v30, 4, v6"); a("v_add_u32 v30, s37, v30"); a("v_add_u32 v31, 0x10000, v30")
    def wait_vm(pred):
        idx = max([k for k, t_ in enumerate(vm) if pred(t_)], default=-1)
        if idx >= 0:
            n = len(vm)-1-idx
            if p.noload: n = 0
            if p.now: n = sum(1 for t_ in vm[idx+1:] if t_[0] != "w")
            if p.nox: n = sum(1 for t_ in vm[idx+1:] if t_[0] != "x")
            a(f"s_waitcnt vmcnt({n})"); del vm[:idx+1]
    def pr(c): return [] if p.noprune else prune_all(SR(c), T)
    def writes(c, only=None):
        if p.nowrite: return
        for r in (range(4) if only is None else [only]): a(f"ds_write_b128 v{vS}, v[{SR(c)+4*r}:{SR(c)+4*r+3}] offset:{(c%3)*WSTAGE + r*64}")
    def stream(valu, mem):
        n = len(mem); k = 0
        for i, x in enumerate(valu):
            while k < n and i * n >= k * len(valu):
                emit(mem[k]()); k += 1
            a(x)
        while k < n:
            emit(mem[k]()); k += 1
    wl = lambda c: [(lambda r=r: wload1(c, r)) for r in range(4)] if c < 10 else []
    xs = lambda c: [(lambda b=b: xdma(b, c)) for b in range(nb)] if c < 10 else []
    if not p.two and not p.xv:
        mf_, bc, at, nW = sched(p, nb)
        def xdi(i):
            vm.append(("x", bc[i][2])); return dma_i(p, nb, bc, i, vD)
        xs = lambda c: [(lambda i=i: xdi(i)) for i in range(len(bc)) if at[i] == c - XL]
    rest = []
    if X == 0:
        wait_vm(lambda t_: t_ == ("w", 0))
        pstamp(a, p, 7)
        stream(pr(0), wl(2))
        writes(0)
        wait_vm(lambda t_: t_ == "bias")
        a("v_lshlrev_b32 v28, 16, v27"); a("v_and_b32 v29, 0xffff0000, v27"); a("ds_write_b64 v26, v[28:29]")
        if p.proprio != prio: a(f"s_setprio {prio}")
    else:
        if p.b0:
            wait_vm(lambda t_: t_ == ("w", 1))
            pstamp(a, p, 7)
            v = pr(1); stream(v[:p.split], wl(3)); rest = v[p.split:]
        else:
            stream([], wl(3)); rest = pr(1)
    late = [0]
    for t in range(10):
        if not p.xv: wait_vm(lambda t_: t_[0] == "x" and t_[1] <= t)
        a(f"s_waitcnt lgkmcnt({late[0]})"); late[0] = 0
        st3(a, p, 1+t)
        a("s_barrier")
        bstamps(a, p, t)
        if t % 2 == X:
            c = t + 2
            xw = xwr(t - 1 + XL) if p.xv == 1 else []
            if p.xv == 3:
                xw = xwr(t - 3 + XL); m = []
                w4 = wl(c+2) if c < 10 else []
                while xw or w4:
                    if xw: m.append(xw.pop(0))
                    if w4: m.append(w4.pop(0))
                if c < 10:
                    wait_vm(lambda t_: t_ == ("w", c))
                    v = pr(c); stream(v[:p.split], m); rest = v[p.split:]
                else: stream([], m)
            elif c < 10:
                wait_vm(lambda t_: t_ == ("w", c))
                v = pr(c); v1 = v[:p.split]; rest = v[p.split:]
                k = len(v1)*p.xwpos//100
                w4 = wl(c+2); kw = (len(w4)*p.xwpos + 99)//100
                stream(v1[:k], w4[:kw]); stream(v1[k:], xw + w4[kw:])
            else: stream([], xw)
            if xw and XL >= 3: late[0] = len(xw)
        else:
            c = t + 1
            if c < 10:
                wait_vm(lambda t_: t_ == ("w", c))
                if p.dprio: a(f"s_setprio {p.dprio}")
                x = xs(t+XL)
                if p.xv == 2: stream([], xwr(t - 2 + XL))
                stream(rest, x[:p.xb])
                x = x[p.xb:]
                if p.walt:
                    for r in range(4):
                        writes(c, r)
                        if x: emit(x.pop(0)())
                else: writes(c)
                if p.dprio: a(f"s_setprio {prio}")
                stream([], x)
    if p.flags:
        order = list(range(nb))
        if p.two:
            order = [0, 2, 1, 3, 4] if nb == 5 else [0, 3, 1, 4, 2, 5]
            a("s_movk_i32 s3, 0x0101"); a(f"v_subrev_u32 v29, {WB}, v{vR}")
        for b in order:
            off = stage_off(p, nb, b); r0 = DR + 4*b
            lab = f"L_poll{nb}_{X}_{b}"
            if p.two and nb == 5 and b == 4: a("s_mov_b32 s3, 0x01010101")
            if p.poll:
                a(f"s_branch {lab}_in"); a.label(lab + "_s"); a(f"s_sleep {p.poll % 10}"); a.label(lab + "_in")
                a(f"ds_read_b32 v28, v5 offset:{4*b}"); a("s_waitcnt lgkmcnt(0)"); a("v_cmp_ne_u32 vcc, s3, v28"); a(f"s_cbranch_vccnz {lab}_s")
                a(f"ds_read_b128 v[{r0}:{r0+3}], v{vR} offset:{off-WB}" if off >= WB else f"ds_read_b128 v[{r0}:{r0+3}], v29 offset:{off}")
                a("s_waitcnt lgkmcnt(0)")
                a(f"buffer_store_dwordx4 v[{r0}:{r0+3}], v{vO}, s[24:27], s{90+b} offen {p.oflags}")
                st3(a, p, 1 + b, True)
                continue
            a.label(lab)
            a(f"ds_read_b32 v28, v5 offset:{4*b}")
            a(f"ds_read_b128 v[{r0}:{r0+3}], v{vR} offset:{off-WB}" if off >= WB else f"ds_read_b128 v[{r0}:{r0+3}], v29 offset:{off}")
            a("s_waitcnt lgkmcnt(0)")
            a("v_cmp_ne_u32 vcc, s3, v28")
            a(f"s_cbranch_vccnz {lab}")
            a(f"buffer_store_dwordx4 v[{r0}:{r0+3}], v{vO}, s[24:27], s{90+b} offen {p.oflags}")
            st3(a, p, 1 + b, True)
    for g in ([] if p.flags else groups(p, nb)):
        a("s_barrier")
        for b in g:
            off = ((b//2 + 1) % 3)*WSTAGE + (b % 2)*2048; r0 = DR + 4*b
            a(f"ds_read_b128 v[{r0}:{r0+3}], v{vR} offset:{off}")
        for k, b in enumerate(g):
            r0 = DR + 4*b
            a(f"s_waitcnt lgkmcnt({len(g)-1-k})")
            a(f"buffer_store_dwordx4 v[{r0}:{r0+3}], v{vO}, s[24:27], s{90+b} offen {p.oflags}")
    if p.stamps == 1: stamp(a, p, 5)
    stamp_out(a, p)
    a("s_endpgm")
    return a.text()

def gen(p):
    lds = p.NS*4096 + 3*WSTAGE + 512 + 256
    assert lds <= 163840
    a = Asm()
    stamp(a, p, 0)
    a("s_load_dwordx4 s[4:7], s[0:1], 0"); a("s_load_dwordx4 s[8:11], s[0:1], 16")
    if p.stamps:
        a("s_load_dwordx4 s[12:15], s[0:1], 32")
        if p.stamps != 3:
            for i in (1,2,4,5,6,7): a(f"s_mov_b32 s{60+2*i}, 0")
    a("v_lshrrev_b32 v1, 6, v0")
    if p.map == 0:
        a("s_and_b32 s56, s2, 7"); a("s_lshr_b32 s57, s2, 3"); a("s_lshl_b32 s56, s56, 5"); a("s_add_u32 s56, s56, s57")
        a("v_readfirstlane_b32 s32, v1")
        a("s_cmp_ge_u32 s2, 255"); a("s_cbranch_scc1 L_exit")
        a("s_mul_i32 s57, s56, 205"); a("s_lshr_b32 s57, s57, 10")
        a("s_mul_i32 s58, s57, 5"); a("s_sub_u32 s33, s56, s58")
        if p.rot & 1:
            a("s_add_u32 s58, s33, s57"); a("s_mul_i32 s59, s58, 205"); a("s_lshr_b32 s59, s59, 10"); a("s_mul_i32 s59, s59, 5")
            a("s_sub_u32 s35, s58, s59"); a("s_lshl_b32 s35, s35, 8")
        elif p.rot & 4:
            a("s_mul_i32 s59, s57, 205"); a("s_lshr_b32 s59, s59, 10"); a("s_mul_i32 s59, s59, 5")
            a("s_sub_u32 s35, s57, s59"); a("s_lshl_b32 s35, s35, 8")
        else: a("s_mov_b32 s35, 0")
        if p.rot & 3: a("s_mov_b32 s36, s33")
        else: a("s_mov_b32 s36, 0")
        if p.early:
            a("s_sub_u32 s58, s57, 1"); a("s_cmp_eq_u32 s57, 0"); a("s_cselect_b32 s57, 50, s58")
        a("s_mul_i32 s34, s57, 204800")
        a("s_cmp_eq_u32 s57, 50"); a("s_cbranch_scc1 L_six")
    else:
        a("s_lshr_b32 s56, s2, 3"); a("s_and_b32 s58, s2, 7")
        a("s_mul_i32 s57, s56, 205"); a("s_lshr_b32 s57, s57, 10")
        a("v_readfirstlane_b32 s32, v1")
        a("s_cmp_ge_u32 s2, 240"); a("s_cbranch_scc1 L_exit")
        a("s_mul_i32 s59, s57, 5"); a("s_sub_u32 s33, s56, s59")
        if p.rot & 1:
            a("s_add_u32 s35, s33, s57"); a("s_sub_u32 s59, s35, 5"); a("s_cmp_ge_u32 s35, 5"); a("s_cselect_b32 s35, s59, s35")
            a("s_cmp_eq_u32 s35, 5"); a("s_cselect_b32 s35, 0, s35"); a("s_lshl_b32 s35, s35, 8")
        else: a("s_mov_b32 s35, 0")
        if p.rot & 3: a("s_mov_b32 s36, s33")
        else: a("s_mov_b32 s36, 0")
        a("s_mul_i32 s34, s58, 1310720"); a("s_mul_i32 s59, s57, 204800"); a("s_add_u32 s34, s34, s59")
        a("s_min_u32 s59, s57, 2"); a("s_mul_i32 s59, s59, 40960"); a("s_add_u32 s34, s34, s59")
        a("s_cmp_lt_u32 s57, 2"); a("s_cbranch_scc1 L_six")
    a("s_cmp_lt_u32 s32, 4"); a("s_cbranch_scc1 L_c5")
    a("s_cmp_ge_u32 s32, 8"); a("s_cbranch_scc1 L_b5")
    body = a.text() + producer(p, 5, 0) + "L_exit:\n  s_endpgm\nL_b5:\n" + producer(p, 5, 1) + "L_c5:\n" + (consumer2 if p.two else consumer)(p, 5)
    body += "L_six:\n  s_cmp_lt_u32 s32, 4\n  s_cbranch_scc1 L_c6\n  s_cmp_ge_u32 s32, 8\n  s_cbranch_scc1 L_b6\n"
    body += producer(p, 6, 0) + "L_b6:\n" + producer(p, 6, 1) + "L_c6:\n" + (consumer2 if p.two else consumer)(p, 6)
    hdr = open("standalone__structured_sparse_n_m__ragged.s.ref").read().split("; Override")[0]
    return hdr + f"""; Generated by my own generator script: tiles of 160(192) rows x 128 columns, 4 MFMA waves + 8 load/prune waves.
; @launch grid=({240 if p.map else 256},1,1) block=(768,1,1) lds={lds}
.amdgcn_target "amdgcn-amd-amdhsa--gfx950"
.text
.globl {KN}
.p2align 8
.type {KN},@function
{KN}:
{body}.section .rodata,"a"
.p2align 6
.amdhsa_kernel {KN}
  .amdhsa_next_free_vgpr 168
  .amdhsa_next_free_sgpr 100
  .amdhsa_accum_offset 168
  .amdhsa_group_segment_fixed_size 0
  .amdhsa_kernarg_size 48
  .amdhsa_user_sgpr_count 2
  .amdhsa_user_sgpr_kernarg_segment_ptr 1
  .amdhsa_system_sgpr_workgroup_id_x 1
.end_amdhsa_kernel
""", lds

if __name__ == "__main__":
    out = sys.argv[1]
    p = P()
    for kv in sys.argv[2:]:
        k, v = kv.split("=", 1)
        old = getattr(P, k)
        setattr(p, k, v.replace("+", " ") if isinstance(old, str) else int(v))
    s, lds = gen(p)
    open(out, "w").write(s)
    from mk import build
    build(out)
    print(out, "lds", lds, "lines", s.count("\n"))
```

```python
import sys
KN = "standalone__structured_sparse_n_m__ragged_kernel"

class P:
    NB = 5; NS = 27
    xflags = "nt"; wflags = ""; oflags = "sc1"
    rot = 1; stamps = 0; fill = 3; early = 1
    xlead = 3; xlead6 = 2
    cprio = 0; aprio = 0; bprio = 0; proprio = 1
    prebar = 1; b0 = 1; split = 46
    tail = "01,2,3,4"; tail6 = "01,23,4,5"
    diag = ""
    nomfma = 0; noprune = 0; noxread = 0; noload = 0
    half = 0; map = 0; poll = 0; lags = ""; lags6 = ""; xp = 13; xp6 = 12; gate = 16; wrate = 1; estop = 1; two = 0; walt = 0; tst = 0; flags = 1; xv = 0; xwpos = 100; xreg = 0; now = 0; nox = 0; xb = 2; dprio = 0; nowrite = 0

WSTAGE = 16640
CBS = 4160

class Asm:
    def __init__(s): s.l = []
    def __call__(s, x): s.l.append("  " + x)
    def label(s, x): s.l.append(x + ":")
    def text(s): return "\n".join(s.l) + "\n"

S3 = [96] + [60+2*i for i in range(10)] + [98, 86, 88]
def st3(a, p, i, tail=False):
    if p.stamps == 3 and (tail == bool(p.tst) or i in (0, 10, 11, 12)): a(f"s_memtime s[{S3[i]}:{S3[i]+1}]")
def stamp(a, p, i):
    if p.stamps == 3:
        if i == 0: st3(a, p, 0); a("s_memrealtime s[88:89]")
        return
    if p.stamps: a(f"s_memrealtime s[{60+2*i}:{61+2*i}]")
def pstamp(a, p, i):
    if p.stamps == 2: stamp(a, p, i)
def bstamps(a, p, t):
    if not p.stamps or p.stamps == 3: return
    if p.stamps == 2:
        if t == 0: stamp(a, p, 1)
        return
    if t == 0: stamp(a, p, 1); a("s_memtime s[72:73]")
    if t == 5: stamp(a, p, 2)
    if t == 9: stamp(a, p, 4); a("s_memtime s[74:75]")
def stamp_out(a, p):
    if not p.stamps: return
    if p.stamps == 3:
        st3(a, p, 11)
        a("s_waitcnt vmcnt(0) lgkmcnt(0)"); st3(a, p, 12); a("s_waitcnt lgkmcnt(0)")
        a("s_mov_b32 s16, s14"); a("s_and_b32 s17, s15, 0xffff"); a("s_mov_b32 s18, 0x100000"); a("s_mov_b32 s19, 0x20000")
        a("s_lshl_b32 s56, s2, 4"); a("s_add_u32 s56, s56, s32"); a("s_lshl_b32 s56, s56, 6")
        for i in range(14): a(f"v_mov_b32 v{4+i}, s{S3[i]}")
        a("v_mov_b32 v3, s56"); a("v_mbcnt_lo_u32_b32 v2, -1, 0"); a("v_mbcnt_hi_u32_b32 v2, -1, v2"); a("s_nop 1"); a("v_cmp_eq_u32 vcc, 0, v2"); a("s_and_saveexec_b64 s[58:59], vcc")
        for i in range(4): a(f"buffer_store_dwordx4 v[{4+4*i}:{7+4*i}], v3, s[16:19], 0 offen offset:{16*i}")
        return
    a("s_waitcnt vmcnt(0) lgkmcnt(0)")
    a("s_memrealtime s[66:67]")
    a("s_waitcnt lgkmcnt(0)")
    if p.diag:
        i, j, K = map(int, p.diag.split(","))
        lab = f"L_spin{len(a.l)}_{id(a)%100000}"
        a(f"s_sub_u32 s56, s{60+2*j}, s{60+2*i}"); a(f"s_mul_i32 s56, s56, {K}") if K >= 0 else a(f"s_lshr_b32 s56, s56, {-K}"); a("s_min_u32 s56, s56, 20000")
        a.label(lab)
        a("s_memrealtime s[58:59]"); a("s_waitcnt lgkmcnt(0)"); a("s_sub_u32 s57, s58, s66"); a("s_cmp_lt_u32 s57, s56"); a(f"s_cbranch_scc1 {lab}")
        return
    a("s_mov_b32 s84, s14"); a("s_and_b32 s85, s15, 0xffff"); a("s_mov_b32 s86, 0x100000"); a("s_mov_b32 s87, 0x20000")
    a("s_lshl_b32 s56, s2, 4"); a("s_add_u32 s56, s56, s32"); a("s_lshl_b32 s56, s56, 5")
    for i in range(8): a(f"v_mov_b32 v{4+i}, s{60+2*i}")
    a("v_mov_b32 v3, s56"); a("v_mbcnt_lo_u32_b32 v2, -1, 0"); a("v_mbcnt_hi_u32_b32 v2, -1, v2"); a("s_nop 1"); a("v_cmp_eq_u32 vcc, 0, v2"); a("s_and_saveexec_b64 s[58:59], vcc")
    a("buffer_store_dwordx4 v[4:7], v3, s[84:87], 0 offen"); a("buffer_store_dwordx4 v[8:11], v3, s[84:87], 0 offen offset:16")

def srd(a, d, ptr, n):
    a(f"s_mov_b32 s{d}, s{ptr}"); a(f"s_and_b32 s{d+1}, s{ptr+1}, 0xffff"); a(f"s_mov_b32 s{d+2}, {n}"); a(f"s_mov_b32 s{d+3}, 0x20000")

def ktable(a, dst, c0, c1, unit, first):
    for c in range(c0, c1):
        if c == 0: a(f"s_mov_b32 s{dst}, s{first}")
        else:
            a(f"s_add_u32 s{dst+c}, s{dst+c-1}, {unit}"); a(f"s_cmp_eq_u32 s{dst+c}, s57"); a(f"s_cselect_b32 s{dst+c}, s58, s{dst+c}")
def xtable(a, p, c0, c1):
    if not p.half:
        a("s_mov_b32 s57, 1280"); a("s_mov_b32 s58, 0"); ktable(a, 40, c0, c1, 128, 35); return
    a("s_movk_i32 s57, 640"); a("s_mov_b32 s58, 0"); ktable(a, 40, c0, min(c1, 5), 128, 35)
    for c in range(max(c0, 5), c1): a(f"s_add_u32 s{40+c}, s{35+c}, 640")
def btable(a, nb):
    a("s_mul_i32 s50, s36, 40960"); a("s_add_u32 s50, s50, s34"); a(f"s_add_u32 s57, s34, {nb*40960}")
    for b in range(1, nb):
        a(f"s_add_u32 s{50+b}, s{49+b}, 40960"); a(f"s_cmp_eq_u32 s{50+b}, s57"); a(f"s_cselect_b32 s{50+b}, s34, s{50+b}")

def dma_voff(a, lane, wave_s, dst, t1, t2):
    a(f"v_lshrrev_b32 v{t1}, 3, v{lane}"); a(f"s_lshl_b32 s56, s{wave_s}, 3"); a(f"v_add_u32 v{t1}, s56, v{t1}")
    a(f"v_lshrrev_b32 v{t2}, 1, v{t1}"); a(f"v_xor_b32 v{t2}, v{t2}, v{lane}"); a(f"v_and_b32 v{t2}, 7, v{t2}")
    a(f"v_mul_u32_u24 v{t1}, 1280, v{t1}"); a(f"v_lshl_add_u32 v{dst}, v{t2}, 4, v{t1}")
    a(f"s_lshl_b32 s37, s{wave_s}, 10")

def slot(p, nb, b, c):
    if p.two: return ((c % (p.NS//nb))*nb + b)*4096
    return ((c*nb + b) % p.NS)*4096
def stage_off(p, nb, b):
    WB = p.NS*4096
    if not p.two: return WB + ((b//2 + 1) % 3)*WSTAGE + (b % 2)*2048
    A2 = 0 if nb == 5 else 12*4096
    if nb == 5: return A2 if b == 4 else WB + (1 + b//2)*WSTAGE + (b % 2)*2048
    r, j = divmod(b, 3)
    return A2 + r*2048 if j == 2 else WB + (1 + r)*WSTAGE + j*2048
def sched(p, nb):
    lg = [int(ch) for ch in (p.lags if nb == 5 else p.lags6)] or [0]*nb
    bc = []
    for t in range(9):
        for b in sorted(range(nb), key=lambda b: (-lg[b], b)):
            if t - lg[b] >= 0: bc.append((b, t - lg[b], t))
    for b in sorted(range(nb), key=lambda b: (lg[b], b)):
        for c in range(9 - lg[b], 10): bc.append((b, c, 9))
    mf = [(b, c, s, t) for b, c, t in bc for s in range(4)]
    if max(lg) == 0: P = xl(p, nb)*nb
    else: P = p.xp if nb == 5 else p.xp6
    at = [-1 if i < P else (i - P)//nb for i in range(len(bc))]
    for i, (b, c, t) in enumerate(bc):
        assert at[i] <= max(-1, t - 2), (i, at[i], t)
        if i >= p.NS: assert at[i] >= bc[i - p.NS][2] + 2, (i, at[i], bc[i - p.NS])
    return mf, bc, at, max(2, max(lg) + 1)
def dma_i(p, nb, bc, i, vD):
    b, c, t = bc[i]
    if p.noload: return []
    return [f"s_add_u32 m0, s37, {(i % p.NS)*4096}", f"s_add_u32 s56, s{50+b}, s{40+c}",
            f"buffer_load_dwordx4 v{vD}, s[16:19], s56 offen {p.xflags} lds"]
def dma_txt(p, nb, b, c, vD):
    if p.noload: return []
    if p.nox: return [f"buffer_load_dword v100, v{vD}, s[16:19], 0 offen offset:4095"] if c < 0 else ["s_nop 0"]
    if p.xreg: return [f"s_add_u32 s56, s{50+b}, s{40+c}", f"buffer_load_dwordx4 v[{100+4*b}:{103+4*b}], v{vD}, s[16:19], s56 offen {p.xflags}"]
    return [f"s_add_u32 m0, s37, {slot(p, nb, b, c)}", f"s_add_u32 s56, s{50+b}, s{40+c}",
            f"buffer_load_dwordx4 v{vD}, s[16:19], s56 offen {p.xflags} lds"]
def xl(p, nb):
    v = p.xlead if nb == 5 else p.xlead6
    assert (not p.two or v + 2 <= p.NS//nb) and (v + 2 - p.xv)*nb <= p.NS and v*nb <= p.NS and (p.xv < 2 or v >= p.xv + 1), (v, nb)
    return v
def groups(p, nb): return [[int(ch) for ch in g] for g in (p.tail if nb == 5 else p.tail6).split(",")]

def consumer(p, nb):
    a = Asm(); NB = p.NB; XL = xl(p, nb)
    WB = p.NS*4096; BIAS = WB + 3*WSTAGE
    ACC = lambda b: 16*b
    mf, bc, at, nW = sched(p, nb)
    idx_of = {(b, c): i for i, (b, c, _) in enumerate(bc)}
    WF = 128 - 16*nW; XF = 128; VA = XF + 4*NB
    assert WF >= 16*nb
    vX = [VA+i for i in range(4)]; vW = VA+4; vD = VA+5; vO = VA+6; vT = VA+7
    assert vT < 168, vT
    FL = BIAS + 512
    vm = []
    a("v_and_b32 v1, 63, v0")
    pstamp(a, p, 2)
    dma_voff(a, 1, 32, vD, 2, 3)
    btable(a, nb)
    pro = [i for i in range(len(bc)) if at[i] == -1]
    xtable(a, p, 0, max(bc[i][1] for i in pro) + 1)
    a("s_waitcnt lgkmcnt(0)")
    pstamp(a, p, 5)
    srd(a, 16, 4, 10485760)
    if p.prebar: a("s_barrier")
    for i in pro:
        for x in dma_i(p, nb, bc, i, vD): a(x)
        vm.append(bc[i][2])
    pstamp(a, p, 6)
    a("v_and_b32 v2, 31, v1"); a("v_lshrrev_b32 v3, 5, v1"); a("v_lshrrev_b32 v4, 1, v2"); a("v_and_b32 v4, 7, v4")
    a("v_xor_b32 v4, v4, v3"); a("v_lshlrev_b32 v4, 4, v4"); a(f"v_lshl_add_u32 v{vX[0]}, v2, 7, v4")
    for s in range(1, 4): a(f"v_xor_b32 v{vX[s]}, {s*32}, v{vX[0]}")
    a("v_lshlrev_b32 v4, 9, v3"); a("v_bfe_u32 v5, v1, 4, 1"); a("v_lshl_add_u32 v4, v5, 5, v4")
    a("v_bfe_u32 v5, v1, 2, 2"); a("v_lshl_add_u32 v4, v5, 6, v4"); a("v_and_b32 v5, 3, v1"); a("v_lshl_add_u32 v4, v5, 3, v4")
    a(f"s_mul_i32 s56, s32, {CBS}"); a(f"s_add_u32 s56, s56, {WB}"); a(f"v_add_u32 v{vW}, s56, v4")
    a("v_bfe_u32 v5, v1, 1, 2"); a("v_xor_b32 v5, v5, v3"); a("v_lshlrev_b32 v5, 4, v5"); a("v_lshl_add_u32 v5, v2, 6, v5")
    a(f"v_add_u32 v{vO}, s56, v5")
    a("s_lshl_b32 s56, s32, 7"); a(f"s_add_u32 s56, s56, {BIAS}"); a("v_lshlrev_b32 v4, 4, v3"); a(f"v_add_u32 v{vT}, s56, v4")
    if p.cprio: a(f"s_setprio {p.cprio}")
    lastW = {}
    for k, (b, c, s, u) in enumerate(mf): lastW[(c, s)] = k
    lg = []
    def wait_lds(tags):
        idx = max([k for k, t_ in enumerate(lg) if t_ in tags], default=-1)
        if idx >= 0:
            a(f"s_waitcnt lgkmcnt({len(lg)-1-idx})"); del lg[:idx+1]
    def lds(txt, tagi):
        if len(lg) >= 15: wait_lds([lg[0]])
        a(txt); lg.append(tagi)
    xbase = [0]*4
    def xread(j):
        b, c, s, u = mf[j]
        off = (idx_of[(b, c)] % p.NS)*4096
        hi = off & ~0xffff
        if xbase[s] != hi:
            a(f"v_xor_b32 v{vX[s]}, 0x10000, v{vX[s]}"); xbase[s] = hi
        r = XF + 4*(j % NB)
        if not p.noxread: lds(f"ds_read_b128 v[{r}:{r+3}], v{vX[s]} offset:{off & 0xffff}", ("x", j))
    def wread(c, s):
        for q in range(2):
            r = WF + 16*(c % nW) + 4*s + 2*q
            lds(f"ds_read_b64_tr_b16 v[{r}:{r+1}], v{vW} offset:{(c%3)*WSTAGE + s*1024 + q*256}", ("w", c, s))
    cur = [-1]
    def boundary(t):
        need = [k for k, c in enumerate(vm) if c <= t]
        if need and not p.noload and not p.nox:
            a(f"s_waitcnt vmcnt({len(vm)-1-max(need)})"); del vm[:max(need)+1]
        wait_lds([x for x in lg if x[0] == "w" and x[1] == t-1])
        st3(a, p, 1+t)
        a("s_barrier")
        bstamps(a, p, t)
        cur[0] = t
    fillq = []
    grp = groups(p, nb); done = set(); gi = [0]
    def epilogue_items(b):
        A = ACC(b); off = ((b//2 + 1) % 3)*WSTAGE + (b % 2)*2048
        it = [f"v_cvt_pk_bf16_f32 v{A+k}, v{A+2*k}, v{A+2*k+1}" for k in range(8)]
        it = it[:4] + it[4:6] + [f"v_permlane32_swap_b32 v{A}, v{A+2}", f"v_permlane32_swap_b32 v{A+1}, v{A+3}", it[6],
               ("lds", f"ds_write_b128 v{vO}, v[{A}:{A+3}] offset:{off}", ("o", b)), it[7], f"v_xor_b32 v{A+8}, 32, v{vO}", "s_nop 0",
               f"v_permlane32_swap_b32 v{A+4}, v{A+6}", f"v_permlane32_swap_b32 v{A+5}, v{A+7}",
               ("lds", f"ds_write_b128 v{A+8}, v[{A+4}:{A+7}] offset:{off}", ("o", b))]
        if p.flags: it.append(("lds", f"ds_write_b8 v{vD}, v{vT} offset:{4*b}", ("f", b)))
        else: it.append(("done", b))
        return it
    pend = []
    def tailbar():
        g = grp[gi[0]]
        wait_lds([("o", b) for b in g]); a("s_barrier"); gi[0] += 1
    def emit_fill(n, force=False):
        k = 0
        if pend and not force:
            pend[0] -= 1
            if pend[0] <= 0: pend.pop(0); tailbar()
        while fillq and k < n:
            it = fillq[0]
            if isinstance(it, tuple) and it[0] == "gate":
                have = sum(8 if "v_mfma" in x else 1 for x in a.l[it[1]:])
                if have < p.gate:
                    if not force: return
                    if have < 12: a(f"s_nop {12-have-1}")
                fillq.pop(0); continue
            fillq.pop(0)
            if isinstance(it, str): a(it); k += 1
            elif it[0] == "lds":
                lds(it[1], it[2]); k += 1
                if it[2][0] == "f": st3(a, p, 1 + it[2][1], True)
            elif it[0] == "done":
                done.add(it[1])
                g = gi[0] + len(pend)
                if g < len(grp) and all(b in done for b in grp[g]):
                    if force:
                        while pend: pend.pop(0); tailbar()
                        tailbar()
                    else: pend.append(2)
    boundary(0)
    wread(0, 0)
    for q in range(4):
        r = ACC(nb-1) + 4*q
        lds(f"ds_read_b128 v[{r}:{r+3}], v{vT} offset:{q*32}", ("b",))
    nxt = [0]; wq = [(0, 1), (0, 2), (0, 3)]
    def advance(upto):
        while nxt[0] < min(upto, len(mf)):
            c = mf[nxt[0]][3]
            if cur[0] < c:
                boundary(c); wq.extend((c, s) for s in range(4))
            xread(nxt[0]); nxt[0] += 1
            if wq and lastW.get((wq[0][0] - nW, wq[0][1]), -1) < upto - NB: wread(*wq.pop(0))
    advance(NB)
    for j, (b, c, s, u) in enumerate(mf):
        if p.flags and j == 8: a(f"s_add_u32 s56, s32, {FL}"); a(f"v_mov_b32 v{vD}, s56"); a(f"v_mov_b32 v{vT}, 1")
        while (c, s) in wq:
            assert lastW.get((wq[0][0] - nW, wq[0][1]), -1) < j
            wread(*wq.pop(0))
        wait_lds([("x", j), ("w", c, s), ("b",)])
        A = ACC(b); wr = WF + 16*(c % nW) + 4*s; xr = XF + 4*(j % NB)
        C = ACC(nb-1) if (c == 0 and s == 0) else A
        if not p.nomfma: a(f"v_mfma_f32_32x32x16_bf16 v[{A}:{A+15}], v[{wr}:{wr+3}], v[{xr}:{xr+3}], v[{C}:{C+15}]")
        if c == 9 and s == 3:
            fillq.append(("gate", len(a.l))); fillq.extend(epilogue_items(b))
        advance(j + 1 + NB)
        emit_fill(p.fill)
    if p.stamps == 1: stamp(a, p, 5)
    emit_fill(100000, True)
    while pend: pend.pop(0); tailbar()
    assert p.flags or gi[0] == len(grp)
    stamp_out(a, p)
    a("s_endpgm")
    return a.text()

def consumer2(p, nb):
    a = Asm(); NB = p.NB; XL = xl(p, nb)
    WB = p.NS*4096; BIAS = WB + 3*WSTAGE; FL = BIAS + 512
    RB = nb//2
    WF = 96; XF = 128; VA = XF + 4*NB
    vX = [VA+i for i in range(4)]; vY = [VA+4+i for i in range(4)]
    vW = [VA+8, VA+9]; vO = [VA+10, VA+11]; vD = VA+12; vT = [VA+13, VA+14]; vF = VA+15
    assert vF < 168, vF
    vm = []
    a("v_and_b32 v1, 63, v0")
    pstamp(a, p, 2)
    dma_voff(a, 1, 32, vD, 2, 3)
    btable(a, nb)
    a("s_mov_b32 s57, 1280"); a("s_mov_b32 s58, 0")
    ktable(a, 40, 0, XL, 128, 35)
    a("s_waitcnt lgkmcnt(0)")
    pstamp(a, p, 5)
    srd(a, 16, 4, 10485760)
    if p.prebar: a("s_barrier")
    for c in range(XL):
        for b in range(nb):
            for x in dma_txt(p, nb, b, c, vD): a(x)
            vm.append(c)
    pstamp(a, p, 6)
    a("s_lshr_b32 s20, s32, 1"); a("s_and_b32 s21, s32, 1")
    a("s_lshl_b32 s22, s21, 1"); a("s_add_u32 s22, s22, s20"); a("s_xor_b32 s23, s22, 1")
    a("v_and_b32 v2, 31, v1"); a("v_lshrrev_b32 v3, 5, v1"); a("v_lshrrev_b32 v4, 1, v2"); a("v_and_b32 v4, 7, v4")
    a("v_xor_b32 v4, v4, v3"); a("v_lshlrev_b32 v4, 4, v4"); a(f"v_lshl_add_u32 v{vY[0]}, v2, 7, v4")
    for s in range(1, 4): a(f"v_xor_b32 v{vY[s]}, {s*32}, v{vY[0]}")
    a(f"s_mul_i32 s56, s20, {RB*4096}")
    for s in range(4): a(f"v_add_u32 v{vX[s]}, s56, v{vY[s]}")
    a("v_lshlrev_b32 v4, 9, v3"); a("v_bfe_u32 v5, v1, 4, 1"); a("v_lshl_add_u32 v4, v5, 5, v4")
    a("v_bfe_u32 v5, v1, 2, 2"); a("v_lshl_add_u32 v4, v5, 6, v4"); a("v_and_b32 v5, 3, v1"); a("v_lshl_add_u32 v4, v5, 3, v4")
    a("v_bfe_u32 v5, v1, 1, 2"); a("v_xor_b32 v5, v5, v3"); a("v_lshlrev_b32 v5, 4, v5"); a("v_lshl_add_u32 v5, v2, 6, v5")
    a("v_lshlrev_b32 v6, 4, v3")
    for q in range(2):
        a(f"s_mul_i32 s24, s{22+q}, {CBS}"); a(f"s_add_u32 s25, s24, {WB}"); a(f"v_add_u32 v{vW[q]}, s25, v4")
        a(f"v_add_u32 v{vO[q]}, s24, v5")
        a(f"s_lshl_b32 s56, s{22+q}, 7"); a(f"s_add_u32 s56, s56, {BIAS}"); a(f"v_add_u32 v{vT[q]}, s56, v6")
    a(f"s_mul_i32 s26, s20, {WSTAGE}"); a(f"s_add_u32 s26, s26, {WB + WSTAGE}")
    a(f"s_lshl_b32 s27, s20, 11")
    if nb == 6: a(f"s_add_u32 s27, s27, {12*4096}")
    else: a("s_mov_b32 s27, 0")
    a(f"s_mul_i32 s28, s20, {4*RB}"); a("s_add_u32 s28, s28, s21"); a(f"s_add_u32 s28, s28, {FL}"); a(f"s_add_u32 s29, s32, {FL+16}")
    if p.cprio: a(f"s_setprio {p.cprio}")
    NX = 3
    tiles = lambda j: [(2*j, 0), (2*j+1, 1)] if (nb == 6 or j < 2) else [(4, 0)]
    hold = [4, 5 if nb == 6 else 3]
    fr = []; mf = []
    for c in range(10):
        order = [(j, s) for s in range(4) for j in range(NX)] if c < 9 else [(j, s) for j in range(NX) for s in range(4)]
        for j, s in order:
            fr.append((j, c, s))
            for i, q in tiles(j): mf.append((i, q, c, s, len(fr)-1))
    lastW = {}; lastF = {}; lastA = {}
    for k, (i, q, c, s, f) in enumerate(mf): lastW[(c, s, q)] = k; lastF[f] = k; lastA[i] = k
    lg = []
    def wait_lds(tags):
        idx = max([k for k, t_ in enumerate(lg) if t_ in tags], default=-1)
        if idx >= 0:
            a(f"s_waitcnt lgkmcnt({len(lg)-1-idx})"); del lg[:idx+1]
    def lds(txt, tagi):
        if len(lg) >= 15: wait_lds([lg[0]])
        a(txt); lg.append(tagi)
    xbase = {}
    def xread(f):
        j, c, s = fr[f]
        shared = nb == 5 and j == 2
        v = vY[s] if shared else vX[s]
        off = slot(p, nb, 4 if shared else j, c)
        hi = off & ~0xffff
        if xbase.get(v, 0) != hi:
            a(f"v_xor_b32 v{v}, 0x10000, v{v}"); xbase[v] = hi
        r = XF + 4*(f % NB)
        if not p.noxread: lds(f"ds_read_b128 v[{r}:{r+3}], v{v} offset:{off & 0xffff}", ("x", f))
    def wread(c, s, q):
        for u in range(2):
            r = WF + 16*q + 4*s + 2*u
            lds(f"ds_read_b64_tr_b16 v[{r}:{r+1}], v{vW[q]} offset:{(c%3)*WSTAGE + s*1024 + u*256}", ("w", c, s, q))
    cur = [-1]
    def boundary(t):
        need = [k for k, c in enumerate(vm) if c <= t]
        if need and not p.noload and not p.nox:
            a(f"s_waitcnt vmcnt({len(vm)-1-max(need)})"); del vm[:max(need)+1]
        st3(a, p, 1+t)
        a("s_barrier")
        bstamps(a, p, t)
        cur[0] = t
    fillq = []
    def epilogue_items(i, q):
        A = 16*i; j = i//2
        base = "s27" if j == 2 else "s26"; off = 0 if j == 2 else j*2048
        it = [f"v_cvt_pk_bf16_f32 v{A+k}, v{A+2*k}, v{A+2*k+1}" for k in range(8)]
        it += [f"v_add_u32 v{A+9}, {base}, v{vO[q]}", f"v_xor_b32 v{A+8}, 32, v{A+9}",
               f"v_permlane32_swap_b32 v{A}, v{A+2}", f"v_permlane32_swap_b32 v{A+1}, v{A+3}",
               ("lds", f"ds_write_b128 v{A+9}, v[{A}:{A+3}] offset:{off}", ("o", i)),
               f"v_permlane32_swap_b32 v{A+4}, v{A+6}", f"v_permlane32_swap_b32 v{A+5}, v{A+7}", ("stop",),
               ("lds", f"ds_write_b128 v{A+8}, v[{A+4}:{A+7}] offset:{off}", ("o", i)), ("stop",)]
        if nb == 5 and j == 2: it += [f"v_mov_b32 v{vF}, s29", ("lds", f"ds_write_b8 v{vF}, v{vD}", ("f", j))]
        elif q == 1: it.append(("lds", f"ds_write_b8 v{vF}, v{vD} offset:{4*j}", ("f", j)))
        return it
    def emit_fill(n, force=False):
        k = 0
        while fillq and k < n:
            it = fillq[0]
            if isinstance(it, tuple) and it[0] == "gate":
                have = len(a.l) - it[1]
                if have < 12:
                    if not force: return
                    a(f"s_nop {12-have-1}")
                fillq.pop(0); continue
            fillq.pop(0)
            if isinstance(it, str): a(it); k += 1
            elif it[0] == "stop":
                if not force and p.estop: return
            elif it[0] == "lds":
                lds(it[1], it[2]); k += 1
                if it[2][0] == "f": st3(a, p, 1 + it[2][1], True)
    boundary(0)
    wread(0, 0, 0); wread(0, 0, 1)
    nxt = [0]; wq = [(0, s, q) for s in range(1, 4) for q in range(2)]
    xread(0); nxt[0] = 1
    for q in range(2):
        for u in range(4):
            r = 16*hold[q] + 4*u
            lds(f"ds_read_b128 v[{r}:{r+3}], v{vT[q]} offset:{u*32}", ("b", q))
    def advance(k):
        while nxt[0] < len(fr) and (nxt[0] < NB or lastF[nxt[0]-NB] < k):
            c = fr[nxt[0]][1]
            if cur[0] < c:
                boundary(c); wq.extend((c, s, q) for s in range(4) for q in range(2))
            xread(nxt[0]); nxt[0] += 1
        n = 0
        while wq and n < p.wrate and lastW.get((wq[0][0]-1, wq[0][1], wq[0][2]), -1) < k:
            wread(*wq.pop(0)); n += 1
    advance(0)
    for k, (i, q, c, s, f) in enumerate(mf):
        if k == 12: a(f"v_mov_b32 v{vF}, s28"); a(f"v_mov_b32 v{vD}, 1")
        while (c, s, q) in wq: wread(*wq.pop(0))
        wait_lds([("x", f), ("w", c, s, q), ("b", q)])
        A = 16*i; wr = WF + 16*q + 4*s; xr = XF + 4*(f % NB)
        C = 16*hold[q] if (c == 0 and s == 0) else A
        if not p.nomfma: a(f"v_mfma_f32_32x32x16_bf16 v[{A}:{A+15}], v[{wr}:{wr+3}], v[{xr}:{xr+3}], v[{C}:{C+15}]")
        if k == lastA[i]:
            fillq.append(("gate", len(a.l))); fillq.extend(epilogue_items(i, q))
        advance(k + 1)
        emit_fill(p.fill)
    if p.stamps == 1: stamp(a, p, 5)
    emit_fill(100000, True)
    stamp_out(a, p)
    a("s_endpgm")
    return a.text()

def prune_all(S, T):
    o = []
    for j0 in (0, 2):
        js = (j0, j0+1)
        A = lambda j, r: T + (j-j0)*8 + r
        U = lambda j, k: T + (j-j0)*8 + 4 + k
        for r in range(4):
            for j in js: o.append(f"v_and_b32 v{A(j,r)}, s38, v{S+4*r+j}")
        for j in js: o.append(f"v_pk_max_u16 v{U(j,0)}, v{A(j,0)}, v{A(j,1)}")
        for j in js: o.append(f"v_pk_min_u16 v{U(j,1)}, v{A(j,0)}, v{A(j,1)}")
        for j in js: o.append(f"v_pk_max_u16 v{U(j,2)}, v{A(j,2)}, v{A(j,3)}")
        for j in js: o.append(f"v_pk_min_u16 v{U(j,3)}, v{A(j,2)}, v{A(j,3)}")
        for j in js: o.append(f"v_pk_min_u16 v{U(j,0)}, v{U(j,0)}, v{U(j,2)}")
        for j in js: o.append(f"v_pk_max_u16 v{U(j,1)}, v{U(j,1)}, v{U(j,3)}")
        for j in js: o.append(f"v_pk_max_u16 v{U(j,0)}, v{U(j,0)}, v{U(j,1)}")
        for r in range(4):
            for j in js: o.append(f"v_pk_sub_i16 v{A(j,r)}, v{A(j,r)}, v{U(j,0)}")
        for r in range(4):
            for j in js: o.append(f"v_pk_ashrrev_i16 v{A(j,r)}, 15, v{A(j,r)} op_sel_hi:[0,1]")
        for r in range(4):
            for j in js: o.append(f"v_bfi_b32 v{S+4*r+j}, v{A(j,r)}, 0, v{S+4*r+j}")
    return o

def producer(p, nb, X):
    a = Asm(); XL = xl(p, nb)
    WB = p.NS*4096; BIAS = WB + 3*WSTAGE
    vG = 1; vS = 2; vR = 3; vO = 4; vD = 7; T = 8; ST = 32; DR = 64
    WK = 80
    prio = p.aprio if X == 0 else p.bprio
    if X == 0 and p.proprio: a(f"s_setprio {p.proprio}")
    elif prio: a(f"s_setprio {prio}")
    a(f"s_sub_u32 s39, s32, {4+4*X}"); a("v_and_b32 v6, 63, v0")
    pstamp(a, p, 2)
    a("v_lshrrev_b32 v24, 4, v6"); a("s_lshl_b32 s56, s39, 2"); a("v_add_u32 v24, s56, v24")
    a("v_and_b32 v25, 15, v6"); a("v_mul_u32_u24 v9, 5120, v24"); a(f"v_lshl_add_u32 v{vG}, v25, 4, v9")
    a("s_lshl_b32 s59, s33, 8")
    if p.half:
        xtable(a, p, 0, 1 + X)
        a(f"s_mul_i32 s56, s{40+X}, 640"); a(f"s_add_u32 s{WK}, s56, s59")
    else:
        if X: a("s_add_u32 s58, s59, 81920")
        else: a("s_mov_b32 s58, s59")
        a("s_mul_i32 s56, s35, 640"); a(f"s_add_u32 s{WK}, s56, s58")
    if X == 0: a("v_lshlrev_b32 v10, 2, v6")
    a("s_waitcnt lgkmcnt(0)")
    pstamp(a, p, 5)
    srd(a, 20, 6, 819200)
    vm = []
    SR = lambda c: ST + 16*((c//2) % 2)
    def wload1(c, r):
        vm.append(("w", c))
        if p.noload or p.now: return []
        return [f"buffer_load_dwordx4 v[{SR(c)+4*r}:{SR(c)+4*r+3}], v{vG}, s[20:23], s{WK+c//2} offen offset:{r*1280} {p.wflags}"]
    XR = lambda b, c: 96 + 24*((c//2) % 2) + 4*b
    def xdma(b, c):
        vm.append(("x", c))
        if p.xv: return [f"s_add_u32 s56, s{50+b}, s{40+c}", f"buffer_load_dwordx4 v[{XR(b,c)}:{XR(b,c)+3}], v{vD}, s[16:19], s56 offen {p.xflags}"]
        return dma_txt(p, nb, b, c, vD)
    def xwr(c):
        if not p.xv or c >= 10 or c < XL: return []
        def one(b):
            if b == 0: wait_vm(lambda t_: t_ == ("x", c))
            off = slot(p, nb, b, c)
            return [f"ds_write_b128 v{30 + (off >> 16)}, v[{XR(b,c)}:{XR(b,c)+3}] offset:{off & 0xffff}"]
        return [(lambda b=b: one(b)) for b in range(nb)]
    def emit(l):
        for y in l: a(y)
    if X == 0:
        for r in range(4): emit(wload1(0, r))
        srd(a, 28, 8, 1280)
        a("buffer_load_dword v27, v10, s[28:31], s59 offen"); vm.append("bias")
        if p.prebar: a("s_barrier")
    else:
        if p.prebar: a("s_barrier")
        for r in range(4): emit(wload1(1, r))
    if p.half:
        xtable(a, p, 1 + X, 10)
        for k in range(1, 5): a(f"s_mul_i32 s56, s{40+X+2*k}, 640"); a(f"s_add_u32 s{WK+k}, s56, s59")
    else:
        a("s_add_u32 s57, s58, 819200")
        ktable(a, WK, 1, 5, 163840, WK)
    pstamp(a, p, 6)
    a("s_mov_b32 s38, 0x7fff7fff")
    srd(a, 16, 4, 10485760)
    dma_voff(a, 6, 39, vD, 12, 13)
    btable(a, nb)
    if not p.half: xtable(a, p, 0, 10)
    for b in range(nb): a(f"s_add_u32 s{90+b}, s{50+b}, s59")
    srd(a, 24, 10, 10485760)
    a("v_lshrrev_b32 v9, 2, v25"); a(f"v_mul_u32_u24 v9, {CBS}, v9"); a("v_lshl_add_u32 v14, v24, 8, v9"); a("v_and_b32 v12, 3, v25")
    a("v_lshl_add_u32 v14, v12, 4, v14"); a(f"v_add_u32 v{vS}, {WB}, v14")
    a("v_lshrrev_b32 v13, 4, v6"); a("s_lshl_b32 s56, s39, 3")
    if X: a("s_add_u32 s56, s56, 4")
    a("v_add_u32 v13, s56, v13")
    a("v_lshrrev_b32 v14, 1, v13"); a("v_xor_b32 v14, v14, v12"); a("v_and_b32 v14, 3, v14"); a("v_lshlrev_b32 v14, 4, v14")
    a("v_lshl_add_u32 v14, v13, 6, v14"); a("v_add_u32 v14, v14, v9"); a(f"v_add_u32 v{vR}, {WB}, v14")
    a("v_mul_u32_u24 v13, 1280, v13"); a(f"v_lshl_add_u32 v{vO}, v25, 4, v13")
    if X == 0: a("v_lshlrev_b32 v26, 3, v6"); a(f"v_add_u32 v26, {BIAS}, v26")
    if p.flags:
        a(f"v_mov_b32 v5, {BIAS + 512}"); a("s_mov_b32 s3, 0x01010101")
        if X == 1: a("v_lshl_add_u32 v28, v6, 2, v5"); a("v_mov_b32 v29, 0"); a("ds_write_b32 v28, v29")
    if p.xv: a("v_lshlrev_b32 v30, 4, v6"); a("v_add_u32 v30, s37, v30"); a("v_add_u32 v31, 0x10000, v30")
    def wait_vm(pred):
        idx = max([k for k, t_ in enumerate(vm) if pred(t_)], default=-1)
        if idx >= 0:
            n = len(vm)-1-idx
            if p.noload: n = 0
            if p.now: n = sum(1 for t_ in vm[idx+1:] if t_[0] != "w")
            if p.nox: n = sum(1 for t_ in vm[idx+1:] if t_[0] != "x")
            a(f"s_waitcnt vmcnt({n})"); del vm[:idx+1]
    def pr(c): return [] if p.noprune else prune_all(SR(c), T)
    def writes(c, only=None):
        if p.nowrite: return
        for r in (range(4) if only is None else [only]): a(f"ds_write_b128 v{vS}, v[{SR(c)+4*r}:{SR(c)+4*r+3}] offset:{(c%3)*WSTAGE + r*64}")
    def stream(valu, mem):
        n = len(mem); k = 0
        for i, x in enumerate(valu):
            while k < n and i * n >= k * len(valu):
                emit(mem[k]()); k += 1
            a(x)
        while k < n:
            emit(mem[k]()); k += 1
    wl = lambda c: [(lambda r=r: wload1(c, r)) for r in range(4)] if c < 10 else []
    xs = lambda c: [(lambda b=b: xdma(b, c)) for b in range(nb)] if c < 10 else []
    if not p.two and not p.xv:
        mf_, bc, at, nW = sched(p, nb)
        def xdi(i):
            vm.append(("x", bc[i][2])); return dma_i(p, nb, bc, i, vD)
        xs = lambda c: [(lambda i=i: xdi(i)) for i in range(len(bc)) if at[i] == c - XL]
    rest = []
    if X == 0:
        wait_vm(lambda t_: t_ == ("w", 0))
        pstamp(a, p, 7)
        stream(pr(0), wl(2))
        writes(0)
        wait_vm(lambda t_: t_ == "bias")
        a("v_lshlrev_b32 v28, 16, v27"); a("v_and_b32 v29, 0xffff0000, v27"); a("ds_write_b64 v26, v[28:29]")
        if p.proprio != prio: a(f"s_setprio {prio}")
    else:
        if p.b0:
            wait_vm(lambda t_: t_ == ("w", 1))
            pstamp(a, p, 7)
            v = pr(1); stream(v[:p.split], wl(3)); rest = v[p.split:]
        else:
            stream([], wl(3)); rest = pr(1)
    late = [0]
    for t in range(10):
        if not p.xv: wait_vm(lambda t_: t_[0] == "x" and t_[1] <= t)
        a(f"s_waitcnt lgkmcnt({late[0]})"); late[0] = 0
        st3(a, p, 1+t)
        a("s_barrier")
        bstamps(a, p, t)
        if t % 2 == X:
            c = t + 2
            xw = xwr(t - 1 + XL) if p.xv == 1 else []
            if p.xv == 3:
                xw = xwr(t - 3 + XL); m = []
                w4 = wl(c+2) if c < 10 else []
                while xw or w4:
                    if xw: m.append(xw.pop(0))
                    if w4: m.append(w4.pop(0))
                if c < 10:
                    wait_vm(lambda t_: t_ == ("w", c))
                    v = pr(c); stream(v[:p.split], m); rest = v[p.split:]
                else: stream([], m)
            elif c < 10:
                wait_vm(lambda t_: t_ == ("w", c))
                v = pr(c); v1 = v[:p.split]; rest = v[p.split:]
                k = len(v1)*p.xwpos//100
                w4 = wl(c+2); kw = (len(w4)*p.xwpos + 99)//100
                stream(v1[:k], w4[:kw]); stream(v1[k:], xw + w4[kw:])
            else: stream([], xw)
            if xw and XL >= 3: late[0] = len(xw)
        else:
            c = t + 1
            if c < 10:
                wait_vm(lambda t_: t_ == ("w", c))
                if p.dprio: a(f"s_setprio {p.dprio}")
                x = xs(t+XL)
                if p.xv == 2: stream([], xwr(t - 2 + XL))
                stream(rest, x[:p.xb])
                x = x[p.xb:]
                if p.walt:
                    for r in range(4):
                        writes(c, r)
                        if x: emit(x.pop(0)())
                else: writes(c)
                if p.dprio: a(f"s_setprio {prio}")
                stream([], x)
    if p.flags:
        order = list(range(nb))
        if p.two:
            order = [0, 2, 1, 3, 4] if nb == 5 else [0, 3, 1, 4, 2, 5]
            a("s_movk_i32 s3, 0x0101"); a(f"v_subrev_u32 v29, {WB}, v{vR}")
        for b in order:
            off = stage_off(p, nb, b); r0 = DR + 4*b
            lab = f"L_poll{nb}_{X}_{b}"
            if p.two and nb == 5 and b == 4: a("s_mov_b32 s3, 0x01010101")
            if p.poll:
                a(f"s_branch {lab}_in"); a.label(lab + "_s"); a(f"s_sleep {p.poll % 10}"); a.label(lab + "_in")
                a(f"ds_read_b32 v28, v5 offset:{4*b}"); a("s_waitcnt lgkmcnt(0)"); a("v_cmp_ne_u32 vcc, s3, v28"); a(f"s_cbranch_vccnz {lab}_s")
                a(f"ds_read_b128 v[{r0}:{r0+3}], v{vR} offset:{off-WB}" if off >= WB else f"ds_read_b128 v[{r0}:{r0+3}], v29 offset:{off}")
                a("s_waitcnt lgkmcnt(0)")
                a(f"buffer_store_dwordx4 v[{r0}:{r0+3}], v{vO}, s[24:27], s{90+b} offen {p.oflags}")
                st3(a, p, 1 + b, True)
                continue
            a.label(lab)
            a(f"ds_read_b32 v28, v5 offset:{4*b}")
            a(f"ds_read_b128 v[{r0}:{r0+3}], v{vR} offset:{off-WB}" if off >= WB else f"ds_read_b128 v[{r0}:{r0+3}], v29 offset:{off}")
            a("s_waitcnt lgkmcnt(0)")
            a("v_cmp_ne_u32 vcc, s3, v28")
            a(f"s_cbranch_vccnz {lab}")
            a(f"buffer_store_dwordx4 v[{r0}:{r0+3}], v{vO}, s[24:27], s{90+b} offen {p.oflags}")
            st3(a, p, 1 + b, True)
    for g in ([] if p.flags else groups(p, nb)):
        a("s_barrier")
        for b in g:
            off = ((b//2 + 1) % 3)*WSTAGE + (b % 2)*2048; r0 = DR + 4*b
            a(f"ds_read_b128 v[{r0}:{r0+3}], v{vR} offset:{off}")
        for k, b in enumerate(g):
            r0 = DR + 4*b
            a(f"s_waitcnt lgkmcnt({len(g)-1-k})")
            a(f"buffer_store_dwordx4 v[{r0}:{r0+3}], v{vO}, s[24:27], s{90+b} offen {p.oflags}")
    if p.stamps == 1: stamp(a, p, 5)
    stamp_out(a, p)
    a("s_endpgm")
    return a.text()

def gen(p):
    lds = p.NS*4096 + 3*WSTAGE + 512 + 256
    assert lds <= 163840
    a = Asm()
    stamp(a, p, 0)
    a("s_load_dwordx4 s[4:7], s[0:1], 0"); a("s_load_dwordx4 s[8:11], s[0:1], 16")
    if p.stamps:
        a("s_load_dwordx4 s[12:15], s[0:1], 32")
        if p.stamps != 3:
            for i in (1,2,4,5,6,7): a(f"s_mov_b32 s{60+2*i}, 0")
    a("v_lshrrev_b32 v1, 6, v0")
    if p.map == 0:
        a("s_and_b32 s56, s2, 7"); a("s_lshr_b32 s57, s2, 3"); a("s_lshl_b32 s56, s56, 5"); a("s_add_u32 s56, s56, s57")
        a("v_readfirstlane_b32 s32, v1")
        a("s_cmp_ge_u32 s2, 255"); a("s_cbranch_scc1 L_exit")
        a("s_mul_i32 s57, s56, 205"); a("s_lshr_b32 s57, s57, 10")
        a("s_mul_i32 s58, s57, 5"); a("s_sub_u32 s33, s56, s58")
        if p.rot & 1:
            a("s_add_u32 s58, s33, s57"); a("s_mul_i32 s59, s58, 205"); a("s_lshr_b32 s59, s59, 10"); a("s_mul_i32 s59, s59, 5")
            a("s_sub_u32 s35, s58, s59"); a(f"s_lshl_b32 s35, s35, {7 if p.half else 8}")
        elif p.rot & 4:
            a("s_mul_i32 s59, s57, 205"); a("s_lshr_b32 s59, s59, 10"); a("s_mul_i32 s59, s59, 5")
            a("s_sub_u32 s35, s57, s59"); a(f"s_lshl_b32 s35, s35, {7 if p.half else 8}")
        else: a("s_mov_b32 s35, 0")
        if p.rot & 3: a("s_mov_b32 s36, s33")
        else: a("s_mov_b32 s36, 0")
        if p.early:
            a("s_sub_u32 s58, s57, 1"); a("s_cmp_eq_u32 s57, 0"); a("s_cselect_b32 s57, 50, s58")
        a("s_mul_i32 s34, s57, 204800")
        a("s_cmp_eq_u32 s57, 50"); a("s_cbranch_scc1 L_six")
    else:
        a("s_lshr_b32 s56, s2, 3"); a("s_and_b32 s58, s2, 7")
        a("s_mul_i32 s57, s56, 205"); a("s_lshr_b32 s57, s57, 10")
        a("v_readfirstlane_b32 s32, v1")
        a("s_cmp_ge_u32 s2, 240"); a("s_cbranch_scc1 L_exit")
        a("s_mul_i32 s59, s57, 5"); a("s_sub_u32 s33, s56, s59")
        if p.rot & 1:
            a("s_add_u32 s35, s33, s57"); a("s_sub_u32 s59, s35, 5"); a("s_cmp_ge_u32 s35, 5"); a("s_cselect_b32 s35, s59, s35")
            a("s_cmp_eq_u32 s35, 5"); a("s_cselect_b32 s35, 0, s35"); a(f"s_lshl_b32 s35, s35, {7 if p.half else 8}")
        else: a("s_mov_b32 s35, 0")
        if p.rot & 3: a("s_mov_b32 s36, s33")
        else: a("s_mov_b32 s36, 0")
        a("s_mul_i32 s34, s58, 1310720"); a("s_mul_i32 s59, s57, 204800"); a("s_add_u32 s34, s34, s59")
        a("s_min_u32 s59, s57, 2"); a("s_mul_i32 s59, s59, 40960"); a("s_add_u32 s34, s34, s59")
        a("s_cmp_lt_u32 s57, 2"); a("s_cbranch_scc1 L_six")
    a("s_cmp_lt_u32 s32, 4"); a("s_cbranch_scc1 L_c5")
    a("s_cmp_ge_u32 s32, 8"); a("s_cbranch_scc1 L_b5")
    body = a.text() + producer(p, 5, 0) + "L_exit:\n  s_endpgm\nL_b5:\n" + producer(p, 5, 1) + "L_c5:\n" + (consumer2 if p.two else consumer)(p, 5)
    body += "L_six:\n  s_cmp_lt_u32 s32, 4\n  s_cbranch_scc1 L_c6\n  s_cmp_ge_u32 s32, 8\n  s_cbranch_scc1 L_b6\n"
    body += producer(p, 6, 0) + "L_b6:\n" + producer(p, 6, 1) + "L_c6:\n" + (consumer2 if p.two else consumer)(p, 6)
    hdr = open("standalone__structured_sparse_n_m__ragged.s.ref").read().split("; Override")[0]
    return hdr + f"""; Generated by my own generator script: tiles of 160(192) rows x 128 columns, 4 MFMA waves + 8 load/prune waves.
; @launch grid=({240 if p.map else 256},1,1) block=(768,1,1) lds={lds}
.amdgcn_target "amdgcn-amd-amdhsa--gfx950"
.text
.globl {KN}
.p2align 8
.type {KN},@function
{KN}:
{body}.section .rodata,"a"
.p2align 6
.amdhsa_kernel {KN}
  .amdhsa_next_free_vgpr 168
  .amdhsa_next_free_sgpr 100
  .amdhsa_accum_offset 168
  .amdhsa_group_segment_fixed_size 0
  .amdhsa_kernarg_size 48
  .amdhsa_user_sgpr_count 2
  .amdhsa_user_sgpr_kernarg_segment_ptr 1
  .amdhsa_system_sgpr_workgroup_id_x 1
.end_amdhsa_kernel
""", lds

if __name__ == "__main__":
    out = sys.argv[1]
    p = P()
    for kv in sys.argv[2:]:
        k, v = kv.split("=", 1)
        old = getattr(P, k)
        setattr(p, k, v.replace("+", " ") if isinstance(old, str) else int(v))
    s, lds = gen(p)
    open(out, "w").write(s)
    from mk import build
    build(out)
    print(out, "lds", lds, "lines", s.count("\n"))
```

```python
import sys
KN = "standalone__structured_sparse_n_m__ragged_kernel"

class P:
    NB = 5; NS = 27
    xflags = "nt"; wflags = ""; oflags = "sc1"
    rot = 1; stamps = 0; fill = 3; early = 1
    xlead = 3; xlead6 = 2
    cprio = 0; aprio = 0; bprio = 0; proprio = 1
    prebar = 1; b0 = 1; split = 46
    tail = "01,2,3,4"; tail6 = "01,23,4,5"
    diag = ""
    nomfma = 0; noprune = 0; noxread = 0; noload = 0
    cy0 = 0; cy1 = 9; half = 0; map = 0; poll = 0; lags = ""; lags6 = ""; xp = 13; xp6 = 12; gate = 16; wrate = 1; estop = 1; two = 0; walt = 0; tst = 0; flags = 1; xv = 0; xwpos = 100; xreg = 0; now = 0; nox = 0; xb = 2; dprio = 0; nowrite = 0

WSTAGE = 16640
CBS = 4160

class Asm:
    def __init__(s): s.l = []
    def __call__(s, x): s.l.append("  " + x)
    def label(s, x): s.l.append(x + ":")
    def text(s): return "\n".join(s.l) + "\n"

S3 = [96] + [60+2*i for i in range(10)] + [98, 86, 88]
def st3(a, p, i, tail=False):
    if p.stamps == 3 and (tail == bool(p.tst) or i in (0, 10, 11, 12)): a(f"s_memtime s[{S3[i]}:{S3[i]+1}]")
def stamp(a, p, i):
    if p.stamps == 3:
        if i == 0: st3(a, p, 0); a("s_memrealtime s[88:89]")
        return
    if p.stamps: a(f"s_memrealtime s[{60+2*i}:{61+2*i}]")
def pstamp(a, p, i):
    if p.stamps == 2: stamp(a, p, i)
def bstamps(a, p, t):
    if not p.stamps or p.stamps == 3: return
    if p.stamps == 2:
        if t == 0: stamp(a, p, 1)
        return
    if t == 0: stamp(a, p, 1)
    if t == p.cy0: a("s_memtime s[72:73]")
    if t == 5: stamp(a, p, 2)
    if t == 9: stamp(a, p, 4)
    if t == p.cy1: a("s_memtime s[74:75]")
def stamp_out(a, p):
    if not p.stamps: return
    if p.stamps == 3:
        st3(a, p, 11)
        a("s_waitcnt vmcnt(0) lgkmcnt(0)"); st3(a, p, 12); a("s_waitcnt lgkmcnt(0)")
        a("s_mov_b32 s16, s14"); a("s_and_b32 s17, s15, 0xffff"); a("s_mov_b32 s18, 0x100000"); a("s_mov_b32 s19, 0x20000")
        a("s_lshl_b32 s56, s2, 4"); a("s_add_u32 s56, s56, s32"); a("s_lshl_b32 s56, s56, 6")
        for i in range(14): a(f"v_mov_b32 v{4+i}, s{S3[i]}")
        a("v_mov_b32 v3, s56"); a("v_mbcnt_lo_u32_b32 v2, -1, 0"); a("v_mbcnt_hi_u32_b32 v2, -1, v2"); a("s_nop 1"); a("v_cmp_eq_u32 vcc, 0, v2"); a("s_and_saveexec_b64 s[58:59], vcc")
        for i in range(4): a(f"buffer_store_dwordx4 v[{4+4*i}:{7+4*i}], v3, s[16:19], 0 offen offset:{16*i}")
        return
    a("s_waitcnt vmcnt(0) lgkmcnt(0)")
    a("s_memrealtime s[66:67]")
    a("s_waitcnt lgkmcnt(0)")
    if p.diag:
        i, j, K = map(int, p.diag.split(","))
        lab = f"L_spin{len(a.l)}_{id(a)%100000}"
        a(f"s_sub_u32 s56, s{60+2*j}, s{60+2*i}"); a(f"s_mul_i32 s56, s56, {K}") if K >= 0 else a(f"s_lshr_b32 s56, s56, {-K}"); a("s_min_u32 s56, s56, 20000")
        a.label(lab)
        a("s_memrealtime s[58:59]"); a("s_waitcnt lgkmcnt(0)"); a("s_sub_u32 s57, s58, s66"); a("s_cmp_lt_u32 s57, s56"); a(f"s_cbranch_scc1 {lab}")
        return
    a("s_mov_b32 s84, s14"); a("s_and_b32 s85, s15, 0xffff"); a("s_mov_b32 s86, 0x100000"); a("s_mov_b32 s87, 0x20000")
    a("s_lshl_b32 s56, s2, 4"); a("s_add_u32 s56, s56, s32"); a("s_lshl_b32 s56, s56, 5")
    for i in range(8): a(f"v_mov_b32 v{4+i}, s{60+2*i}")
    a("v_mov_b32 v3, s56"); a("v_mbcnt_lo_u32_b32 v2, -1, 0"); a("v_mbcnt_hi_u32_b32 v2, -1, v2"); a("s_nop 1"); a("v_cmp_eq_u32 vcc, 0, v2"); a("s_and_saveexec_b64 s[58:59], vcc")
    a("buffer_store_dwordx4 v[4:7], v3, s[84:87], 0 offen"); a("buffer_store_dwordx4 v[8:11], v3, s[84:87], 0 offen offset:16")

def srd(a, d, ptr, n):
    a(f"s_mov_b32 s{d}, s{ptr}"); a(f"s_and_b32 s{d+1}, s{ptr+1}, 0xffff"); a(f"s_mov_b32 s{d+2}, {n}"); a(f"s_mov_b32 s{d+3}, 0x20000")

def ktable(a, dst, c0, c1, unit, first):
    for c in range(c0, c1):
        if c == 0: a(f"s_mov_b32 s{dst}, s{first}")
        else:
            a(f"s_add_u32 s{dst+c}, s{dst+c-1}, {unit}"); a(f"s_cmp_eq_u32 s{dst+c}, s57"); a(f"s_cselect_b32 s{dst+c}, s58, s{dst+c}")
def xtable(a, p, c0, c1):
    if not p.half:
        a("s_mov_b32 s57, 1280"); a("s_mov_b32 s58, 0"); ktable(a, 40, c0, c1, 128, 35); return
    a("s_movk_i32 s57, 640"); a("s_mov_b32 s58, 0"); ktable(a, 40, c0, min(c1, 5), 128, 35)
    for c in range(max(c0, 5), c1): a(f"s_add_u32 s{40+c}, s{35+c}, 640")
def btable(a, nb):
    a("s_mul_i32 s50, s36, 40960"); a("s_add_u32 s50, s50, s34"); a(f"s_add_u32 s57, s34, {nb*40960}")
    for b in range(1, nb):
        a(f"s_add_u32 s{50+b}, s{49+b}, 40960"); a(f"s_cmp_eq_u32 s{50+b}, s57"); a(f"s_cselect_b32 s{50+b}, s34, s{50+b}")

def dma_voff(a, lane, wave_s, dst, t1, t2):
    a(f"v_lshrrev_b32 v{t1}, 3, v{lane}"); a(f"s_lshl_b32 s56, s{wave_s}, 3"); a(f"v_add_u32 v{t1}, s56, v{t1}")
    a(f"v_lshrrev_b32 v{t2}, 1, v{t1}"); a(f"v_xor_b32 v{t2}, v{t2}, v{lane}"); a(f"v_and_b32 v{t2}, 7, v{t2}")
    a(f"v_mul_u32_u24 v{t1}, 1280, v{t1}"); a(f"v_lshl_add_u32 v{dst}, v{t2}, 4, v{t1}")
    a(f"s_lshl_b32 s37, s{wave_s}, 10")

def slot(p, nb, b, c):
    if p.two: return ((c % (p.NS//nb))*nb + b)*4096
    return ((c*nb + b) % p.NS)*4096
def stage_off(p, nb, b):
    WB = p.NS*4096
    if not p.two: return WB + ((b//2 + 1) % 3)*WSTAGE + (b % 2)*2048
    A2 = 0 if nb == 5 else 12*4096
    if nb == 5: return A2 if b == 4 else WB + (1 + b//2)*WSTAGE + (b % 2)*2048
    r, j = divmod(b, 3)
    return A2 + r*2048 if j == 2 else WB + (1 + r)*WSTAGE + j*2048
def sched(p, nb):
    lg = [int(ch) for ch in (p.lags if nb == 5 else p.lags6)] or [0]*nb
    bc = []
    for t in range(9):
        for b in sorted(range(nb), key=lambda b: (-lg[b], b)):
            if t - lg[b] >= 0: bc.append((b, t - lg[b], t))
    for b in sorted(range(nb), key=lambda b: (lg[b], b)):
        for c in range(9 - lg[b], 10): bc.append((b, c, 9))
    mf = [(b, c, s, t) for b, c, t in bc for s in range(4)]
    if max(lg) == 0: P = xl(p, nb)*nb
    else: P = p.xp if nb == 5 else p.xp6
    at = [-1 if i < P else (i - P)//nb for i in range(len(bc))]
    for i, (b, c, t) in enumerate(bc):
        assert at[i] <= max(-1, t - 2), (i, at[i], t)
        if i >= p.NS: assert at[i] >= bc[i - p.NS][2] + 2, (i, at[i], bc[i - p.NS])
    return mf, bc, at, max(2, max(lg) + 1)
def dma_i(p, nb, bc, i, vD):
    b, c, t = bc[i]
    if p.noload: return []
    return [f"s_add_u32 m0, s37, {(i % p.NS)*4096}", f"s_add_u32 s56, s{50+b}, s{40+c}",
            f"buffer_load_dwordx4 v{vD}, s[16:19], s56 offen {p.xflags} lds"]
def dma_txt(p, nb, b, c, vD):
    if p.noload: return []
    if p.nox: return [f"buffer_load_dword v100, v{vD}, s[16:19], 0 offen offset:4095"] if c < 0 else ["s_nop 0"]
    if p.xreg: return [f"s_add_u32 s56, s{50+b}, s{40+c}", f"buffer_load_dwordx4 v[{100+4*b}:{103+4*b}], v{vD}, s[16:19], s56 offen {p.xflags}"]
    return [f"s_add_u32 m0, s37, {slot(p, nb, b, c)}", f"s_add_u32 s56, s{50+b}, s{40+c}",
            f"buffer_load_dwordx4 v{vD}, s[16:19], s56 offen {p.xflags} lds"]
def xl(p, nb):
    v = p.xlead if nb == 5 else p.xlead6
    assert (not p.two or v + 2 <= p.NS//nb) and (v + 2 - p.xv)*nb <= p.NS and v*nb <= p.NS and (p.xv < 2 or v >= p.xv + 1), (v, nb)
    return v
def groups(p, nb): return [[int(ch) for ch in g] for g in (p.tail if nb == 5 else p.tail6).split(",")]

def consumer(p, nb):
    a = Asm(); NB = p.NB; XL = xl(p, nb)
    WB = p.NS*4096; BIAS = WB + 3*WSTAGE
    ACC = lambda b: 16*b
    mf, bc, at, nW = sched(p, nb)
    idx_of = {(b, c): i for i, (b, c, _) in enumerate(bc)}
    WF = 128 - 16*nW; XF = 128; VA = XF + 4*NB
    assert WF >= 16*nb
    vX = [VA+i for i in range(4)]; vW = VA+4; vD = VA+5; vO = VA+6; vT = VA+7
    assert vT < 168, vT
    FL = BIAS + 512
    vm = []
    a("v_and_b32 v1, 63, v0")
    pstamp(a, p, 2)
    dma_voff(a, 1, 32, vD, 2, 3)
    btable(a, nb)
    pro = [i for i in range(len(bc)) if at[i] == -1]
    xtable(a, p, 0, max(bc[i][1] for i in pro) + 1)
    a("s_waitcnt lgkmcnt(0)")
    pstamp(a, p, 5)
    srd(a, 16, 4, 10485760)
    if p.prebar: a("s_barrier")
    for i in pro:
        for x in dma_i(p, nb, bc, i, vD): a(x)
        vm.append(bc[i][2])
    pstamp(a, p, 6)
    a("v_and_b32 v2, 31, v1"); a("v_lshrrev_b32 v3, 5, v1"); a("v_lshrrev_b32 v4, 1, v2"); a("v_and_b32 v4, 7, v4")
    a("v_xor_b32 v4, v4, v3"); a("v_lshlrev_b32 v4, 4, v4"); a(f"v_lshl_add_u32 v{vX[0]}, v2, 7, v4")
    for s in range(1, 4): a(f"v_xor_b32 v{vX[s]}, {s*32}, v{vX[0]}")
    a("v_lshlrev_b32 v4, 9, v3"); a("v_bfe_u32 v5, v1, 4, 1"); a("v_lshl_add_u32 v4, v5, 5, v4")
    a("v_bfe_u32 v5, v1, 2, 2"); a("v_lshl_add_u32 v4, v5, 6, v4"); a("v_and_b32 v5, 3, v1"); a("v_lshl_add_u32 v4, v5, 3, v4")
    a(f"s_mul_i32 s56, s32, {CBS}"); a(f"s_add_u32 s56, s56, {WB}"); a(f"v_add_u32 v{vW}, s56, v4")
    a("v_bfe_u32 v5, v1, 1, 2"); a("v_xor_b32 v5, v5, v3"); a("v_lshlrev_b32 v5, 4, v5"); a("v_lshl_add_u32 v5, v2, 6, v5")
    a(f"v_add_u32 v{vO}, s56, v5")
    a("s_lshl_b32 s56, s32, 7"); a(f"s_add_u32 s56, s56, {BIAS}"); a("v_lshlrev_b32 v4, 4, v3"); a(f"v_add_u32 v{vT}, s56, v4")
    if p.cprio: a(f"s_setprio {p.cprio}")
    lastW = {}
    for k, (b, c, s, u) in enumerate(mf): lastW[(c, s)] = k
    lg = []
    def wait_lds(tags):
        idx = max([k for k, t_ in enumerate(lg) if t_ in tags], default=-1)
        if idx >= 0:
            a(f"s_waitcnt lgkmcnt({len(lg)-1-idx})"); del lg[:idx+1]
    def lds(txt, tagi):
        if len(lg) >= 15: wait_lds([lg[0]])
        a(txt); lg.append(tagi)
    xbase = [0]*4
    def xread(j):
        b, c, s, u = mf[j]
        off = (idx_of[(b, c)] % p.NS)*4096
        hi = off & ~0xffff
        if xbase[s] != hi:
            a(f"v_xor_b32 v{vX[s]}, 0x10000, v{vX[s]}"); xbase[s] = hi
        r = XF + 4*(j % NB)
        if not p.noxread: lds(f"ds_read_b128 v[{r}:{r+3}], v{vX[s]} offset:{off & 0xffff}", ("x", j))
    def wread(c, s):
        for q in range(2):
            r = WF + 16*(c % nW) + 4*s + 2*q
            lds(f"ds_read_b64_tr_b16 v[{r}:{r+1}], v{vW} offset:{(c%3)*WSTAGE + s*1024 + q*256}", ("w", c, s))
    cur = [-1]
    def boundary(t):
        need = [k for k, c in enumerate(vm) if c <= t]
        if need and not p.noload and not p.nox:
            a(f"s_waitcnt vmcnt({len(vm)-1-max(need)})"); del vm[:max(need)+1]
        wait_lds([x for x in lg if x[0] == "w" and x[1] == t-1])
        st3(a, p, 1+t)
        a("s_barrier")
        bstamps(a, p, t)
        cur[0] = t
    fillq = []
    grp = groups(p, nb); done = set(); gi = [0]
    def epilogue_items(b):
        A = ACC(b); off = ((b//2 + 1) % 3)*WSTAGE + (b % 2)*2048
        it = [f"v_cvt_pk_bf16_f32 v{A+k}, v{A+2*k}, v{A+2*k+1}" for k in range(8)]
        it = it[:4] + it[4:6] + [f"v_permlane32_swap_b32 v{A}, v{A+2}", f"v_permlane32_swap_b32 v{A+1}, v{A+3}", it[6],
               ("lds", f"ds_write_b128 v{vO}, v[{A}:{A+3}] offset:{off}", ("o", b)), it[7], f"v_xor_b32 v{A+8}, 32, v{vO}", "s_nop 0",
               f"v_permlane32_swap_b32 v{A+4}, v{A+6}", f"v_permlane32_swap_b32 v{A+5}, v{A+7}",
               ("lds", f"ds_write_b128 v{A+8}, v[{A+4}:{A+7}] offset:{off}", ("o", b))]
        if p.flags: it.append(("lds", f"ds_write_b8 v{vD}, v{vT} offset:{4*b}", ("f", b)))
        else: it.append(("done", b))
        return it
    pend = []
    def tailbar():
        g = grp[gi[0]]
        wait_lds([("o", b) for b in g]); a("s_barrier"); gi[0] += 1
    def emit_fill(n, force=False):
        k = 0
        if pend and not force:
            pend[0] -= 1
            if pend[0] <= 0: pend.pop(0); tailbar()
        while fillq and k < n:
            it = fillq[0]
            if isinstance(it, tuple) and it[0] == "gate":
                have = sum(8 if "v_mfma" in x else 1 for x in a.l[it[1]:])
                if have < p.gate:
                    if not force: return
                    if have < 12: a(f"s_nop {12-have-1}")
                fillq.pop(0); continue
            fillq.pop(0)
            if isinstance(it, str): a(it); k += 1
            elif it[0] == "lds":
                lds(it[1], it[2]); k += 1
                if it[2][0] == "f": st3(a, p, 1 + it[2][1], True)
            elif it[0] == "done":
                done.add(it[1])
                g = gi[0] + len(pend)
                if g < len(grp) and all(b in done for b in grp[g]):
                    if force:
                        while pend: pend.pop(0); tailbar()
                        tailbar()
                    else: pend.append(2)
    boundary(0)
    wread(0, 0)
    for q in range(4):
        r = ACC(nb-1) + 4*q
        lds(f"ds_read_b128 v[{r}:{r+3}], v{vT} offset:{q*32}", ("b",))
    nxt = [0]; wq = [(0, 1), (0, 2), (0, 3)]
    def advance(upto):
        while nxt[0] < min(upto, len(mf)):
            c = mf[nxt[0]][3]
            if cur[0] < c:
                boundary(c); wq.extend((c, s) for s in range(4))
            xread(nxt[0]); nxt[0] += 1
            if wq and lastW.get((wq[0][0] - nW, wq[0][1]), -1) < upto - NB: wread(*wq.pop(0))
    advance(NB)
    for j, (b, c, s, u) in enumerate(mf):
        if p.flags and j == 8: a(f"s_add_u32 s56, s32, {FL}"); a(f"v_mov_b32 v{vD}, s56"); a(f"v_mov_b32 v{vT}, 1")
        while (c, s) in wq:
            assert lastW.get((wq[0][0] - nW, wq[0][1]), -1) < j
            wread(*wq.pop(0))
        wait_lds([("x", j), ("w", c, s), ("b",)])
        A = ACC(b); wr = WF + 16*(c % nW) + 4*s; xr = XF + 4*(j % NB)
        C = ACC(nb-1) if (c == 0 and s == 0) else A
        if not p.nomfma: a(f"v_mfma_f32_32x32x16_bf16 v[{A}:{A+15}], v[{wr}:{wr+3}], v[{xr}:{xr+3}], v[{C}:{C+15}]")
        if c == 9 and s == 3:
            fillq.append(("gate", len(a.l))); fillq.extend(epilogue_items(b))
        advance(j + 1 + NB)
        emit_fill(p.fill)
    if p.stamps == 1: stamp(a, p, 5)
    emit_fill(100000, True)
    while pend: pend.pop(0); tailbar()
    assert p.flags or gi[0] == len(grp)
    stamp_out(a, p)
    a("s_endpgm")
    return a.text()

def consumer2(p, nb):
    a = Asm(); NB = p.NB; XL = xl(p, nb)
    WB = p.NS*4096; BIAS = WB + 3*WSTAGE; FL = BIAS + 512
    RB = nb//2
    WF = 96; XF = 128; VA = XF + 4*NB
    vX = [VA+i for i in range(4)]; vY = [VA+4+i for i in range(4)]
    vW = [VA+8, VA+9]; vO = [VA+10, VA+11]; vD = VA+12; vT = [VA+13, VA+14]; vF = VA+15
    assert vF < 168, vF
    vm = []
    a("v_and_b32 v1, 63, v0")
    pstamp(a, p, 2)
    dma_voff(a, 1, 32, vD, 2, 3)
    btable(a, nb)
    a("s_mov_b32 s57, 1280"); a("s_mov_b32 s58, 0")
    ktable(a, 40, 0, XL, 128, 35)
    a("s_waitcnt lgkmcnt(0)")
    pstamp(a, p, 5)
    srd(a, 16, 4, 10485760)
    if p.prebar: a("s_barrier")
    for c in range(XL):
        for b in range(nb):
            for x in dma_txt(p, nb, b, c, vD): a(x)
            vm.append(c)
    pstamp(a, p, 6)
    a("s_lshr_b32 s20, s32, 1"); a("s_and_b32 s21, s32, 1")
    a("s_lshl_b32 s22, s21, 1"); a("s_add_u32 s22, s22, s20"); a("s_xor_b32 s23, s22, 1")
    a("v_and_b32 v2, 31, v1"); a("v_lshrrev_b32 v3, 5, v1"); a("v_lshrrev_b32 v4, 1, v2"); a("v_and_b32 v4, 7, v4")
    a("v_xor_b32 v4, v4, v3"); a("v_lshlrev_b32 v4, 4, v4"); a(f"v_lshl_add_u32 v{vY[0]}, v2, 7, v4")
    for s in range(1, 4): a(f"v_xor_b32 v{vY[s]}, {s*32}, v{vY[0]}")
    a(f"s_mul_i32 s56, s20, {RB*4096}")
    for s in range(4): a(f"v_add_u32 v{vX[s]}, s56, v{vY[s]}")
    a("v_lshlrev_b32 v4, 9, v3"); a("v_bfe_u32 v5, v1, 4, 1"); a("v_lshl_add_u32 v4, v5, 5, v4")
    a("v_bfe_u32 v5, v1, 2, 2"); a("v_lshl_add_u32 v4, v5, 6, v4"); a("v_and_b32 v5, 3, v1"); a("v_lshl_add_u32 v4, v5, 3, v4")
    a("v_bfe_u32 v5, v1, 1, 2"); a("v_xor_b32 v5, v5, v3"); a("v_lshlrev_b32 v5, 4, v5"); a("v_lshl_add_u32 v5, v2, 6, v5")
    a("v_lshlrev_b32 v6, 4, v3")
    for q in range(2):
        a(f"s_mul_i32 s24, s{22+q}, {CBS}"); a(f"s_add_u32 s25, s24, {WB}"); a(f"v_add_u32 v{vW[q]}, s25, v4")
        a(f"v_add_u32 v{vO[q]}, s24, v5")
        a(f"s_lshl_b32 s56, s{22+q}, 7"); a(f"s_add_u32 s56, s56, {BIAS}"); a(f"v_add_u32 v{vT[q]}, s56, v6")
    a(f"s_mul_i32 s26, s20, {WSTAGE}"); a(f"s_add_u32 s26, s26, {WB + WSTAGE}")
    a(f"s_lshl_b32 s27, s20, 11")
    if nb == 6: a(f"s_add_u32 s27, s27, {12*4096}")
    else: a("s_mov_b32 s27, 0")
    a(f"s_mul_i32 s28, s20, {4*RB}"); a("s_add_u32 s28, s28, s21"); a(f"s_add_u32 s28, s28, {FL}"); a(f"s_add_u32 s29, s32, {FL+16}")
    if p.cprio: a(f"s_setprio {p.cprio}")
    NX = 3
    tiles = lambda j: [(2*j, 0), (2*j+1, 1)] if (nb == 6 or j < 2) else [(4, 0)]
    hold = [4, 5 if nb == 6 else 3]
    fr = []; mf = []
    for c in range(10):
        order = [(j, s) for s in range(4) for j in range(NX)] if c < 9 else [(j, s) for j in range(NX) for s in range(4)]
        for j, s in order:
            fr.append((j, c, s))
            for i, q in tiles(j): mf.append((i, q, c, s, len(fr)-1))
    lastW = {}; lastF = {}; lastA = {}
    for k, (i, q, c, s, f) in enumerate(mf): lastW[(c, s, q)] = k; lastF[f] = k; lastA[i] = k
    lg = []
    def wait_lds(tags):
        idx = max([k for k, t_ in enumerate(lg) if t_ in tags], default=-1)
        if idx >= 0:
            a(f"s_waitcnt lgkmcnt({len(lg)-1-idx})"); del lg[:idx+1]
    def lds(txt, tagi):
        if len(lg) >= 15: wait_lds([lg[0]])
        a(txt); lg.append(tagi)
    xbase = {}
    def xread(f):
        j, c, s = fr[f]
        shared = nb == 5 and j == 2
        v = vY[s] if shared else vX[s]
        off = slot(p, nb, 4 if shared else j, c)
        hi = off & ~0xffff
        if xbase.get(v, 0) != hi:
            a(f"v_xor_b32 v{v}, 0x10000, v{v}"); xbase[v] = hi
        r = XF + 4*(f % NB)
        if not p.noxread: lds(f"ds_read_b128 v[{r}:{r+3}], v{v} offset:{off & 0xffff}", ("x", f))
    def wread(c, s, q):
        for u in range(2):
            r = WF + 16*q + 4*s + 2*u
            lds(f"ds_read_b64_tr_b16 v[{r}:{r+1}], v{vW[q]} offset:{(c%3)*WSTAGE + s*1024 + u*256}", ("w", c, s, q))
    cur = [-1]
    def boundary(t):
        need = [k for k, c in enumerate(vm) if c <= t]
        if need and not p.noload and not p.nox:
            a(f"s_waitcnt vmcnt({len(vm)-1-max(need)})"); del vm[:max(need)+1]
        st3(a, p, 1+t)
        a("s_barrier")
        bstamps(a, p, t)
        cur[0] = t
    fillq = []
    def epilogue_items(i, q):
        A = 16*i; j = i//2
        base = "s27" if j == 2 else "s26"; off = 0 if j == 2 else j*2048
        it = [f"v_cvt_pk_bf16_f32 v{A+k}, v{A+2*k}, v{A+2*k+1}" for k in range(8)]
        it += [f"v_add_u32 v{A+9}, {base}, v{vO[q]}", f"v_xor_b32 v{A+8}, 32, v{A+9}",
               f"v_permlane32_swap_b32 v{A}, v{A+2}", f"v_permlane32_swap_b32 v{A+1}, v{A+3}",
               ("lds", f"ds_write_b128 v{A+9}, v[{A}:{A+3}] offset:{off}", ("o", i)),
               f"v_permlane32_swap_b32 v{A+4}, v{A+6}", f"v_permlane32_swap_b32 v{A+5}, v{A+7}", ("stop",),
               ("lds", f"ds_write_b128 v{A+8}, v[{A+4}:{A+7}] offset:{off}", ("o", i)), ("stop",)]
        if nb == 5 and j == 2: it += [f"v_mov_b32 v{vF}, s29", ("lds", f"ds_write_b8 v{vF}, v{vD}", ("f", j))]
        elif q == 1: it.append(("lds", f"ds_write_b8 v{vF}, v{vD} offset:{4*j}", ("f", j)))
        return it
    def emit_fill(n, force=False):
        k = 0
        while fillq and k < n:
            it = fillq[0]
            if isinstance(it, tuple) and it[0] == "gate":
                have = len(a.l) - it[1]
                if have < 12:
                    if not force: return
                    a(f"s_nop {12-have-1}")
                fillq.pop(0); continue
            fillq.pop(0)
            if isinstance(it, str): a(it); k += 1
            elif it[0] == "stop":
                if not force and p.estop: return
            elif it[0] == "lds":
                lds(it[1], it[2]); k += 1
                if it[2][0] == "f": st3(a, p, 1 + it[2][1], True)
    boundary(0)
    wread(0, 0, 0); wread(0, 0, 1)
    nxt = [0]; wq = [(0, s, q) for s in range(1, 4) for q in range(2)]
    xread(0); nxt[0] = 1
    for q in range(2):
        for u in range(4):
            r = 16*hold[q] + 4*u
            lds(f"ds_read_b128 v[{r}:{r+3}], v{vT[q]} offset:{u*32}", ("b", q))
    def advance(k):
        while nxt[0] < len(fr) and (nxt[0] < NB or lastF[nxt[0]-NB] < k):
            c = fr[nxt[0]][1]
            if cur[0] < c:
                boundary(c); wq.extend((c, s, q) for s in range(4) for q in range(2))
            xread(nxt[0]); nxt[0] += 1
        n = 0
        while wq and n < p.wrate and lastW.get((wq[0][0]-1, wq[0][1], wq[0][2]), -1) < k:
            wread(*wq.pop(0)); n += 1
    advance(0)
    for k, (i, q, c, s, f) in enumerate(mf):
        if k == 12: a(f"v_mov_b32 v{vF}, s28"); a(f"v_mov_b32 v{vD}, 1")
        while (c, s, q) in wq: wread(*wq.pop(0))
        wait_lds([("x", f), ("w", c, s, q), ("b", q)])
        A = 16*i; wr = WF + 16*q + 4*s; xr = XF + 4*(f % NB)
        C = 16*hold[q] if (c == 0 and s == 0) else A
        if not p.nomfma: a(f"v_mfma_f32_32x32x16_bf16 v[{A}:{A+15}], v[{wr}:{wr+3}], v[{xr}:{xr+3}], v[{C}:{C+15}]")
        if k == lastA[i]:
            fillq.append(("gate", len(a.l))); fillq.extend(epilogue_items(i, q))
        advance(k + 1)
        emit_fill(p.fill)
    if p.stamps == 1: stamp(a, p, 5)
    emit_fill(100000, True)
    stamp_out(a, p)
    a("s_endpgm")
    return a.text()

def prune_all(S, T):
    o = []
    for j0 in (0, 2):
        js = (j0, j0+1)
        A = lambda j, r: T + (j-j0)*8 + r
        U = lambda j, k: T + (j-j0)*8 + 4 + k
        for r in range(4):
            for j in js: o.append(f"v_and_b32 v{A(j,r)}, s38, v{S+4*r+j}")
        for j in js: o.append(f"v_pk_max_u16 v{U(j,0)}, v{A(j,0)}, v{A(j,1)}")
        for j in js: o.append(f"v_pk_min_u16 v{U(j,1)}, v{A(j,0)}, v{A(j,1)}")
        for j in js: o.append(f"v_pk_max_u16 v{U(j,2)}, v{A(j,2)}, v{A(j,3)}")
        for j in js: o.append(f"v_pk_min_u16 v{U(j,3)}, v{A(j,2)}, v{A(j,3)}")
        for j in js: o.append(f"v_pk_min_u16 v{U(j,0)}, v{U(j,0)}, v{U(j,2)}")
        for j in js: o.append(f"v_pk_max_u16 v{U(j,1)}, v{U(j,1)}, v{U(j,3)}")
        for j in js: o.append(f"v_pk_max_u16 v{U(j,0)}, v{U(j,0)}, v{U(j,1)}")
        for r in range(4):
            for j in js: o.append(f"v_pk_sub_i16 v{A(j,r)}, v{A(j,r)}, v{U(j,0)}")
        for r in range(4):
            for j in js: o.append(f"v_pk_ashrrev_i16 v{A(j,r)}, 15, v{A(j,r)} op_sel_hi:[0,1]")
        for r in range(4):
            for j in js: o.append(f"v_bfi_b32 v{S+4*r+j}, v{A(j,r)}, 0, v{S+4*r+j}")
    return o

def producer(p, nb, X):
    a = Asm(); XL = xl(p, nb)
    WB = p.NS*4096; BIAS = WB + 3*WSTAGE
    vG = 1; vS = 2; vR = 3; vO = 4; vD = 7; T = 8; ST = 32; DR = 64
    WK = 80
    prio = p.aprio if X == 0 else p.bprio
    if X == 0 and p.proprio: a(f"s_setprio {p.proprio}")
    elif prio: a(f"s_setprio {prio}")
    a(f"s_sub_u32 s39, s32, {4+4*X}"); a("v_and_b32 v6, 63, v0")
    pstamp(a, p, 2)
    a("v_lshrrev_b32 v24, 4, v6"); a("s_lshl_b32 s56, s39, 2"); a("v_add_u32 v24, s56, v24")
    a("v_and_b32 v25, 15, v6"); a("v_mul_u32_u24 v9, 5120, v24"); a(f"v_lshl_add_u32 v{vG}, v25, 4, v9")
    a("s_lshl_b32 s59, s33, 8")
    if p.half:
        xtable(a, p, 0, 1 + X)
        a(f"s_mul_i32 s56, s{40+X}, 640"); a(f"s_add_u32 s{WK}, s56, s59")
    else:
        if X: a("s_add_u32 s58, s59, 81920")
        else: a("s_mov_b32 s58, s59")
        a("s_mul_i32 s56, s35, 640"); a(f"s_add_u32 s{WK}, s56, s58")
    if X == 0: a("v_lshlrev_b32 v10, 2, v6")
    a("s_waitcnt lgkmcnt(0)")
    pstamp(a, p, 5)
    srd(a, 20, 6, 819200)
    vm = []
    SR = lambda c: ST + 16*((c//2) % 2)
    def wload1(c, r):
        vm.append(("w", c))
        if p.noload or p.now: return []
        return [f"buffer_load_dwordx4 v[{SR(c)+4*r}:{SR(c)+4*r+3}], v{vG}, s[20:23], s{WK+c//2} offen offset:{r*1280} {p.wflags}"]
    XR = lambda b, c: 96 + 24*((c//2) % 2) + 4*b
    def xdma(b, c):
        vm.append(("x", c))
        if p.xv: return [f"s_add_u32 s56, s{50+b}, s{40+c}", f"buffer_load_dwordx4 v[{XR(b,c)}:{XR(b,c)+3}], v{vD}, s[16:19], s56 offen {p.xflags}"]
        return dma_txt(p, nb, b, c, vD)
    def xwr(c):
        if not p.xv or c >= 10 or c < XL: return []
        def one(b):
            if b == 0: wait_vm(lambda t_: t_ == ("x", c))
            off = slot(p, nb, b, c)
            return [f"ds_write_b128 v{30 + (off >> 16)}, v[{XR(b,c)}:{XR(b,c)+3}] offset:{off & 0xffff}"]
        return [(lambda b=b: one(b)) for b in range(nb)]
    def emit(l):
        for y in l: a(y)
    if X == 0:
        for r in range(4): emit(wload1(0, r))
        srd(a, 28, 8, 1280)
        a("buffer_load_dword v27, v10, s[28:31], s59 offen"); vm.append("bias")
        if p.prebar: a("s_barrier")
    else:
        if p.prebar: a("s_barrier")
        for r in range(4): emit(wload1(1, r))
    if p.half:
        xtable(a, p, 1 + X, 10)
        for k in range(1, 5): a(f"s_mul_i32 s56, s{40+X+2*k}, 640"); a(f"s_add_u32 s{WK+k}, s56, s59")
    else:
        a("s_add_u32 s57, s58, 819200")
        ktable(a, WK, 1, 5, 163840, WK)
    pstamp(a, p, 6)
    a("s_mov_b32 s38, 0x7fff7fff")
    srd(a, 16, 4, 10485760)
    dma_voff(a, 6, 39, vD, 12, 13)
    btable(a, nb)
    if not p.half: xtable(a, p, 0, 10)
    for b in range(nb): a(f"s_add_u32 s{90+b}, s{50+b}, s59")
    srd(a, 24, 10, 10485760)
    a("v_lshrrev_b32 v9, 2, v25"); a(f"v_mul_u32_u24 v9, {CBS}, v9"); a("v_lshl_add_u32 v14, v24, 8, v9"); a("v_and_b32 v12, 3, v25")
    a("v_lshl_add_u32 v14, v12, 4, v14"); a(f"v_add_u32 v{vS}, {WB}, v14")
    a("v_lshrrev_b32 v13, 4, v6"); a("s_lshl_b32 s56, s39, 3")
    if X: a("s_add_u32 s56, s56, 4")
    a("v_add_u32 v13, s56, v13")
    a("v_lshrrev_b32 v14, 1, v13"); a("v_xor_b32 v14, v14, v12"); a("v_and_b32 v14, 3, v14"); a("v_lshlrev_b32 v14, 4, v14")
    a("v_lshl_add_u32 v14, v13, 6, v14"); a("v_add_u32 v14, v14, v9"); a(f"v_add_u32 v{vR}, {WB}, v14")
    a("v_mul_u32_u24 v13, 1280, v13"); a(f"v_lshl_add_u32 v{vO}, v25, 4, v13")
    if X == 0: a("v_lshlrev_b32 v26, 3, v6"); a(f"v_add_u32 v26, {BIAS}, v26")
    if p.flags:
        a(f"v_mov_b32 v5, {BIAS + 512}"); a("s_mov_b32 s3, 0x01010101")
        if X == 1: a("v_lshl_add_u32 v28, v6, 2, v5"); a("v_mov_b32 v29, 0"); a("ds_write_b32 v28, v29")
    if p.xv: a("v_lshlrev_b32 v30, 4, v6"); a("v_add_u32 v30, s37, v30"); a("v_add_u32 v31, 0x10000, v30")
    def wait_vm(pred):
        idx = max([k for k, t_ in enumerate(vm) if pred(t_)], default=-1)
        if idx >= 0:
            n = len(vm)-1-idx
            if p.noload: n = 0
            if p.now: n = sum(1 for t_ in vm[idx+1:] if t_[0] != "w")
            if p.nox: n = sum(1 for t_ in vm[idx+1:] if t_[0] != "x")
            a(f"s_waitcnt vmcnt({n})"); del vm[:idx+1]
    def pr(c): return [] if p.noprune else prune_all(SR(c), T)
    def writes(c, only=None):
        if p.nowrite: return
        for r in (range(4) if only is None else [only]): a(f"ds_write_b128 v{vS}, v[{SR(c)+4*r}:{SR(c)+4*r+3}] offset:{(c%3)*WSTAGE + r*64}")
    def stream(valu, mem):
        n = len(mem); k = 0
        for i, x in enumerate(valu):
            while k < n and i * n >= k * len(valu):
                emit(mem[k]()); k += 1
            a(x)
        while k < n:
            emit(mem[k]()); k += 1
    wl = lambda c: [(lambda r=r: wload1(c, r)) for r in range(4)] if c < 10 else []
    xs = lambda c: [(lambda b=b: xdma(b, c)) for b in range(nb)] if c < 10 else []
    if not p.two and not p.xv:
        mf_, bc, at, nW = sched(p, nb)
        def xdi(i):
            vm.append(("x", bc[i][2])); return dma_i(p, nb, bc, i, vD)
        xs = lambda c: [(lambda i=i: xdi(i)) for i in range(len(bc)) if at[i] == c - XL]
    rest = []
    if X == 0:
        wait_vm(lambda t_: t_ == ("w", 0))
        pstamp(a, p, 7)
        stream(pr(0), wl(2))
        writes(0)
        wait_vm(lambda t_: t_ == "bias")
        a("v_lshlrev_b32 v28, 16, v27"); a("v_and_b32 v29, 0xffff0000, v27"); a("ds_write_b64 v26, v[28:29]")
        if p.proprio != prio: a(f"s_setprio {prio}")
    else:
        if p.b0:
            wait_vm(lambda t_: t_ == ("w", 1))
            pstamp(a, p, 7)
            v = pr(1); stream(v[:p.split], wl(3)); rest = v[p.split:]
        else:
            stream([], wl(3)); rest = pr(1)
    late = [0]
    for t in range(10):
        if not p.xv: wait_vm(lambda t_: t_[0] == "x" and t_[1] <= t)
        a(f"s_waitcnt lgkmcnt({late[0]})"); late[0] = 0
        st3(a, p, 1+t)
        a("s_barrier")
        bstamps(a, p, t)
        if t % 2 == X:
            c = t + 2
            xw = xwr(t - 1 + XL) if p.xv == 1 else []
            if p.xv == 3:
                xw = xwr(t - 3 + XL); m = []
                w4 = wl(c+2) if c < 10 else []
                while xw or w4:
                    if xw: m.append(xw.pop(0))
                    if w4: m.append(w4.pop(0))
                if c < 10:
                    wait_vm(lambda t_: t_ == ("w", c))
                    v = pr(c); stream(v[:p.split], m); rest = v[p.split:]
                else: stream([], m)
            elif c < 10:
                wait_vm(lambda t_: t_ == ("w", c))
                v = pr(c); v1 = v[:p.split]; rest = v[p.split:]
                k = len(v1)*p.xwpos//100
                w4 = wl(c+2); kw = (len(w4)*p.xwpos + 99)//100
                stream(v1[:k], w4[:kw]); stream(v1[k:], xw + w4[kw:])
            else: stream([], xw)
            if xw and XL >= 3: late[0] = len(xw)
        else:
            c = t + 1
            if c < 10:
                wait_vm(lambda t_: t_ == ("w", c))
                if p.dprio: a(f"s_setprio {p.dprio}")
                x = xs(t+XL)
                if p.xv == 2: stream([], xwr(t - 2 + XL))
                stream(rest, x[:p.xb])
                x = x[p.xb:]
                if p.walt:
                    for r in range(4):
                        writes(c, r)
                        if x: emit(x.pop(0)())
                else: writes(c)
                if p.dprio: a(f"s_setprio {prio}")
                stream([], x)
    if p.flags:
        order = list(range(nb))
        if p.two:
            order = [0, 2, 1, 3, 4] if nb == 5 else [0, 3, 1, 4, 2, 5]
            a("s_movk_i32 s3, 0x0101"); a(f"v_subrev_u32 v29, {WB}, v{vR}")
        for b in order:
            off = stage_off(p, nb, b); r0 = DR + 4*b
            lab = f"L_poll{nb}_{X}_{b}"
            if p.two and nb == 5 and b == 4: a("s_mov_b32 s3, 0x01010101")
            if p.poll:
                a(f"s_branch {lab}_in"); a.label(lab + "_s"); a(f"s_sleep {p.poll % 10}"); a.label(lab + "_in")
                a(f"ds_read_b32 v28, v5 offset:{4*b}"); a("s_waitcnt lgkmcnt(0)"); a("v_cmp_ne_u32 vcc, s3, v28"); a(f"s_cbranch_vccnz {lab}_s")
                a(f"ds_read_b128 v[{r0}:{r0+3}], v{vR} offset:{off-WB}" if off >= WB else f"ds_read_b128 v[{r0}:{r0+3}], v29 offset:{off}")
                a("s_waitcnt lgkmcnt(0)")
                a(f"buffer_store_dwordx4 v[{r0}:{r0+3}], v{vO}, s[24:27], s{90+b} offen {p.oflags}")
                st3(a, p, 1 + b, True)
                continue
            a.label(lab)
            a(f"ds_read_b32 v28, v5 offset:{4*b}")
            a(f"ds_read_b128 v[{r0}:{r0+3}], v{vR} offset:{off-WB}" if off >= WB else f"ds_read_b128 v[{r0}:{r0+3}], v29 offset:{off}")
            a("s_waitcnt lgkmcnt(0)")
            a("v_cmp_ne_u32 vcc, s3, v28")
            a(f"s_cbranch_vccnz {lab}")
            a(f"buffer_store_dwordx4 v[{r0}:{r0+3}], v{vO}, s[24:27], s{90+b} offen {p.oflags}")
            st3(a, p, 1 + b, True)
    for g in ([] if p.flags else groups(p, nb)):
        a("s_barrier")
        for b in g:
            off = ((b//2 + 1) % 3)*WSTAGE + (b % 2)*2048; r0 = DR + 4*b
            a(f"ds_read_b128 v[{r0}:{r0+3}], v{vR} offset:{off}")
        for k, b in enumerate(g):
            r0 = DR + 4*b
            a(f"s_waitcnt lgkmcnt({len(g)-1-k})")
            a(f"buffer_store_dwordx4 v[{r0}:{r0+3}], v{vO}, s[24:27], s{90+b} offen {p.oflags}")
    if p.stamps == 1: stamp(a, p, 5)
    stamp_out(a, p)
    a("s_endpgm")
    return a.text()

def gen(p):
    lds = p.NS*4096 + 3*WSTAGE + 512 + 256
    assert lds <= 163840
    a = Asm()
    stamp(a, p, 0)
    a("s_load_dwordx4 s[4:7], s[0:1], 0"); a("s_load_dwordx4 s[8:11], s[0:1], 16")
    if p.stamps:
        a("s_load_dwordx4 s[12:15], s[0:1], 32")
        if p.stamps != 3:
            for i in (1,2,4,5,6,7): a(f"s_mov_b32 s{60+2*i}, 0")
    a("v_lshrrev_b32 v1, 6, v0")
    if p.map == 0:
        a("s_and_b32 s56, s2, 7"); a("s_lshr_b32 s57, s2, 3"); a("s_lshl_b32 s56, s56, 5"); a("s_add_u32 s56, s56, s57")
        a("v_readfirstlane_b32 s32, v1")
        a("s_cmp_ge_u32 s2, 255"); a("s_cbranch_scc1 L_exit")
        a("s_mul_i32 s57, s56, 205"); a("s_lshr_b32 s57, s57, 10")
        a("s_mul_i32 s58, s57, 5"); a("s_sub_u32 s33, s56, s58")
        if p.rot & 1:
            a("s_add_u32 s58, s33, s57"); a("s_mul_i32 s59, s58, 205"); a("s_lshr_b32 s59, s59, 10"); a("s_mul_i32 s59, s59, 5")
            a("s_sub_u32 s35, s58, s59"); a(f"s_lshl_b32 s35, s35, {7 if p.half else 8}")
        elif p.rot & 4:
            a("s_mul_i32 s59, s57, 205"); a("s_lshr_b32 s59, s59, 10"); a("s_mul_i32 s59, s59, 5")
            a("s_sub_u32 s35, s57, s59"); a(f"s_lshl_b32 s35, s35, {7 if p.half else 8}")
        else: a("s_mov_b32 s35, 0")
        if p.rot & 3: a("s_mov_b32 s36, s33")
        else: a("s_mov_b32 s36, 0")
        if p.early:
            a("s_sub_u32 s58, s57, 1"); a("s_cmp_eq_u32 s57, 0"); a("s_cselect_b32 s57, 50, s58")
        a("s_mul_i32 s34, s57, 204800")
        a("s_cmp_eq_u32 s57, 50"); a("s_cbranch_scc1 L_six")
    else:
        a("s_lshr_b32 s56, s2, 3"); a("s_and_b32 s58, s2, 7")
        a("s_mul_i32 s57, s56, 205"); a("s_lshr_b32 s57, s57, 10")
        a("v_readfirstlane_b32 s32, v1")
        a("s_cmp_ge_u32 s2, 240"); a("s_cbranch_scc1 L_exit")
        a("s_mul_i32 s59, s57, 5"); a("s_sub_u32 s33, s56, s59")
        if p.rot & 1:
            a("s_add_u32 s35, s33, s57"); a("s_sub_u32 s59, s35, 5"); a("s_cmp_ge_u32 s35, 5"); a("s_cselect_b32 s35, s59, s35")
            a("s_cmp_eq_u32 s35, 5"); a("s_cselect_b32 s35, 0, s35"); a(f"s_lshl_b32 s35, s35, {7 if p.half else 8}")
        else: a("s_mov_b32 s35, 0")
        if p.rot & 3: a("s_mov_b32 s36, s33")
        else: a("s_mov_b32 s36, 0")
        a("s_mul_i32 s34, s58, 1310720"); a("s_mul_i32 s59, s57, 204800"); a("s_add_u32 s34, s34, s59")
        a("s_min_u32 s59, s57, 2"); a("s_mul_i32 s59, s59, 40960"); a("s_add_u32 s34, s34, s59")
        a("s_cmp_lt_u32 s57, 2"); a("s_cbranch_scc1 L_six")
    a("s_cmp_lt_u32 s32, 4"); a("s_cbranch_scc1 L_c5")
    a("s_cmp_ge_u32 s32, 8"); a("s_cbranch_scc1 L_b5")
    body = a.text() + producer(p, 5, 0) + "L_exit:\n  s_endpgm\nL_b5:\n" + producer(p, 5, 1) + "L_c5:\n" + (consumer2 if p.two else consumer)(p, 5)
    body += "L_six:\n  s_cmp_lt_u32 s32, 4\n  s_cbranch_scc1 L_c6\n  s_cmp_ge_u32 s32, 8\n  s_cbranch_scc1 L_b6\n"
    body += producer(p, 6, 0) + "L_b6:\n" + producer(p, 6, 1) + "L_c6:\n" + (consumer2 if p.two else consumer)(p, 6)
    hdr = open("standalone__structured_sparse_n_m__ragged.s.ref").read().split("; Override")[0]
    return hdr + f"""; Generated by my own generator script: tiles of 160(192) rows x 128 columns, 4 MFMA waves + 8 load/prune waves.
; @launch grid=({240 if p.map else 256},1,1) block=(768,1,1) lds={lds}
.amdgcn_target "amdgcn-amd-amdhsa--gfx950"
.text
.globl {KN}
.p2align 8
.type {KN},@function
{KN}:
{body}.section .rodata,"a"
.p2align 6
.amdhsa_kernel {KN}
  .amdhsa_next_free_vgpr 168
  .amdhsa_next_free_sgpr 100
  .amdhsa_accum_offset 168
  .amdhsa_group_segment_fixed_size 0
  .amdhsa_kernarg_size 48
  .amdhsa_user_sgpr_count 2
  .amdhsa_user_sgpr_kernarg_segment_ptr 1
  .amdhsa_system_sgpr_workgroup_id_x 1
.end_amdhsa_kernel
""", lds

if __name__ == "__main__":
    out = sys.argv[1]
    p = P()
    for kv in sys.argv[2:]:
        k, v = kv.split("=", 1)
        old = getattr(P, k)
        setattr(p, k, v.replace("+", " ") if isinstance(old, str) else int(v))
    s, lds = gen(p)
    open(out, "w").write(s)
    from mk import build
    build(out)
    print(out, "lds", lds, "lines", s.count("\n"))
```

```python
import sys
KN = "standalone__structured_sparse_n_m__ragged_kernel"

class P:
    NB = 5; NS = 27
    xflags = "nt"; wflags = ""; oflags = "sc1"
    rot = 1; stamps = 0; fill = 3; early = 1
    xlead = 3; xlead6 = 2
    cprio = 0; aprio = 0; bprio = 0; proprio = 1
    prebar = 1; b0 = 1; split = 46
    tail = "01,2,3,4"; tail6 = "01,23,4,5"
    diag = ""
    nomfma = 0; noprune = 0; noxread = 0; noload = 0
    ipf = 0; cy0 = 0; cy1 = 9; half = 0; map = 0; poll = 0; lags = ""; lags6 = ""; xp = 13; xp6 = 12; gate = 16; wrate = 1; estop = 1; two = 0; walt = 0; tst = 0; flags = 1; xv = 0; xwpos = 100; xreg = 0; now = 0; nox = 0; xb = 2; dprio = 0; nowrite = 0

WSTAGE = 16640
CBS = 4160

class Asm:
    def __init__(s): s.l = []
    def __call__(s, x): s.l.append("  " + x)
    def label(s, x): s.l.append(x + ":")
    def text(s): return "\n".join(s.l) + "\n"

S3 = [96] + [60+2*i for i in range(10)] + [98, 86, 88]
def st3(a, p, i, tail=False):
    if p.stamps == 3 and (tail == bool(p.tst) or i in (0, 10, 11, 12)): a(f"s_memtime s[{S3[i]}:{S3[i]+1}]")
def stamp(a, p, i):
    if p.stamps == 3:
        if i == 0: st3(a, p, 0); a("s_memrealtime s[88:89]")
        return
    if p.stamps: a(f"s_memrealtime s[{60+2*i}:{61+2*i}]")
def pstamp(a, p, i):
    if p.stamps == 2: stamp(a, p, i)
def bstamps(a, p, t):
    if not p.stamps or p.stamps == 3: return
    if p.stamps == 2:
        if t == 0: stamp(a, p, 1)
        return
    if t == 0: stamp(a, p, 1)
    if t == p.cy0: a("s_memtime s[72:73]")
    if t == 5: stamp(a, p, 2)
    if t == 9: stamp(a, p, 4)
    if t == p.cy1: a("s_memtime s[74:75]")
def stamp_out(a, p):
    if not p.stamps: return
    if p.stamps == 3:
        st3(a, p, 11)
        a("s_waitcnt vmcnt(0) lgkmcnt(0)"); st3(a, p, 12); a("s_waitcnt lgkmcnt(0)")
        a("s_mov_b32 s16, s14"); a("s_and_b32 s17, s15, 0xffff"); a("s_mov_b32 s18, 0x100000"); a("s_mov_b32 s19, 0x20000")
        a("s_lshl_b32 s56, s2, 4"); a("s_add_u32 s56, s56, s32"); a("s_lshl_b32 s56, s56, 6")
        for i in range(14): a(f"v_mov_b32 v{4+i}, s{S3[i]}")
        a("v_mov_b32 v3, s56"); a("v_mbcnt_lo_u32_b32 v2, -1, 0"); a("v_mbcnt_hi_u32_b32 v2, -1, v2"); a("s_nop 1"); a("v_cmp_eq_u32 vcc, 0, v2"); a("s_and_saveexec_b64 s[58:59], vcc")
        for i in range(4): a(f"buffer_store_dwordx4 v[{4+4*i}:{7+4*i}], v3, s[16:19], 0 offen offset:{16*i}")
        return
    a("s_waitcnt vmcnt(0) lgkmcnt(0)")
    a("s_memrealtime s[66:67]")
    a("s_waitcnt lgkmcnt(0)")
    if p.diag:
        i, j, K = map(int, p.diag.split(","))
        lab = f"L_spin{len(a.l)}_{id(a)%100000}"
        a(f"s_sub_u32 s56, s{60+2*j}, s{60+2*i}"); a(f"s_mul_i32 s56, s56, {K}") if K >= 0 else a(f"s_lshr_b32 s56, s56, {-K}"); a("s_min_u32 s56, s56, 20000")
        a.label(lab)
        a("s_memrealtime s[58:59]"); a("s_waitcnt lgkmcnt(0)"); a("s_sub_u32 s57, s58, s66"); a("s_cmp_lt_u32 s57, s56"); a(f"s_cbranch_scc1 {lab}")
        return
    a("s_mov_b32 s84, s14"); a("s_and_b32 s85, s15, 0xffff"); a("s_mov_b32 s86, 0x100000"); a("s_mov_b32 s87, 0x20000")
    a("s_lshl_b32 s56, s2, 4"); a("s_add_u32 s56, s56, s32"); a("s_lshl_b32 s56, s56, 5")
    for i in range(8): a(f"v_mov_b32 v{4+i}, s{60+2*i}")
    a("v_mov_b32 v3, s56"); a("v_mbcnt_lo_u32_b32 v2, -1, 0"); a("v_mbcnt_hi_u32_b32 v2, -1, v2"); a("s_nop 1"); a("v_cmp_eq_u32 vcc, 0, v2"); a("s_and_saveexec_b64 s[58:59], vcc")
    a("buffer_store_dwordx4 v[4:7], v3, s[84:87], 0 offen"); a("buffer_store_dwordx4 v[8:11], v3, s[84:87], 0 offen offset:16")

def srd(a, d, ptr, n):
    a(f"s_mov_b32 s{d}, s{ptr}"); a(f"s_and_b32 s{d+1}, s{ptr+1}, 0xffff"); a(f"s_mov_b32 s{d+2}, {n}"); a(f"s_mov_b32 s{d+3}, 0x20000")

def ktable(a, dst, c0, c1, unit, first):
    for c in range(c0, c1):
        if c == 0: a(f"s_mov_b32 s{dst}, s{first}")
        else:
            a(f"s_add_u32 s{dst+c}, s{dst+c-1}, {unit}"); a(f"s_cmp_eq_u32 s{dst+c}, s57"); a(f"s_cselect_b32 s{dst+c}, s58, s{dst+c}")
def xtable(a, p, c0, c1):
    if not p.half:
        a("s_mov_b32 s57, 1280"); a("s_mov_b32 s58, 0"); ktable(a, 40, c0, c1, 128, 35); return
    a("s_movk_i32 s57, 640"); a("s_mov_b32 s58, 0"); ktable(a, 40, c0, min(c1, 5), 128, 35)
    for c in range(max(c0, 5), c1): a(f"s_add_u32 s{40+c}, s{35+c}, 640")
def btable(a, nb):
    a("s_mul_i32 s50, s36, 40960"); a("s_add_u32 s50, s50, s34"); a(f"s_add_u32 s57, s34, {nb*40960}")
    for b in range(1, nb):
        a(f"s_add_u32 s{50+b}, s{49+b}, 40960"); a(f"s_cmp_eq_u32 s{50+b}, s57"); a(f"s_cselect_b32 s{50+b}, s34, s{50+b}")

def dma_voff(a, lane, wave_s, dst, t1, t2):
    a(f"v_lshrrev_b32 v{t1}, 3, v{lane}"); a(f"s_lshl_b32 s56, s{wave_s}, 3"); a(f"v_add_u32 v{t1}, s56, v{t1}")
    a(f"v_lshrrev_b32 v{t2}, 1, v{t1}"); a(f"v_xor_b32 v{t2}, v{t2}, v{lane}"); a(f"v_and_b32 v{t2}, 7, v{t2}")
    a(f"v_mul_u32_u24 v{t1}, 1280, v{t1}"); a(f"v_lshl_add_u32 v{dst}, v{t2}, 4, v{t1}")
    a(f"s_lshl_b32 s37, s{wave_s}, 10")

def slot(p, nb, b, c):
    if p.two: return ((c % (p.NS//nb))*nb + b)*4096
    return ((c*nb + b) % p.NS)*4096
def stage_off(p, nb, b):
    WB = p.NS*4096
    if not p.two: return WB + ((b//2 + 1) % 3)*WSTAGE + (b % 2)*2048
    A2 = 0 if nb == 5 else 12*4096
    if nb == 5: return A2 if b == 4 else WB + (1 + b//2)*WSTAGE + (b % 2)*2048
    r, j = divmod(b, 3)
    return A2 + r*2048 if j == 2 else WB + (1 + r)*WSTAGE + j*2048
def sched(p, nb):
    lg = [int(ch) for ch in (p.lags if nb == 5 else p.lags6)] or [0]*nb
    bc = []
    for t in range(9):
        for b in sorted(range(nb), key=lambda b: (-lg[b], b)):
            if t - lg[b] >= 0: bc.append((b, t - lg[b], t))
    for b in sorted(range(nb), key=lambda b: (lg[b], b)):
        for c in range(9 - lg[b], 10): bc.append((b, c, 9))
    mf = [(b, c, s, t) for b, c, t in bc for s in range(4)]
    if max(lg) == 0: P = xl(p, nb)*nb
    else: P = p.xp if nb == 5 else p.xp6
    at = [-1 if i < P else (i - P)//nb for i in range(len(bc))]
    for i, (b, c, t) in enumerate(bc):
        assert at[i] <= max(-1, t - 2), (i, at[i], t)
        if i >= p.NS: assert at[i] >= bc[i - p.NS][2] + 2, (i, at[i], bc[i - p.NS])
    return mf, bc, at, max(2, max(lg) + 1)
def dma_i(p, nb, bc, i, vD):
    b, c, t = bc[i]
    if p.noload: return []
    return [f"s_add_u32 m0, s37, {(i % p.NS)*4096}", f"s_add_u32 s56, s{50+b}, s{40+c}",
            f"buffer_load_dwordx4 v{vD}, s[16:19], s56 offen {p.xflags} lds"]
def dma_txt(p, nb, b, c, vD):
    if p.noload: return []
    if p.nox: return [f"buffer_load_dword v100, v{vD}, s[16:19], 0 offen offset:4095"] if c < 0 else ["s_nop 0"]
    if p.xreg: return [f"s_add_u32 s56, s{50+b}, s{40+c}", f"buffer_load_dwordx4 v[{100+4*b}:{103+4*b}], v{vD}, s[16:19], s56 offen {p.xflags}"]
    return [f"s_add_u32 m0, s37, {slot(p, nb, b, c)}", f"s_add_u32 s56, s{50+b}, s{40+c}",
            f"buffer_load_dwordx4 v{vD}, s[16:19], s56 offen {p.xflags} lds"]
def xl(p, nb):
    v = p.xlead if nb == 5 else p.xlead6
    assert (not p.two or v + 2 <= p.NS//nb) and (v + 2 - p.xv)*nb <= p.NS and v*nb <= p.NS and (p.xv < 2 or v >= p.xv + 1), (v, nb)
    return v
def groups(p, nb): return [[int(ch) for ch in g] for g in (p.tail if nb == 5 else p.tail6).split(",")]

def consumer(p, nb):
    a = Asm(); NB = p.NB; XL = xl(p, nb)
    WB = p.NS*4096; BIAS = WB + 3*WSTAGE
    ACC = lambda b: 16*b
    mf, bc, at, nW = sched(p, nb)
    idx_of = {(b, c): i for i, (b, c, _) in enumerate(bc)}
    WF = 128 - 16*nW; XF = 128; VA = XF + 4*NB
    assert WF >= 16*nb
    vX = [VA+i for i in range(4)]; vW = VA+4; vD = VA+5; vO = VA+6; vT = VA+7
    assert vT < 168, vT
    FL = BIAS + 512
    vm = []
    a("v_and_b32 v1, 63, v0")
    pstamp(a, p, 2)
    dma_voff(a, 1, 32, vD, 2, 3)
    btable(a, nb)
    pro = [i for i in range(len(bc)) if at[i] == -1]
    xtable(a, p, 0, max(bc[i][1] for i in pro) + 1)
    a("s_waitcnt lgkmcnt(0)")
    pstamp(a, p, 5)
    srd(a, 16, 4, 10485760)
    if p.prebar: a("s_barrier")
    for i in pro:
        for x in dma_i(p, nb, bc, i, vD): a(x)
        vm.append(bc[i][2])
    pstamp(a, p, 6)
    a("v_and_b32 v2, 31, v1"); a("v_lshrrev_b32 v3, 5, v1"); a("v_lshrrev_b32 v4, 1, v2"); a("v_and_b32 v4, 7, v4")
    a("v_xor_b32 v4, v4, v3"); a("v_lshlrev_b32 v4, 4, v4"); a(f"v_lshl_add_u32 v{vX[0]}, v2, 7, v4")
    for s in range(1, 4): a(f"v_xor_b32 v{vX[s]}, {s*32}, v{vX[0]}")
    a("v_lshlrev_b32 v4, 9, v3"); a("v_bfe_u32 v5, v1, 4, 1"); a("v_lshl_add_u32 v4, v5, 5, v4")
    a("v_bfe_u32 v5, v1, 2, 2"); a("v_lshl_add_u32 v4, v5, 6, v4"); a("v_and_b32 v5, 3, v1"); a("v_lshl_add_u32 v4, v5, 3, v4")
    a(f"s_mul_i32 s56, s32, {CBS}"); a(f"s_add_u32 s56, s56, {WB}"); a(f"v_add_u32 v{vW}, s56, v4")
    a("v_bfe_u32 v5, v1, 1, 2"); a("v_xor_b32 v5, v5, v3"); a("v_lshlrev_b32 v5, 4, v5"); a("v_lshl_add_u32 v5, v2, 6, v5")
    a(f"v_add_u32 v{vO}, s56, v5")
    a("s_lshl_b32 s56, s32, 7"); a(f"s_add_u32 s56, s56, {BIAS}"); a("v_lshlrev_b32 v4, 4, v3"); a(f"v_add_u32 v{vT}, s56, v4")
    if p.cprio: a(f"s_setprio {p.cprio}")
    lastW = {}
    for k, (b, c, s, u) in enumerate(mf): lastW[(c, s)] = k
    lg = []
    def wait_lds(tags):
        idx = max([k for k, t_ in enumerate(lg) if t_ in tags], default=-1)
        if idx >= 0:
            a(f"s_waitcnt lgkmcnt({len(lg)-1-idx})"); del lg[:idx+1]
    def lds(txt, tagi):
        if len(lg) >= 15: wait_lds([lg[0]])
        a(txt); lg.append(tagi)
    xbase = [0]*4
    def xread(j):
        b, c, s, u = mf[j]
        off = (idx_of[(b, c)] % p.NS)*4096
        hi = off & ~0xffff
        if xbase[s] != hi:
            a(f"v_xor_b32 v{vX[s]}, 0x10000, v{vX[s]}"); xbase[s] = hi
        r = XF + 4*(j % NB)
        if not p.noxread: lds(f"ds_read_b128 v[{r}:{r+3}], v{vX[s]} offset:{off & 0xffff}", ("x", j))
    def wread(c, s):
        for q in range(2):
            r = WF + 16*(c % nW) + 4*s + 2*q
            lds(f"ds_read_b64_tr_b16 v[{r}:{r+1}], v{vW} offset:{(c%3)*WSTAGE + s*1024 + q*256}", ("w", c, s))
    cur = [-1]
    def boundary(t):
        need = [k for k, c in enumerate(vm) if c <= t]
        if need and not p.noload and not p.nox:
            a(f"s_waitcnt vmcnt({len(vm)-1-max(need)})"); del vm[:max(need)+1]
        wait_lds([x for x in lg if x[0] == "w" and x[1] == t-1])
        st3(a, p, 1+t)
        a("s_barrier")
        bstamps(a, p, t)
        cur[0] = t
    fillq = []
    grp = groups(p, nb); done = set(); gi = [0]
    def epilogue_items(b):
        A = ACC(b); off = ((b//2 + 1) % 3)*WSTAGE + (b % 2)*2048
        it = [f"v_cvt_pk_bf16_f32 v{A+k}, v{A+2*k}, v{A+2*k+1}" for k in range(8)]
        it = it[:4] + it[4:6] + [f"v_permlane32_swap_b32 v{A}, v{A+2}", f"v_permlane32_swap_b32 v{A+1}, v{A+3}", it[6],
               ("lds", f"ds_write_b128 v{vO}, v[{A}:{A+3}] offset:{off}", ("o", b)), it[7], f"v_xor_b32 v{A+8}, 32, v{vO}", "s_nop 0",
               f"v_permlane32_swap_b32 v{A+4}, v{A+6}", f"v_permlane32_swap_b32 v{A+5}, v{A+7}",
               ("lds", f"ds_write_b128 v{A+8}, v[{A+4}:{A+7}] offset:{off}", ("o", b))]
        if p.flags: it.append(("lds", f"ds_write_b8 v{vD}, v{vT} offset:{4*b}", ("f", b)))
        else: it.append(("done", b))
        return it
    pend = []
    def tailbar():
        g = grp[gi[0]]
        wait_lds([("o", b) for b in g]); a("s_barrier"); gi[0] += 1
    def emit_fill(n, force=False):
        k = 0
        if pend and not force:
            pend[0] -= 1
            if pend[0] <= 0: pend.pop(0); tailbar()
        while fillq and k < n:
            it = fillq[0]
            if isinstance(it, tuple) and it[0] == "gate":
                have = sum(8 if "v_mfma" in x else 1 for x in a.l[it[1]:])
                if have < p.gate:
                    if not force: return
                    if have < 12: a(f"s_nop {12-have-1}")
                fillq.pop(0); continue
            fillq.pop(0)
            if isinstance(it, str): a(it); k += 1
            elif it[0] == "lds":
                lds(it[1], it[2]); k += 1
                if it[2][0] == "f": st3(a, p, 1 + it[2][1], True)
            elif it[0] == "done":
                done.add(it[1])
                g = gi[0] + len(pend)
                if g < len(grp) and all(b in done for b in grp[g]):
                    if force:
                        while pend: pend.pop(0); tailbar()
                        tailbar()
                    else: pend.append(2)
    boundary(0)
    wread(0, 0)
    for q in range(4):
        r = ACC(nb-1) + 4*q
        lds(f"ds_read_b128 v[{r}:{r+3}], v{vT} offset:{q*32}", ("b",))
    nxt = [0]; wq = [(0, 1), (0, 2), (0, 3)]
    def advance(upto):
        while nxt[0] < min(upto, len(mf)):
            c = mf[nxt[0]][3]
            if cur[0] < c:
                boundary(c); wq.extend((c, s) for s in range(4))
            xread(nxt[0]); nxt[0] += 1
            if wq and lastW.get((wq[0][0] - nW, wq[0][1]), -1) < upto - NB: wread(*wq.pop(0))
    advance(NB)
    for j, (b, c, s, u) in enumerate(mf):
        if p.flags and j == 8: a(f"s_add_u32 s56, s32, {FL}"); a(f"v_mov_b32 v{vD}, s56"); a(f"v_mov_b32 v{vT}, 1")
        while (c, s) in wq:
            assert lastW.get((wq[0][0] - nW, wq[0][1]), -1) < j
            wread(*wq.pop(0))
        wait_lds([("x", j), ("w", c, s), ("b",)])
        A = ACC(b); wr = WF + 16*(c % nW) + 4*s; xr = XF + 4*(j % NB)
        C = ACC(nb-1) if (c == 0 and s == 0) else A
        if not p.nomfma: a(f"v_mfma_f32_32x32x16_bf16 v[{A}:{A+15}], v[{wr}:{wr+3}], v[{xr}:{xr+3}], v[{C}:{C+15}]")
        if c == 9 and s == 3:
            fillq.append(("gate", len(a.l))); fillq.extend(epilogue_items(b))
        advance(j + 1 + NB)
        emit_fill(p.fill)
    if p.stamps == 1: stamp(a, p, 5)
    emit_fill(100000, True)
    while pend: pend.pop(0); tailbar()
    assert p.flags or gi[0] == len(grp)
    stamp_out(a, p)
    a("s_endpgm")
    return a.text()

def consumer2(p, nb):
    a = Asm(); NB = p.NB; XL = xl(p, nb)
    WB = p.NS*4096; BIAS = WB + 3*WSTAGE; FL = BIAS + 512
    RB = nb//2
    WF = 96; XF = 128; VA = XF + 4*NB
    vX = [VA+i for i in range(4)]; vY = [VA+4+i for i in range(4)]
    vW = [VA+8, VA+9]; vO = [VA+10, VA+11]; vD = VA+12; vT = [VA+13, VA+14]; vF = VA+15
    assert vF < 168, vF
    vm = []
    a("v_and_b32 v1, 63, v0")
    pstamp(a, p, 2)
    dma_voff(a, 1, 32, vD, 2, 3)
    btable(a, nb)
    a("s_mov_b32 s57, 1280"); a("s_mov_b32 s58, 0")
    ktable(a, 40, 0, XL, 128, 35)
    a("s_waitcnt lgkmcnt(0)")
    pstamp(a, p, 5)
    srd(a, 16, 4, 10485760)
    if p.prebar: a("s_barrier")
    for c in range(XL):
        for b in range(nb):
            for x in dma_txt(p, nb, b, c, vD): a(x)
            vm.append(c)
    pstamp(a, p, 6)
    a("s_lshr_b32 s20, s32, 1"); a("s_and_b32 s21, s32, 1")
    a("s_lshl_b32 s22, s21, 1"); a("s_add_u32 s22, s22, s20"); a("s_xor_b32 s23, s22, 1")
    a("v_and_b32 v2, 31, v1"); a("v_lshrrev_b32 v3, 5, v1"); a("v_lshrrev_b32 v4, 1, v2"); a("v_and_b32 v4, 7, v4")
    a("v_xor_b32 v4, v4, v3"); a("v_lshlrev_b32 v4, 4, v4"); a(f"v_lshl_add_u32 v{vY[0]}, v2, 7, v4")
    for s in range(1, 4): a(f"v_xor_b32 v{vY[s]}, {s*32}, v{vY[0]}")
    a(f"s_mul_i32 s56, s20, {RB*4096}")
    for s in range(4): a(f"v_add_u32 v{vX[s]}, s56, v{vY[s]}")
    a("v_lshlrev_b32 v4, 9, v3"); a("v_bfe_u32 v5, v1, 4, 1"); a("v_lshl_add_u32 v4, v5, 5, v4")
    a("v_bfe_u32 v5, v1, 2, 2"); a("v_lshl_add_u32 v4, v5, 6, v4"); a("v_and_b32 v5, 3, v1"); a("v_lshl_add_u32 v4, v5, 3, v4")
    a("v_bfe_u32 v5, v1, 1, 2"); a("v_xor_b32 v5, v5, v3"); a("v_lshlrev_b32 v5, 4, v5"); a("v_lshl_add_u32 v5, v2, 6, v5")
    a("v_lshlrev_b32 v6, 4, v3")
    for q in range(2):
        a(f"s_mul_i32 s24, s{22+q}, {CBS}"); a(f"s_add_u32 s25, s24, {WB}"); a(f"v_add_u32 v{vW[q]}, s25, v4")
        a(f"v_add_u32 v{vO[q]}, s24, v5")
        a(f"s_lshl_b32 s56, s{22+q}, 7"); a(f"s_add_u32 s56, s56, {BIAS}"); a(f"v_add_u32 v{vT[q]}, s56, v6")
    a(f"s_mul_i32 s26, s20, {WSTAGE}"); a(f"s_add_u32 s26, s26, {WB + WSTAGE}")
    a(f"s_lshl_b32 s27, s20, 11")
    if nb == 6: a(f"s_add_u32 s27, s27, {12*4096}")
    else: a("s_mov_b32 s27, 0")
    a(f"s_mul_i32 s28, s20, {4*RB}"); a("s_add_u32 s28, s28, s21"); a(f"s_add_u32 s28, s28, {FL}"); a(f"s_add_u32 s29, s32, {FL+16}")
    if p.cprio: a(f"s_setprio {p.cprio}")
    NX = 3
    tiles = lambda j: [(2*j, 0), (2*j+1, 1)] if (nb == 6 or j < 2) else [(4, 0)]
    hold = [4, 5 if nb == 6 else 3]
    fr = []; mf = []
    for c in range(10):
        order = [(j, s) for s in range(4) for j in range(NX)] if c < 9 else [(j, s) for j in range(NX) for s in range(4)]
        for j, s in order:
            fr.append((j, c, s))
            for i, q in tiles(j): mf.append((i, q, c, s, len(fr)-1))
    lastW = {}; lastF = {}; lastA = {}
    for k, (i, q, c, s, f) in enumerate(mf): lastW[(c, s, q)] = k; lastF[f] = k; lastA[i] = k
    lg = []
    def wait_lds(tags):
        idx = max([k for k, t_ in enumerate(lg) if t_ in tags], default=-1)
        if idx >= 0:
            a(f"s_waitcnt lgkmcnt({len(lg)-1-idx})"); del lg[:idx+1]
    def lds(txt, tagi):
        if len(lg) >= 15: wait_lds([lg[0]])
        a(txt); lg.append(tagi)
    xbase = {}
    def xread(f):
        j, c, s = fr[f]
        shared = nb == 5 and j == 2
        v = vY[s] if shared else vX[s]
        off = slot(p, nb, 4 if shared else j, c)
        hi = off & ~0xffff
        if xbase.get(v, 0) != hi:
            a(f"v_xor_b32 v{v}, 0x10000, v{v}"); xbase[v] = hi
        r = XF + 4*(f % NB)
        if not p.noxread: lds(f"ds_read_b128 v[{r}:{r+3}], v{v} offset:{off & 0xffff}", ("x", f))
    def wread(c, s, q):
        for u in range(2):
            r = WF + 16*q + 4*s + 2*u
            lds(f"ds_read_b64_tr_b16 v[{r}:{r+1}], v{vW[q]} offset:{(c%3)*WSTAGE + s*1024 + u*256}", ("w", c, s, q))
    cur = [-1]
    def boundary(t):
        need = [k for k, c in enumerate(vm) if c <= t]
        if need and not p.noload and not p.nox:
            a(f"s_waitcnt vmcnt({len(vm)-1-max(need)})"); del vm[:max(need)+1]
        st3(a, p, 1+t)
        a("s_barrier")
        bstamps(a, p, t)
        cur[0] = t
    fillq = []
    def epilogue_items(i, q):
        A = 16*i; j = i//2
        base = "s27" if j == 2 else "s26"; off = 0 if j == 2 else j*2048
        it = [f"v_cvt_pk_bf16_f32 v{A+k}, v{A+2*k}, v{A+2*k+1}" for k in range(8)]
        it += [f"v_add_u32 v{A+9}, {base}, v{vO[q]}", f"v_xor_b32 v{A+8}, 32, v{A+9}",
               f"v_permlane32_swap_b32 v{A}, v{A+2}", f"v_permlane32_swap_b32 v{A+1}, v{A+3}",
               ("lds", f"ds_write_b128 v{A+9}, v[{A}:{A+3}] offset:{off}", ("o", i)),
               f"v_permlane32_swap_b32 v{A+4}, v{A+6}", f"v_permlane32_swap_b32 v{A+5}, v{A+7}", ("stop",),
               ("lds", f"ds_write_b128 v{A+8}, v[{A+4}:{A+7}] offset:{off}", ("o", i)), ("stop",)]
        if nb == 5 and j == 2: it += [f"v_mov_b32 v{vF}, s29", ("lds", f"ds_write_b8 v{vF}, v{vD}", ("f", j))]
        elif q == 1: it.append(("lds", f"ds_write_b8 v{vF}, v{vD} offset:{4*j}", ("f", j)))
        return it
    def emit_fill(n, force=False):
        k = 0
        while fillq and k < n:
            it = fillq[0]
            if isinstance(it, tuple) and it[0] == "gate":
                have = len(a.l) - it[1]
                if have < 12:
                    if not force: return
                    a(f"s_nop {12-have-1}")
                fillq.pop(0); continue
            fillq.pop(0)
            if isinstance(it, str): a(it); k += 1
            elif it[0] == "stop":
                if not force and p.estop: return
            elif it[0] == "lds":
                lds(it[1], it[2]); k += 1
                if it[2][0] == "f": st3(a, p, 1 + it[2][1], True)
    boundary(0)
    wread(0, 0, 0); wread(0, 0, 1)
    nxt = [0]; wq = [(0, s, q) for s in range(1, 4) for q in range(2)]
    xread(0); nxt[0] = 1
    for q in range(2):
        for u in range(4):
            r = 16*hold[q] + 4*u
            lds(f"ds_read_b128 v[{r}:{r+3}], v{vT[q]} offset:{u*32}", ("b", q))
    def advance(k):
        while nxt[0] < len(fr) and (nxt[0] < NB or lastF[nxt[0]-NB] < k):
            c = fr[nxt[0]][1]
            if cur[0] < c:
                boundary(c); wq.extend((c, s, q) for s in range(4) for q in range(2))
            xread(nxt[0]); nxt[0] += 1
        n = 0
        while wq and n < p.wrate and lastW.get((wq[0][0]-1, wq[0][1], wq[0][2]), -1) < k:
            wread(*wq.pop(0)); n += 1
    advance(0)
    for k, (i, q, c, s, f) in enumerate(mf):
        if k == 12: a(f"v_mov_b32 v{vF}, s28"); a(f"v_mov_b32 v{vD}, 1")
        while (c, s, q) in wq: wread(*wq.pop(0))
        wait_lds([("x", f), ("w", c, s, q), ("b", q)])
        A = 16*i; wr = WF + 16*q + 4*s; xr = XF + 4*(f % NB)
        C = 16*hold[q] if (c == 0 and s == 0) else A
        if not p.nomfma: a(f"v_mfma_f32_32x32x16_bf16 v[{A}:{A+15}], v[{wr}:{wr+3}], v[{xr}:{xr+3}], v[{C}:{C+15}]")
        if k == lastA[i]:
            fillq.append(("gate", len(a.l))); fillq.extend(epilogue_items(i, q))
        advance(k + 1)
        emit_fill(p.fill)
    if p.stamps == 1: stamp(a, p, 5)
    emit_fill(100000, True)
    stamp_out(a, p)
    a("s_endpgm")
    return a.text()

def prune_all(S, T):
    o = []
    for j0 in (0, 2):
        js = (j0, j0+1)
        A = lambda j, r: T + (j-j0)*8 + r
        U = lambda j, k: T + (j-j0)*8 + 4 + k
        for r in range(4):
            for j in js: o.append(f"v_and_b32 v{A(j,r)}, s38, v{S+4*r+j}")
        for j in js: o.append(f"v_pk_max_u16 v{U(j,0)}, v{A(j,0)}, v{A(j,1)}")
        for j in js: o.append(f"v_pk_min_u16 v{U(j,1)}, v{A(j,0)}, v{A(j,1)}")
        for j in js: o.append(f"v_pk_max_u16 v{U(j,2)}, v{A(j,2)}, v{A(j,3)}")
        for j in js: o.append(f"v_pk_min_u16 v{U(j,3)}, v{A(j,2)}, v{A(j,3)}")
        for j in js: o.append(f"v_pk_min_u16 v{U(j,0)}, v{U(j,0)}, v{U(j,2)}")
        for j in js: o.append(f"v_pk_max_u16 v{U(j,1)}, v{U(j,1)}, v{U(j,3)}")
        for j in js: o.append(f"v_pk_max_u16 v{U(j,0)}, v{U(j,0)}, v{U(j,1)}")
        for r in range(4):
            for j in js: o.append(f"v_pk_sub_i16 v{A(j,r)}, v{A(j,r)}, v{U(j,0)}")
        for r in range(4):
            for j in js: o.append(f"v_pk_ashrrev_i16 v{A(j,r)}, 15, v{A(j,r)} op_sel_hi:[0,1]")
        for r in range(4):
            for j in js: o.append(f"v_bfi_b32 v{S+4*r+j}, v{A(j,r)}, 0, v{S+4*r+j}")
    return o

def producer(p, nb, X):
    a = Asm(); XL = xl(p, nb)
    WB = p.NS*4096; BIAS = WB + 3*WSTAGE
    vG = 1; vS = 2; vR = 3; vO = 4; vD = 7; T = 8; ST = 32; DR = 64
    WK = 80
    prio = p.aprio if X == 0 else p.bprio
    if X == 0 and p.proprio: a(f"s_setprio {p.proprio}")
    elif prio: a(f"s_setprio {prio}")
    a(f"s_sub_u32 s39, s32, {4+4*X}"); a("v_and_b32 v6, 63, v0")
    pstamp(a, p, 2)
    a("v_lshrrev_b32 v24, 4, v6"); a("s_lshl_b32 s56, s39, 2"); a("v_add_u32 v24, s56, v24")
    a("v_and_b32 v25, 15, v6"); a("v_mul_u32_u24 v9, 5120, v24"); a(f"v_lshl_add_u32 v{vG}, v25, 4, v9")
    a("s_lshl_b32 s59, s33, 8")
    if p.half:
        xtable(a, p, 0, 1 + X)
        a(f"s_mul_i32 s56, s{40+X}, 640"); a(f"s_add_u32 s{WK}, s56, s59")
    else:
        if X: a("s_add_u32 s58, s59, 81920")
        else: a("s_mov_b32 s58, s59")
        a("s_mul_i32 s56, s35, 640"); a(f"s_add_u32 s{WK}, s56, s58")
    if X == 0: a("v_lshlrev_b32 v10, 2, v6")
    a("s_waitcnt lgkmcnt(0)")
    pstamp(a, p, 5)
    srd(a, 20, 6, 819200)
    vm = []
    SR = lambda c: ST + 16*((c//2) % 2)
    def wload1(c, r):
        vm.append(("w", c))
        if p.noload or p.now: return []
        return [f"buffer_load_dwordx4 v[{SR(c)+4*r}:{SR(c)+4*r+3}], v{vG}, s[20:23], s{WK+c//2} offen offset:{r*1280} {p.wflags}"]
    XR = lambda b, c: 96 + 24*((c//2) % 2) + 4*b
    def xdma(b, c):
        vm.append(("x", c))
        if p.xv: return [f"s_add_u32 s56, s{50+b}, s{40+c}", f"buffer_load_dwordx4 v[{XR(b,c)}:{XR(b,c)+3}], v{vD}, s[16:19], s56 offen {p.xflags}"]
        return dma_txt(p, nb, b, c, vD)
    def xwr(c):
        if not p.xv or c >= 10 or c < XL: return []
        def one(b):
            if b == 0: wait_vm(lambda t_: t_ == ("x", c))
            off = slot(p, nb, b, c)
            return [f"ds_write_b128 v{30 + (off >> 16)}, v[{XR(b,c)}:{XR(b,c)+3}] offset:{off & 0xffff}"]
        return [(lambda b=b: one(b)) for b in range(nb)]
    def emit(l):
        for y in l: a(y)
    if X == 0:
        for r in range(4): emit(wload1(0, r))
        srd(a, 28, 8, 1280)
        a("buffer_load_dword v27, v10, s[28:31], s59 offen"); vm.append("bias")
        if p.prebar: a("s_barrier")
    else:
        if p.prebar: a("s_barrier")
        for r in range(4): emit(wload1(1, r))
    if p.half:
        xtable(a, p, 1 + X, 10)
        for k in range(1, 5): a(f"s_mul_i32 s56, s{40+X+2*k}, 640"); a(f"s_add_u32 s{WK+k}, s56, s59")
    else:
        a("s_add_u32 s57, s58, 819200")
        ktable(a, WK, 1, 5, 163840, WK)
    pstamp(a, p, 6)
    a("s_mov_b32 s38, 0x7fff7fff")
    srd(a, 16, 4, 10485760)
    dma_voff(a, 6, 39, vD, 12, 13)
    btable(a, nb)
    if not p.half: xtable(a, p, 0, 10)
    for b in range(nb): a(f"s_add_u32 s{90+b}, s{50+b}, s59")
    srd(a, 24, 10, 10485760)
    a("v_lshrrev_b32 v9, 2, v25"); a(f"v_mul_u32_u24 v9, {CBS}, v9"); a("v_lshl_add_u32 v14, v24, 8, v9"); a("v_and_b32 v12, 3, v25")
    a("v_lshl_add_u32 v14, v12, 4, v14"); a(f"v_add_u32 v{vS}, {WB}, v14")
    a("v_lshrrev_b32 v13, 4, v6"); a("s_lshl_b32 s56, s39, 3")
    if X: a("s_add_u32 s56, s56, 4")
    a("v_add_u32 v13, s56, v13")
    a("v_lshrrev_b32 v14, 1, v13"); a("v_xor_b32 v14, v14, v12"); a("v_and_b32 v14, 3, v14"); a("v_lshlrev_b32 v14, 4, v14")
    a("v_lshl_add_u32 v14, v13, 6, v14"); a("v_add_u32 v14, v14, v9"); a(f"v_add_u32 v{vR}, {WB}, v14")
    a("v_mul_u32_u24 v13, 1280, v13"); a(f"v_lshl_add_u32 v{vO}, v25, 4, v13")
    if X == 0: a("v_lshlrev_b32 v26, 3, v6"); a(f"v_add_u32 v26, {BIAS}, v26")
    if p.flags:
        a(f"v_mov_b32 v5, {BIAS + 512}"); a("s_mov_b32 s3, 0x01010101")
        if X == 1: a("v_lshl_add_u32 v28, v6, 2, v5"); a("v_mov_b32 v29, 0"); a("ds_write_b32 v28, v29")
    if p.xv: a("v_lshlrev_b32 v30, 4, v6"); a("v_add_u32 v30, s37, v30"); a("v_add_u32 v31, 0x10000, v30")
    def wait_vm(pred):
        idx = max([k for k, t_ in enumerate(vm) if pred(t_)], default=-1)
        if idx >= 0:
            n = len(vm)-1-idx
            if p.noload: n = 0
            if p.now: n = sum(1 for t_ in vm[idx+1:] if t_[0] != "w")
            if p.nox: n = sum(1 for t_ in vm[idx+1:] if t_[0] != "x")
            a(f"s_waitcnt vmcnt({n})"); del vm[:idx+1]
    def pr(c): return [] if p.noprune else prune_all(SR(c), T)
    def writes(c, only=None):
        if p.nowrite: return
        for r in (range(4) if only is None else [only]): a(f"ds_write_b128 v{vS}, v[{SR(c)+4*r}:{SR(c)+4*r+3}] offset:{(c%3)*WSTAGE + r*64}")
    def stream(valu, mem):
        n = len(mem); k = 0
        for i, x in enumerate(valu):
            while k < n and i * n >= k * len(valu):
                emit(mem[k]()); k += 1
            a(x)
        while k < n:
            emit(mem[k]()); k += 1
    wl = lambda c: [(lambda r=r: wload1(c, r)) for r in range(4)] if c < 10 else []
    xs = lambda c: [(lambda b=b: xdma(b, c)) for b in range(nb)] if c < 10 else []
    if not p.two and not p.xv:
        mf_, bc, at, nW = sched(p, nb)
        def xdi(i):
            vm.append(("x", bc[i][2])); return dma_i(p, nb, bc, i, vD)
        xs = lambda c: [(lambda i=i: xdi(i)) for i in range(len(bc)) if at[i] == c - XL]
    rest = []
    if X == 0:
        wait_vm(lambda t_: t_ == ("w", 0))
        pstamp(a, p, 7)
        stream(pr(0), wl(2))
        writes(0)
        wait_vm(lambda t_: t_ == "bias")
        a("v_lshlrev_b32 v28, 16, v27"); a("v_and_b32 v29, 0xffff0000, v27"); a("ds_write_b64 v26, v[28:29]")
        if p.proprio != prio: a(f"s_setprio {prio}")
    else:
        if p.b0:
            wait_vm(lambda t_: t_ == ("w", 1))
            pstamp(a, p, 7)
            v = pr(1); stream(v[:p.split], wl(3)); rest = v[p.split:]
        else:
            stream([], wl(3)); rest = pr(1)
    late = [0]
    for t in range(10):
        if not p.xv: wait_vm(lambda t_: t_[0] == "x" and t_[1] <= t)
        a(f"s_waitcnt lgkmcnt({late[0]})"); late[0] = 0
        st3(a, p, 1+t)
        a("s_barrier")
        bstamps(a, p, t)
        if t % 2 == X:
            c = t + 2
            xw = xwr(t - 1 + XL) if p.xv == 1 else []
            if p.xv == 3:
                xw = xwr(t - 3 + XL); m = []
                w4 = wl(c+2) if c < 10 else []
                while xw or w4:
                    if xw: m.append(xw.pop(0))
                    if w4: m.append(w4.pop(0))
                if c < 10:
                    wait_vm(lambda t_: t_ == ("w", c))
                    v = pr(c); stream(v[:p.split], m); rest = v[p.split:]
                else: stream([], m)
            elif c < 10:
                wait_vm(lambda t_: t_ == ("w", c))
                v = pr(c); v1 = v[:p.split]; rest = v[p.split:]
                k = len(v1)*p.xwpos//100
                w4 = wl(c+2); kw = (len(w4)*p.xwpos + 99)//100
                stream(v1[:k], w4[:kw]); stream(v1[k:], xw + w4[kw:])
            else: stream([], xw)
            if xw and XL >= 3: late[0] = len(xw)
        else:
            c = t + 1
            if c < 10:
                wait_vm(lambda t_: t_ == ("w", c))
                if p.dprio: a(f"s_setprio {p.dprio}")
                x = xs(t+XL)
                if p.xv == 2: stream([], xwr(t - 2 + XL))
                stream(rest, x[:p.xb])
                x = x[p.xb:]
                if p.walt:
                    for r in range(4):
                        writes(c, r)
                        if x: emit(x.pop(0)())
                else: writes(c)
                if p.dprio: a(f"s_setprio {prio}")
                stream([], x)
    if p.flags:
        order = list(range(nb))
        if p.two:
            order = [0, 2, 1, 3, 4] if nb == 5 else [0, 3, 1, 4, 2, 5]
            a("s_movk_i32 s3, 0x0101"); a(f"v_subrev_u32 v29, {WB}, v{vR}")
        for b in order:
            off = stage_off(p, nb, b); r0 = DR + 4*b
            lab = f"L_poll{nb}_{X}_{b}"
            if p.two and nb == 5 and b == 4: a("s_mov_b32 s3, 0x01010101")
            if p.poll:
                a(f"s_branch {lab}_in"); a.label(lab + "_s"); a(f"s_sleep {p.poll % 10}"); a.label(lab + "_in")
                a(f"ds_read_b32 v28, v5 offset:{4*b}"); a("s_waitcnt lgkmcnt(0)"); a("v_cmp_ne_u32 vcc, s3, v28"); a(f"s_cbranch_vccnz {lab}_s")
                a(f"ds_read_b128 v[{r0}:{r0+3}], v{vR} offset:{off-WB}" if off >= WB else f"ds_read_b128 v[{r0}:{r0+3}], v29 offset:{off}")
                a("s_waitcnt lgkmcnt(0)")
                a(f"buffer_store_dwordx4 v[{r0}:{r0+3}], v{vO}, s[24:27], s{90+b} offen {p.oflags}")
                st3(a, p, 1 + b, True)
                continue
            a.label(lab)
            a(f"ds_read_b32 v28, v5 offset:{4*b}")
            a(f"ds_read_b128 v[{r0}:{r0+3}], v{vR} offset:{off-WB}" if off >= WB else f"ds_read_b128 v[{r0}:{r0+3}], v29 offset:{off}")
            a("s_waitcnt lgkmcnt(0)")
            a("v_cmp_ne_u32 vcc, s3, v28")
            a(f"s_cbranch_vccnz {lab}")
            a(f"buffer_store_dwordx4 v[{r0}:{r0+3}], v{vO}, s[24:27], s{90+b} offen {p.oflags}")
            st3(a, p, 1 + b, True)
    for g in ([] if p.flags else groups(p, nb)):
        a("s_barrier")
        for b in g:
            off = ((b//2 + 1) % 3)*WSTAGE + (b % 2)*2048; r0 = DR + 4*b
            a(f"ds_read_b128 v[{r0}:{r0+3}], v{vR} offset:{off}")
        for k, b in enumerate(g):
            r0 = DR + 4*b
            a(f"s_waitcnt lgkmcnt({len(g)-1-k})")
            a(f"buffer_store_dwordx4 v[{r0}:{r0+3}], v{vO}, s[24:27], s{90+b} offen {p.oflags}")
    if p.stamps == 1: stamp(a, p, 5)
    stamp_out(a, p)
    a("s_endpgm")
    return a.text()

def gen(p):
    lds = p.NS*4096 + 3*WSTAGE + 512 + 256
    assert lds <= 163840
    a = Asm()
    stamp(a, p, 0)
    a("s_load_dwordx4 s[4:7], s[0:1], 0"); a("s_load_dwordx4 s[8:11], s[0:1], 16")
    if p.stamps:
        a("s_load_dwordx4 s[12:15], s[0:1], 32")
        if p.stamps != 3:
            for i in (1,2,4,5,6,7): a(f"s_mov_b32 s{60+2*i}, 0")
    a("v_lshrrev_b32 v1, 6, v0")
    if p.ipf:
        a("s_getpc_b64 s[76:77]"); a.label("L_pc")
        a("s_bfe_u32 s56, s2, 0x30003"); a("s_mul_i32 s56, s56, 6144")
        a("v_and_b32 v2, 3, v0"); a("v_lshl_add_u32 v2, v1, 2, v2"); a("v_lshlrev_b32 v2, 7, v2"); a("v_add_u32 v2, s56, v2")
        a("v_min_u32 v2, L_last - L_pc, v2")
        a("v_mov_b32 v3, s77"); a("v_add_co_u32 v2, vcc, s76, v2"); a("v_addc_co_u32 v3, vcc, 0, v3, vcc")
        a("global_load_dword v167, v[2:3], off")
    if p.map == 0:
        a("s_and_b32 s56, s2, 7"); a("s_lshr_b32 s57, s2, 3"); a("s_lshl_b32 s56, s56, 5"); a("s_add_u32 s56, s56, s57")
        a("v_readfirstlane_b32 s32, v1")
        a("s_cmp_ge_u32 s2, 255"); a("s_cbranch_scc1 L_exit")
        a("s_mul_i32 s57, s56, 205"); a("s_lshr_b32 s57, s57, 10")
        a("s_mul_i32 s58, s57, 5"); a("s_sub_u32 s33, s56, s58")
        if p.rot & 1:
            a("s_add_u32 s58, s33, s57"); a("s_mul_i32 s59, s58, 205"); a("s_lshr_b32 s59, s59, 10"); a("s_mul_i32 s59, s59, 5")
            a("s_sub_u32 s35, s58, s59"); a(f"s_lshl_b32 s35, s35, {7 if p.half else 8}")
        elif p.rot & 4:
            a("s_mul_i32 s59, s57, 205"); a("s_lshr_b32 s59, s59, 10"); a("s_mul_i32 s59, s59, 5")
            a("s_sub_u32 s35, s57, s59"); a(f"s_lshl_b32 s35, s35, {7 if p.half else 8}")
        else: a("s_mov_b32 s35, 0")
        if p.rot & 3: a("s_mov_b32 s36, s33")
        else: a("s_mov_b32 s36, 0")
        if p.early:
            a("s_sub_u32 s58, s57, 1"); a("s_cmp_eq_u32 s57, 0"); a("s_cselect_b32 s57, 50, s58")
        a("s_mul_i32 s34, s57, 204800")
        a("s_cmp_eq_u32 s57, 50"); a("s_cbranch_scc1 L_six")
    else:
        a("s_lshr_b32 s56, s2, 3"); a("s_and_b32 s58, s2, 7")
        a("s_mul_i32 s57, s56, 205"); a("s_lshr_b32 s57, s57, 10")
        a("v_readfirstlane_b32 s32, v1")
        a("s_cmp_ge_u32 s2, 240"); a("s_cbranch_scc1 L_exit")
        a("s_mul_i32 s59, s57, 5"); a("s_sub_u32 s33, s56, s59")
        if p.rot & 1:
            a("s_add_u32 s35, s33, s57"); a("s_sub_u32 s59, s35, 5"); a("s_cmp_ge_u32 s35, 5"); a("s_cselect_b32 s35, s59, s35")
            a("s_cmp_eq_u32 s35, 5"); a("s_cselect_b32 s35, 0, s35"); a(f"s_lshl_b32 s35, s35, {7 if p.half else 8}")
        else: a("s_mov_b32 s35, 0")
        if p.rot & 3: a("s_mov_b32 s36, s33")
        else: a("s_mov_b32 s36, 0")
        a("s_mul_i32 s34, s58, 1310720"); a("s_mul_i32 s59, s57, 204800"); a("s_add_u32 s34, s34, s59")
        a("s_min_u32 s59, s57, 2"); a("s_mul_i32 s59, s59, 40960"); a("s_add_u32 s34, s34, s59")
        a("s_cmp_lt_u32 s57, 2"); a("s_cbranch_scc1 L_six")
    a("s_cmp_lt_u32 s32, 4"); a("s_cbranch_scc1 L_c5")
    a("s_cmp_ge_u32 s32, 8"); a("s_cbranch_scc1 L_b5")
    body = a.text() + producer(p, 5, 0) + "L_exit:\n  s_endpgm\nL_b5:\n" + producer(p, 5, 1) + "L_c5:\n" + (consumer2 if p.two else consumer)(p, 5)
    body += "L_six:\n  s_cmp_lt_u32 s32, 4\n  s_cbranch_scc1 L_c6\n  s_cmp_ge_u32 s32, 8\n  s_cbranch_scc1 L_b6\n"
    body += producer(p, 6, 0) + "L_b6:\n" + producer(p, 6, 1) + "L_c6:\n" + (consumer2 if p.two else consumer)(p, 6)
    hdr = open("standalone__structured_sparse_n_m__ragged.s.ref").read().split("; Override")[0]
    return hdr + f"""; Generated by my own generator script: tiles of 160(192) rows x 128 columns, 4 MFMA waves + 8 load/prune waves.
; @launch grid=({240 if p.map else 256},1,1) block=(768,1,1) lds={lds}
.amdgcn_target "amdgcn-amd-amdhsa--gfx950"
.text
.globl {KN}
.p2align 8
.type {KN},@function
{KN}:
{body}L_last:
  s_endpgm
.section .rodata,"a"
.p2align 6
.amdhsa_kernel {KN}
  .amdhsa_next_free_vgpr 168
  .amdhsa_next_free_sgpr 100
  .amdhsa_accum_offset 168
  .amdhsa_group_segment_fixed_size 0
  .amdhsa_kernarg_size 48
  .amdhsa_user_sgpr_count 2
  .amdhsa_user_sgpr_kernarg_segment_ptr 1
  .amdhsa_system_sgpr_workgroup_id_x 1
.end_amdhsa_kernel
""", lds

if __name__ == "__main__":
    out = sys.argv[1]
    p = P()
    for kv in sys.argv[2:]:
        k, v = kv.split("=", 1)
        old = getattr(P, k)
        setattr(p, k, v.replace("+", " ") if isinstance(old, str) else int(v))
    s, lds = gen(p)
    open(out, "w").write(s)
    from mk import build
    build(out)
    print(out, "lds", lds, "lines", s.count("\n"))
```

```python
import sys
KN = "standalone__structured_sparse_n_m__ragged_kernel"

class P:
    NB = 5; NS = 27
    xflags = "nt"; wflags = ""; oflags = "sc1"
    rot = 1; stamps = 0; fill = 3; early = 1
    xlead = 3; xlead6 = 2
    cprio = 0; aprio = 0; bprio = 0; proprio = 1
    prebar = 1; b0 = 1; split = 46
    tail = "01,2,3,4"; tail6 = "01,23,4,5"
    diag = ""
    nomfma = 0; noprune = 0; noxread = 0; noload = 0
    near = 0; ipf = 0; cy0 = 0; cy1 = 9; half = 0; map = 0; poll = 0; lags = ""; lags6 = ""; xp = 13; xp6 = 12; gate = 16; wrate = 1; estop = 1; two = 0; walt = 0; tst = 0; flags = 1; xv = 0; xwpos = 100; xreg = 0; now = 0; nox = 0; xb = 2; dprio = 0; nowrite = 0

WSTAGE = 16640
CBS = 4160

class Asm:
    def __init__(s): s.l = []
    def __call__(s, x): s.l.append("  " + x)
    def label(s, x): s.l.append(x + ":")
    def text(s): return "\n".join(s.l) + "\n"

S3 = [96] + [60+2*i for i in range(10)] + [98, 86, 88]
def st3(a, p, i, tail=False):
    if p.stamps == 3 and (tail == bool(p.tst) or i in (0, 10, 11, 12)): a(f"s_memtime s[{S3[i]}:{S3[i]+1}]")
def stamp(a, p, i):
    if p.stamps == 3:
        if i == 0: st3(a, p, 0); a("s_memrealtime s[88:89]")
        return
    if p.stamps: a(f"s_memrealtime s[{60+2*i}:{61+2*i}]")
def pstamp(a, p, i):
    if p.stamps == 2: stamp(a, p, i)
def bstamps(a, p, t):
    if not p.stamps or p.stamps == 3: return
    if p.stamps == 2:
        if t == 0: stamp(a, p, 1)
        return
    if t == 0: stamp(a, p, 1)
    if t == p.cy0: a("s_memtime s[72:73]")
    if t == 5: stamp(a, p, 2)
    if t == 9: stamp(a, p, 4)
    if t == p.cy1: a("s_memtime s[74:75]")
def stamp_out(a, p):
    if not p.stamps: return
    if p.stamps == 3:
        st3(a, p, 11)
        a("s_waitcnt vmcnt(0) lgkmcnt(0)"); st3(a, p, 12); a("s_waitcnt lgkmcnt(0)")
        a("s_mov_b32 s16, s14"); a("s_and_b32 s17, s15, 0xffff"); a("s_mov_b32 s18, 0x100000"); a("s_mov_b32 s19, 0x20000")
        a("s_lshl_b32 s56, s2, 4"); a("s_add_u32 s56, s56, s32"); a("s_lshl_b32 s56, s56, 6")
        for i in range(14): a(f"v_mov_b32 v{4+i}, s{S3[i]}")
        a("v_mov_b32 v3, s56"); a("v_mbcnt_lo_u32_b32 v2, -1, 0"); a("v_mbcnt_hi_u32_b32 v2, -1, v2"); a("s_nop 1"); a("v_cmp_eq_u32 vcc, 0, v2"); a("s_and_saveexec_b64 s[58:59], vcc")
        for i in range(4): a(f"buffer_store_dwordx4 v[{4+4*i}:{7+4*i}], v3, s[16:19], 0 offen offset:{16*i}")
        return
    a("s_waitcnt vmcnt(0) lgkmcnt(0)")
    a("s_memrealtime s[66:67]")
    a("s_waitcnt lgkmcnt(0)")
    if p.diag:
        i, j, K = map(int, p.diag.split(","))
        lab = f"L_spin{len(a.l)}_{id(a)%100000}"
        a(f"s_sub_u32 s56, s{60+2*j}, s{60+2*i}"); a(f"s_mul_i32 s56, s56, {K}") if K >= 0 else a(f"s_lshr_b32 s56, s56, {-K}"); a("s_min_u32 s56, s56, 20000")
        a.label(lab)
        a("s_memrealtime s[58:59]"); a("s_waitcnt lgkmcnt(0)"); a("s_sub_u32 s57, s58, s66"); a("s_cmp_lt_u32 s57, s56"); a(f"s_cbranch_scc1 {lab}")
        return
    a("s_mov_b32 s84, s14"); a("s_and_b32 s85, s15, 0xffff"); a("s_mov_b32 s86, 0x100000"); a("s_mov_b32 s87, 0x20000")
    a("s_lshl_b32 s56, s2, 4"); a("s_add_u32 s56, s56, s32"); a("s_lshl_b32 s56, s56, 5")
    for i in range(8): a(f"v_mov_b32 v{4+i}, s{60+2*i}")
    a("v_mov_b32 v3, s56"); a("v_mbcnt_lo_u32_b32 v2, -1, 0"); a("v_mbcnt_hi_u32_b32 v2, -1, v2"); a("s_nop 1"); a("v_cmp_eq_u32 vcc, 0, v2"); a("s_and_saveexec_b64 s[58:59], vcc")
    a("buffer_store_dwordx4 v[4:7], v3, s[84:87], 0 offen"); a("buffer_store_dwordx4 v[8:11], v3, s[84:87], 0 offen offset:16")

def srd(a, d, ptr, n):
    a(f"s_mov_b32 s{d}, s{ptr}"); a(f"s_and_b32 s{d+1}, s{ptr+1}, 0xffff"); a(f"s_mov_b32 s{d+2}, {n}"); a(f"s_mov_b32 s{d+3}, 0x20000")

def ktable(a, dst, c0, c1, unit, first):
    for c in range(c0, c1):
        if c == 0: a(f"s_mov_b32 s{dst}, s{first}")
        else:
            a(f"s_add_u32 s{dst+c}, s{dst+c-1}, {unit}"); a(f"s_cmp_eq_u32 s{dst+c}, s57"); a(f"s_cselect_b32 s{dst+c}, s58, s{dst+c}")
def xtable(a, p, c0, c1):
    if not p.half:
        a("s_mov_b32 s57, 1280"); a("s_mov_b32 s58, 0"); ktable(a, 40, c0, c1, 128, 35); return
    a("s_movk_i32 s57, 640"); a("s_mov_b32 s58, 0"); ktable(a, 40, c0, min(c1, 5), 128, 35)
    for c in range(max(c0, 5), c1): a(f"s_add_u32 s{40+c}, s{35+c}, 640")
def btable(a, nb):
    a("s_mul_i32 s50, s36, 40960"); a("s_add_u32 s50, s50, s34"); a(f"s_add_u32 s57, s34, {nb*40960}")
    for b in range(1, nb):
        a(f"s_add_u32 s{50+b}, s{49+b}, 40960"); a(f"s_cmp_eq_u32 s{50+b}, s57"); a(f"s_cselect_b32 s{50+b}, s34, s{50+b}")

def dma_voff(a, lane, wave_s, dst, t1, t2):
    a(f"v_lshrrev_b32 v{t1}, 3, v{lane}"); a(f"s_lshl_b32 s56, s{wave_s}, 3"); a(f"v_add_u32 v{t1}, s56, v{t1}")
    a(f"v_lshrrev_b32 v{t2}, 1, v{t1}"); a(f"v_xor_b32 v{t2}, v{t2}, v{lane}"); a(f"v_and_b32 v{t2}, 7, v{t2}")
    a(f"v_mul_u32_u24 v{t1}, 1280, v{t1}"); a(f"v_lshl_add_u32 v{dst}, v{t2}, 4, v{t1}")
    a(f"s_lshl_b32 s37, s{wave_s}, 10")

def slot(p, nb, b, c):
    if p.two: return ((c % (p.NS//nb))*nb + b)*4096
    return ((c*nb + b) % p.NS)*4096
def stage_off(p, nb, b):
    WB = p.NS*4096
    if not p.two: return WB + ((b//2 + 1) % 3)*WSTAGE + (b % 2)*2048
    A2 = 0 if nb == 5 else 12*4096
    if nb == 5: return A2 if b == 4 else WB + (1 + b//2)*WSTAGE + (b % 2)*2048
    r, j = divmod(b, 3)
    return A2 + r*2048 if j == 2 else WB + (1 + r)*WSTAGE + j*2048
def sched(p, nb):
    lg = [int(ch) for ch in (p.lags if nb == 5 else p.lags6)] or [0]*nb
    bc = []
    for t in range(9):
        for b in sorted(range(nb), key=lambda b: (-lg[b], b)):
            if t - lg[b] >= 0: bc.append((b, t - lg[b], t))
    for b in sorted(range(nb), key=lambda b: (lg[b], b)):
        for c in range(9 - lg[b], 10): bc.append((b, c, 9))
    mf = [(b, c, s, t) for b, c, t in bc for s in range(4)]
    if max(lg) == 0: P = xl(p, nb)*nb
    else: P = p.xp if nb == 5 else p.xp6
    at = [-1 if i < P else (i - P)//nb for i in range(len(bc))]
    for i, (b, c, t) in enumerate(bc):
        assert at[i] <= max(-1, t - 2), (i, at[i], t)
        if i >= p.NS: assert at[i] >= bc[i - p.NS][2] + 2, (i, at[i], bc[i - p.NS])
    return mf, bc, at, max(2, max(lg) + 1)
def dma_i(p, nb, bc, i, vD):
    b, c, t = bc[i]
    if p.noload: return []
    return [f"s_add_u32 m0, s37, {(i % p.NS)*4096}", f"s_add_u32 s56, s{50+b}, s{40+c}",
            f"buffer_load_dwordx4 v{vD}, s[16:19], s56 offen {p.xflags} lds"]
def dma_txt(p, nb, b, c, vD):
    if p.noload: return []
    if p.nox: return [f"buffer_load_dword v100, v{vD}, s[16:19], 0 offen offset:4095"] if c < 0 else ["s_nop 0"]
    if p.xreg: return [f"s_add_u32 s56, s{50+b}, s{40+c}", f"buffer_load_dwordx4 v[{100+4*b}:{103+4*b}], v{vD}, s[16:19], s56 offen {p.xflags}"]
    return [f"s_add_u32 m0, s37, {slot(p, nb, b, c)}", f"s_add_u32 s56, s{50+b}, s{40+c}",
            f"buffer_load_dwordx4 v{vD}, s[16:19], s56 offen {p.xflags} lds"]
def xl(p, nb):
    v = p.xlead if nb == 5 else p.xlead6
    assert (not p.two or v + 2 <= p.NS//nb) and (v + 2 - p.xv)*nb <= p.NS and v*nb <= p.NS and (p.xv < 2 or v >= p.xv + 1), (v, nb)
    return v
def groups(p, nb): return [[int(ch) for ch in g] for g in (p.tail if nb == 5 else p.tail6).split(",")]

def consumer(p, nb):
    a = Asm(); NB = p.NB; XL = xl(p, nb)
    WB = p.NS*4096; BIAS = WB + 3*WSTAGE
    ACC = lambda b: 16*b
    mf, bc, at, nW = sched(p, nb)
    idx_of = {(b, c): i for i, (b, c, _) in enumerate(bc)}
    WF = 128 - 16*nW; XF = 128; VA = XF + 4*NB
    assert WF >= 16*nb
    vX = [VA+i for i in range(4)]; vW = VA+4; vD = VA+5; vO = VA+6; vT = VA+7
    assert vT < 168, vT
    FL = BIAS + 512
    vm = []
    pro = [i for i in range(len(bc)) if at[i] == -1]
    if p.near:
        assert vD == 128 + 4*p.NB + 5 and not p.lags and not p.lags6
        xtable(a, p, 2, max(bc[i][1] for i in pro) + 1)
    else:
        a("v_and_b32 v1, 63, v0")
        pstamp(a, p, 2)
        dma_voff(a, 1, 32, vD, 2, 3)
        btable(a, nb)
        xtable(a, p, 0, max(bc[i][1] for i in pro) + 1)
        a("s_waitcnt lgkmcnt(0)")
        pstamp(a, p, 5)
        srd(a, 16, 4, 10485760)
        if p.prebar: a("s_barrier")
    for i in pro:
        if not (p.near and i < 2*nb):
            for x in dma_i(p, nb, bc, i, vD): a(x)
        vm.append(bc[i][2])
    pstamp(a, p, 6)
    a("v_and_b32 v2, 31, v1"); a("v_lshrrev_b32 v3, 5, v1"); a("v_lshrrev_b32 v4, 1, v2"); a("v_and_b32 v4, 7, v4")
    a("v_xor_b32 v4, v4, v3"); a("v_lshlrev_b32 v4, 4, v4"); a(f"v_lshl_add_u32 v{vX[0]}, v2, 7, v4")
    for s in range(1, 4): a(f"v_xor_b32 v{vX[s]}, {s*32}, v{vX[0]}")
    a("v_lshlrev_b32 v4, 9, v3"); a("v_bfe_u32 v5, v1, 4, 1"); a("v_lshl_add_u32 v4, v5, 5, v4")
    a("v_bfe_u32 v5, v1, 2, 2"); a("v_lshl_add_u32 v4, v5, 6, v4"); a("v_and_b32 v5, 3, v1"); a("v_lshl_add_u32 v4, v5, 3, v4")
    a(f"s_mul_i32 s56, s32, {CBS}"); a(f"s_add_u32 s56, s56, {WB}"); a(f"v_add_u32 v{vW}, s56, v4")
    a("v_bfe_u32 v5, v1, 1, 2"); a("v_xor_b32 v5, v5, v3"); a("v_lshlrev_b32 v5, 4, v5"); a("v_lshl_add_u32 v5, v2, 6, v5")
    a(f"v_add_u32 v{vO}, s56, v5")
    a("s_lshl_b32 s56, s32, 7"); a(f"s_add_u32 s56, s56, {BIAS}"); a("v_lshlrev_b32 v4, 4, v3"); a(f"v_add_u32 v{vT}, s56, v4")
    if p.cprio: a(f"s_setprio {p.cprio}")
    lastW = {}
    for k, (b, c, s, u) in enumerate(mf): lastW[(c, s)] = k
    lg = []
    def wait_lds(tags):
        idx = max([k for k, t_ in enumerate(lg) if t_ in tags], default=-1)
        if idx >= 0:
            a(f"s_waitcnt lgkmcnt({len(lg)-1-idx})"); del lg[:idx+1]
    def lds(txt, tagi):
        if len(lg) >= 15: wait_lds([lg[0]])
        a(txt); lg.append(tagi)
    xbase = [0]*4
    def xread(j):
        b, c, s, u = mf[j]
        off = (idx_of[(b, c)] % p.NS)*4096
        hi = off & ~0xffff
        if xbase[s] != hi:
            a(f"v_xor_b32 v{vX[s]}, 0x10000, v{vX[s]}"); xbase[s] = hi
        r = XF + 4*(j % NB)
        if not p.noxread: lds(f"ds_read_b128 v[{r}:{r+3}], v{vX[s]} offset:{off & 0xffff}", ("x", j))
    def wread(c, s):
        for q in range(2):
            r = WF + 16*(c % nW) + 4*s + 2*q
            lds(f"ds_read_b64_tr_b16 v[{r}:{r+1}], v{vW} offset:{(c%3)*WSTAGE + s*1024 + q*256}", ("w", c, s))
    cur = [-1]
    def boundary(t):
        need = [k for k, c in enumerate(vm) if c <= t]
        if need and not p.noload and not p.nox:
            a(f"s_waitcnt vmcnt({len(vm)-1-max(need)})"); del vm[:max(need)+1]
        wait_lds([x for x in lg if x[0] == "w" and x[1] == t-1])
        st3(a, p, 1+t)
        a("s_barrier")
        bstamps(a, p, t)
        cur[0] = t
    fillq = []
    grp = groups(p, nb); done = set(); gi = [0]
    def epilogue_items(b):
        A = ACC(b); off = ((b//2 + 1) % 3)*WSTAGE + (b % 2)*2048
        it = [f"v_cvt_pk_bf16_f32 v{A+k}, v{A+2*k}, v{A+2*k+1}" for k in range(8)]
        it = it[:4] + it[4:6] + [f"v_permlane32_swap_b32 v{A}, v{A+2}", f"v_permlane32_swap_b32 v{A+1}, v{A+3}", it[6],
               ("lds", f"ds_write_b128 v{vO}, v[{A}:{A+3}] offset:{off}", ("o", b)), it[7], f"v_xor_b32 v{A+8}, 32, v{vO}", "s_nop 0",
               f"v_permlane32_swap_b32 v{A+4}, v{A+6}", f"v_permlane32_swap_b32 v{A+5}, v{A+7}",
               ("lds", f"ds_write_b128 v{A+8}, v[{A+4}:{A+7}] offset:{off}", ("o", b))]
        if p.flags: it.append(("lds", f"ds_write_b8 v{vD}, v{vT} offset:{4*b}", ("f", b)))
        else: it.append(("done", b))
        return it
    pend = []
    def tailbar():
        g = grp[gi[0]]
        wait_lds([("o", b) for b in g]); a("s_barrier"); gi[0] += 1
    def emit_fill(n, force=False):
        k = 0
        if pend and not force:
            pend[0] -= 1
            if pend[0] <= 0: pend.pop(0); tailbar()
        while fillq and k < n:
            it = fillq[0]
            if isinstance(it, tuple) and it[0] == "gate":
                have = sum(8 if "v_mfma" in x else 1 for x in a.l[it[1]:])
                if have < p.gate:
                    if not force: return
                    if have < 12: a(f"s_nop {12-have-1}")
                fillq.pop(0); continue
            fillq.pop(0)
            if isinstance(it, str): a(it); k += 1
            elif it[0] == "lds":
                lds(it[1], it[2]); k += 1
                if it[2][0] == "f": st3(a, p, 1 + it[2][1], True)
            elif it[0] == "done":
                done.add(it[1])
                g = gi[0] + len(pend)
                if g < len(grp) and all(b in done for b in grp[g]):
                    if force:
                        while pend: pend.pop(0); tailbar()
                        tailbar()
                    else: pend.append(2)
    boundary(0)
    wread(0, 0)
    for q in range(4):
        r = ACC(nb-1) + 4*q
        lds(f"ds_read_b128 v[{r}:{r+3}], v{vT} offset:{q*32}", ("b",))
    nxt = [0]; wq = [(0, 1), (0, 2), (0, 3)]
    def advance(upto):
        while nxt[0] < min(upto, len(mf)):
            c = mf[nxt[0]][3]
            if cur[0] < c:
                boundary(c); wq.extend((c, s) for s in range(4))
            xread(nxt[0]); nxt[0] += 1
            if wq and lastW.get((wq[0][0] - nW, wq[0][1]), -1) < upto - NB: wread(*wq.pop(0))
    advance(NB)
    for j, (b, c, s, u) in enumerate(mf):
        if p.flags and j == 8: a(f"s_add_u32 s56, s32, {FL}"); a(f"v_mov_b32 v{vD}, s56"); a(f"v_mov_b32 v{vT}, 1")
        while (c, s) in wq:
            assert lastW.get((wq[0][0] - nW, wq[0][1]), -1) < j
            wread(*wq.pop(0))
        wait_lds([("x", j), ("w", c, s), ("b",)])
        A = ACC(b); wr = WF + 16*(c % nW) + 4*s; xr = XF + 4*(j % NB)
        C = ACC(nb-1) if (c == 0 and s == 0) else A
        if not p.nomfma: a(f"v_mfma_f32_32x32x16_bf16 v[{A}:{A+15}], v[{wr}:{wr+3}], v[{xr}:{xr+3}], v[{C}:{C+15}]")
        if c == 9 and s == 3:
            fillq.append(("gate", len(a.l))); fillq.extend(epilogue_items(b))
        advance(j + 1 + NB)
        emit_fill(p.fill)
    if p.stamps == 1: stamp(a, p, 5)
    emit_fill(100000, True)
    while pend: pend.pop(0); tailbar()
    assert p.flags or gi[0] == len(grp)
    stamp_out(a, p)
    a("s_endpgm")
    return a.text()

def consumer2(p, nb):
    a = Asm(); NB = p.NB; XL = xl(p, nb)
    WB = p.NS*4096; BIAS = WB + 3*WSTAGE; FL = BIAS + 512
    RB = nb//2
    WF = 96; XF = 128; VA = XF + 4*NB
    vX = [VA+i for i in range(4)]; vY = [VA+4+i for i in range(4)]
    vW = [VA+8, VA+9]; vO = [VA+10, VA+11]; vD = VA+12; vT = [VA+13, VA+14]; vF = VA+15
    assert vF < 168, vF
    vm = []
    a("v_and_b32 v1, 63, v0")
    pstamp(a, p, 2)
    dma_voff(a, 1, 32, vD, 2, 3)
    btable(a, nb)
    a("s_mov_b32 s57, 1280"); a("s_mov_b32 s58, 0")
    ktable(a, 40, 0, XL, 128, 35)
    a("s_waitcnt lgkmcnt(0)")
    pstamp(a, p, 5)
    srd(a, 16, 4, 10485760)
    if p.prebar: a("s_barrier")
    for c in range(XL):
        for b in range(nb):
            for x in dma_txt(p, nb, b, c, vD): a(x)
            vm.append(c)
    pstamp(a, p, 6)
    a("s_lshr_b32 s20, s32, 1"); a("s_and_b32 s21, s32, 1")
    a("s_lshl_b32 s22, s21, 1"); a("s_add_u32 s22, s22, s20"); a("s_xor_b32 s23, s22, 1")
    a("v_and_b32 v2, 31, v1"); a("v_lshrrev_b32 v3, 5, v1"); a("v_lshrrev_b32 v4, 1, v2"); a("v_and_b32 v4, 7, v4")
    a("v_xor_b32 v4, v4, v3"); a("v_lshlrev_b32 v4, 4, v4"); a(f"v_lshl_add_u32 v{vY[0]}, v2, 7, v4")
    for s in range(1, 4): a(f"v_xor_b32 v{vY[s]}, {s*32}, v{vY[0]}")
    a(f"s_mul_i32 s56, s20, {RB*4096}")
    for s in range(4): a(f"v_add_u32 v{vX[s]}, s56, v{vY[s]}")
    a("v_lshlrev_b32 v4, 9, v3"); a("v_bfe_u32 v5, v1, 4, 1"); a("v_lshl_add_u32 v4, v5, 5, v4")
    a("v_bfe_u32 v5, v1, 2, 2"); a("v_lshl_add_u32 v4, v5, 6, v4"); a("v_and_b32 v5, 3, v1"); a("v_lshl_add_u32 v4, v5, 3, v4")
    a("v_bfe_u32 v5, v1, 1, 2"); a("v_xor_b32 v5, v5, v3"); a("v_lshlrev_b32 v5, 4, v5"); a("v_lshl_add_u32 v5, v2, 6, v5")
    a("v_lshlrev_b32 v6, 4, v3")
    for q in range(2):
        a(f"s_mul_i32 s24, s{22+q}, {CBS}"); a(f"s_add_u32 s25, s24, {WB}"); a(f"v_add_u32 v{vW[q]}, s25, v4")
        a(f"v_add_u32 v{vO[q]}, s24, v5")
        a(f"s_lshl_b32 s56, s{22+q}, 7"); a(f"s_add_u32 s56, s56, {BIAS}"); a(f"v_add_u32 v{vT[q]}, s56, v6")
    a(f"s_mul_i32 s26, s20, {WSTAGE}"); a(f"s_add_u32 s26, s26, {WB + WSTAGE}")
    a(f"s_lshl_b32 s27, s20, 11")
    if nb == 6: a(f"s_add_u32 s27, s27, {12*4096}")
    else: a("s_mov_b32 s27, 0")
    a(f"s_mul_i32 s28, s20, {4*RB}"); a("s_add_u32 s28, s28, s21"); a(f"s_add_u32 s28, s28, {FL}"); a(f"s_add_u32 s29, s32, {FL+16}")
    if p.cprio: a(f"s_setprio {p.cprio}")
    NX = 3
    tiles = lambda j: [(2*j, 0), (2*j+1, 1)] if (nb == 6 or j < 2) else [(4, 0)]
    hold = [4, 5 if nb == 6 else 3]
    fr = []; mf = []
    for c in range(10):
        order = [(j, s) for s in range(4) for j in range(NX)] if c < 9 else [(j, s) for j in range(NX) for s in range(4)]
        for j, s in order:
            fr.append((j, c, s))
            for i, q in tiles(j): mf.append((i, q, c, s, len(fr)-1))
    lastW = {}; lastF = {}; lastA = {}
    for k, (i, q, c, s, f) in enumerate(mf): lastW[(c, s, q)] = k; lastF[f] = k; lastA[i] = k
    lg = []
    def wait_lds(tags):
        idx = max([k for k, t_ in enumerate(lg) if t_ in tags], default=-1)
        if idx >= 0:
            a(f"s_waitcnt lgkmcnt({len(lg)-1-idx})"); del lg[:idx+1]
    def lds(txt, tagi):
        if len(lg) >= 15: wait_lds([lg[0]])
        a(txt); lg.append(tagi)
    xbase = {}
    def xread(f):
        j, c, s = fr[f]
        shared = nb == 5 and j == 2
        v = vY[s] if shared else vX[s]
        off = slot(p, nb, 4 if shared else j, c)
        hi = off & ~0xffff
        if xbase.get(v, 0) != hi:
            a(f"v_xor_b32 v{v}, 0x10000, v{v}"); xbase[v] = hi
        r = XF + 4*(f % NB)
        if not p.noxread: lds(f"ds_read_b128 v[{r}:{r+3}], v{v} offset:{off & 0xffff}", ("x", f))
    def wread(c, s, q):
        for u in range(2):
            r = WF + 16*q + 4*s + 2*u
            lds(f"ds_read_b64_tr_b16 v[{r}:{r+1}], v{vW[q]} offset:{(c%3)*WSTAGE + s*1024 + u*256}", ("w", c, s, q))
    cur = [-1]
    def boundary(t):
        need = [k for k, c in enumerate(vm) if c <= t]
        if need and not p.noload and not p.nox:
            a(f"s_waitcnt vmcnt({len(vm)-1-max(need)})"); del vm[:max(need)+1]
        st3(a, p, 1+t)
        a("s_barrier")
        bstamps(a, p, t)
        cur[0] = t
    fillq = []
    def epilogue_items(i, q):
        A = 16*i; j = i//2
        base = "s27" if j == 2 else "s26"; off = 0 if j == 2 else j*2048
        it = [f"v_cvt_pk_bf16_f32 v{A+k}, v{A+2*k}, v{A+2*k+1}" for k in range(8)]
        it += [f"v_add_u32 v{A+9}, {base}, v{vO[q]}", f"v_xor_b32 v{A+8}, 32, v{A+9}",
               f"v_permlane32_swap_b32 v{A}, v{A+2}", f"v_permlane32_swap_b32 v{A+1}, v{A+3}",
               ("lds", f"ds_write_b128 v{A+9}, v[{A}:{A+3}] offset:{off}", ("o", i)),
               f"v_permlane32_swap_b32 v{A+4}, v{A+6}", f"v_permlane32_swap_b32 v{A+5}, v{A+7}", ("stop",),
               ("lds", f"ds_write_b128 v{A+8}, v[{A+4}:{A+7}] offset:{off}", ("o", i)), ("stop",)]
        if nb == 5 and j == 2: it += [f"v_mov_b32 v{vF}, s29", ("lds", f"ds_write_b8 v{vF}, v{vD}", ("f", j))]
        elif q == 1: it.append(("lds", f"ds_write_b8 v{vF}, v{vD} offset:{4*j}", ("f", j)))
        return it
    def emit_fill(n, force=False):
        k = 0
        while fillq and k < n:
            it = fillq[0]
            if isinstance(it, tuple) and it[0] == "gate":
                have = len(a.l) - it[1]
                if have < 12:
                    if not force: return
                    a(f"s_nop {12-have-1}")
                fillq.pop(0); continue
            fillq.pop(0)
            if isinstance(it, str): a(it); k += 1
            elif it[0] == "stop":
                if not force and p.estop: return
            elif it[0] == "lds":
                lds(it[1], it[2]); k += 1
                if it[2][0] == "f": st3(a, p, 1 + it[2][1], True)
    boundary(0)
    wread(0, 0, 0); wread(0, 0, 1)
    nxt = [0]; wq = [(0, s, q) for s in range(1, 4) for q in range(2)]
    xread(0); nxt[0] = 1
    for q in range(2):
        for u in range(4):
            r = 16*hold[q] + 4*u
            lds(f"ds_read_b128 v[{r}:{r+3}], v{vT[q]} offset:{u*32}", ("b", q))
    def advance(k):
        while nxt[0] < len(fr) and (nxt[0] < NB or lastF[nxt[0]-NB] < k):
            c = fr[nxt[0]][1]
            if cur[0] < c:
                boundary(c); wq.extend((c, s, q) for s in range(4) for q in range(2))
            xread(nxt[0]); nxt[0] += 1
        n = 0
        while wq and n < p.wrate and lastW.get((wq[0][0]-1, wq[0][1], wq[0][2]), -1) < k:
            wread(*wq.pop(0)); n += 1
    advance(0)
    for k, (i, q, c, s, f) in enumerate(mf):
        if k == 12: a(f"v_mov_b32 v{vF}, s28"); a(f"v_mov_b32 v{vD}, 1")
        while (c, s, q) in wq: wread(*wq.pop(0))
        wait_lds([("x", f), ("w", c, s, q), ("b", q)])
        A = 16*i; wr = WF + 16*q + 4*s; xr = XF + 4*(f % NB)
        C = 16*hold[q] if (c == 0 and s == 0) else A
        if not p.nomfma: a(f"v_mfma_f32_32x32x16_bf16 v[{A}:{A+15}], v[{wr}:{wr+3}], v[{xr}:{xr+3}], v[{C}:{C+15}]")
        if k == lastA[i]:
            fillq.append(("gate", len(a.l))); fillq.extend(epilogue_items(i, q))
        advance(k + 1)
        emit_fill(p.fill)
    if p.stamps == 1: stamp(a, p, 5)
    emit_fill(100000, True)
    stamp_out(a, p)
    a("s_endpgm")
    return a.text()

def prune_all(S, T):
    o = []
    for j0 in (0, 2):
        js = (j0, j0+1)
        A = lambda j, r: T + (j-j0)*8 + r
        U = lambda j, k: T + (j-j0)*8 + 4 + k
        for r in range(4):
            for j in js: o.append(f"v_and_b32 v{A(j,r)}, s38, v{S+4*r+j}")
        for j in js: o.append(f"v_pk_max_u16 v{U(j,0)}, v{A(j,0)}, v{A(j,1)}")
        for j in js: o.append(f"v_pk_min_u16 v{U(j,1)}, v{A(j,0)}, v{A(j,1)}")
        for j in js: o.append(f"v_pk_max_u16 v{U(j,2)}, v{A(j,2)}, v{A(j,3)}")
        for j in js: o.append(f"v_pk_min_u16 v{U(j,3)}, v{A(j,2)}, v{A(j,3)}")
        for j in js: o.append(f"v_pk_min_u16 v{U(j,0)}, v{U(j,0)}, v{U(j,2)}")
        for j in js: o.append(f"v_pk_max_u16 v{U(j,1)}, v{U(j,1)}, v{U(j,3)}")
        for j in js: o.append(f"v_pk_max_u16 v{U(j,0)}, v{U(j,0)}, v{U(j,1)}")
        for r in range(4):
            for j in js: o.append(f"v_pk_sub_i16 v{A(j,r)}, v{A(j,r)}, v{U(j,0)}")
        for r in range(4):
            for j in js: o.append(f"v_pk_ashrrev_i16 v{A(j,r)}, 15, v{A(j,r)} op_sel_hi:[0,1]")
        for r in range(4):
            for j in js: o.append(f"v_bfi_b32 v{S+4*r+j}, v{A(j,r)}, 0, v{S+4*r+j}")
    return o

def producer(p, nb, X):
    a = Asm(); XL = xl(p, nb)
    WB = p.NS*4096; BIAS = WB + 3*WSTAGE
    vG = 1; vS = 2; vR = 3; vO = 4; vD = 7; T = 8; ST = 32; DR = 64
    WK = 80
    prio = p.aprio if X == 0 else p.bprio
    if X == 0 and p.proprio: a(f"s_setprio {p.proprio}")
    elif prio: a(f"s_setprio {prio}")
    a(f"s_sub_u32 s39, s32, {4+4*X}"); a("v_and_b32 v6, 63, v0")
    pstamp(a, p, 2)
    a("v_lshrrev_b32 v24, 4, v6"); a("s_lshl_b32 s56, s39, 2"); a("v_add_u32 v24, s56, v24")
    a("v_and_b32 v25, 15, v6"); a("v_mul_u32_u24 v9, 5120, v24"); a(f"v_lshl_add_u32 v{vG}, v25, 4, v9")
    a("s_lshl_b32 s59, s33, 8")
    if p.half:
        xtable(a, p, 0, 1 + X)
        a(f"s_mul_i32 s56, s{40+X}, 640"); a(f"s_add_u32 s{WK}, s56, s59")
    else:
        if X: a("s_add_u32 s58, s59, 81920")
        else: a("s_mov_b32 s58, s59")
        a("s_mul_i32 s56, s35, 640"); a(f"s_add_u32 s{WK}, s56, s58")
    if X == 0: a("v_lshlrev_b32 v10, 2, v6")
    a("s_waitcnt lgkmcnt(0)")
    pstamp(a, p, 5)
    srd(a, 20, 6, 819200)
    vm = []
    SR = lambda c: ST + 16*((c//2) % 2)
    def wload1(c, r):
        vm.append(("w", c))
        if p.noload or p.now: return []
        return [f"buffer_load_dwordx4 v[{SR(c)+4*r}:{SR(c)+4*r+3}], v{vG}, s[20:23], s{WK+c//2} offen offset:{r*1280} {p.wflags}"]
    XR = lambda b, c: 96 + 24*((c//2) % 2) + 4*b
    def xdma(b, c):
        vm.append(("x", c))
        if p.xv: return [f"s_add_u32 s56, s{50+b}, s{40+c}", f"buffer_load_dwordx4 v[{XR(b,c)}:{XR(b,c)+3}], v{vD}, s[16:19], s56 offen {p.xflags}"]
        return dma_txt(p, nb, b, c, vD)
    def xwr(c):
        if not p.xv or c >= 10 or c < XL: return []
        def one(b):
            if b == 0: wait_vm(lambda t_: t_ == ("x", c))
            off = slot(p, nb, b, c)
            return [f"ds_write_b128 v{30 + (off >> 16)}, v[{XR(b,c)}:{XR(b,c)+3}] offset:{off & 0xffff}"]
        return [(lambda b=b: one(b)) for b in range(nb)]
    def emit(l):
        for y in l: a(y)
    if X == 0:
        for r in range(4): emit(wload1(0, r))
        srd(a, 28, 8, 1280)
        a("buffer_load_dword v27, v10, s[28:31], s59 offen"); vm.append("bias")
        if p.prebar: a("s_barrier")
    else:
        if p.prebar: a("s_barrier")
        for r in range(4): emit(wload1(1, r))
    head = a.text(); a.l = []
    if p.half:
        xtable(a, p, 1 + X, 10)
        for k in range(1, 5): a(f"s_mul_i32 s56, s{40+X+2*k}, 640"); a(f"s_add_u32 s{WK+k}, s56, s59")
    else:
        a("s_add_u32 s57, s58, 819200")
        ktable(a, WK, 1, 5, 163840, WK)
    pstamp(a, p, 6)
    a("s_mov_b32 s38, 0x7fff7fff")
    srd(a, 16, 4, 10485760)
    dma_voff(a, 6, 39, vD, 12, 13)
    btable(a, nb)
    if not p.half: xtable(a, p, 0, 10)
    for b in range(nb): a(f"s_add_u32 s{90+b}, s{50+b}, s59")
    srd(a, 24, 10, 10485760)
    a("v_lshrrev_b32 v9, 2, v25"); a(f"v_mul_u32_u24 v9, {CBS}, v9"); a("v_lshl_add_u32 v14, v24, 8, v9"); a("v_and_b32 v12, 3, v25")
    a("v_lshl_add_u32 v14, v12, 4, v14"); a(f"v_add_u32 v{vS}, {WB}, v14")
    a("v_lshrrev_b32 v13, 4, v6"); a("s_lshl_b32 s56, s39, 3")
    if X: a("s_add_u32 s56, s56, 4")
    a("v_add_u32 v13, s56, v13")
    a("v_lshrrev_b32 v14, 1, v13"); a("v_xor_b32 v14, v14, v12"); a("v_and_b32 v14, 3, v14"); a("v_lshlrev_b32 v14, 4, v14")
    a("v_lshl_add_u32 v14, v13, 6, v14"); a("v_add_u32 v14, v14, v9"); a(f"v_add_u32 v{vR}, {WB}, v14")
    a("v_mul_u32_u24 v13, 1280, v13"); a(f"v_lshl_add_u32 v{vO}, v25, 4, v13")
    if X == 0: a("v_lshlrev_b32 v26, 3, v6"); a(f"v_add_u32 v26, {BIAS}, v26")
    if p.flags:
        a(f"v_mov_b32 v5, {BIAS + 512}"); a("s_mov_b32 s3, 0x01010101")
        if X == 1: a("v_lshl_add_u32 v28, v6, 2, v5"); a("v_mov_b32 v29, 0"); a("ds_write_b32 v28, v29")
    if p.xv: a("v_lshlrev_b32 v30, 4, v6"); a("v_add_u32 v30, s37, v30"); a("v_add_u32 v31, 0x10000, v30")
    def wait_vm(pred):
        idx = max([k for k, t_ in enumerate(vm) if pred(t_)], default=-1)
        if idx >= 0:
            n = len(vm)-1-idx
            if p.noload: n = 0
            if p.now: n = sum(1 for t_ in vm[idx+1:] if t_[0] != "w")
            if p.nox: n = sum(1 for t_ in vm[idx+1:] if t_[0] != "x")
            a(f"s_waitcnt vmcnt({n})"); del vm[:idx+1]
    def pr(c): return [] if p.noprune else prune_all(SR(c), T)
    def writes(c, only=None):
        if p.nowrite: return
        for r in (range(4) if only is None else [only]): a(f"ds_write_b128 v{vS}, v[{SR(c)+4*r}:{SR(c)+4*r+3}] offset:{(c%3)*WSTAGE + r*64}")
    def stream(valu, mem):
        n = len(mem); k = 0
        for i, x in enumerate(valu):
            while k < n and i * n >= k * len(valu):
                emit(mem[k]()); k += 1
            a(x)
        while k < n:
            emit(mem[k]()); k += 1
    wl = lambda c: [(lambda r=r: wload1(c, r)) for r in range(4)] if c < 10 else []
    xs = lambda c: [(lambda b=b: xdma(b, c)) for b in range(nb)] if c < 10 else []
    if not p.two and not p.xv:
        mf_, bc, at, nW = sched(p, nb)
        def xdi(i):
            vm.append(("x", bc[i][2])); return dma_i(p, nb, bc, i, vD)
        xs = lambda c: [(lambda i=i: xdi(i)) for i in range(len(bc)) if at[i] == c - XL]
    rest = []
    if X == 0:
        wait_vm(lambda t_: t_ == ("w", 0))
        pstamp(a, p, 7)
        stream(pr(0), wl(2))
        writes(0)
        wait_vm(lambda t_: t_ == "bias")
        a("v_lshlrev_b32 v28, 16, v27"); a("v_and_b32 v29, 0xffff0000, v27"); a("ds_write_b64 v26, v[28:29]")
        if p.proprio != prio: a(f"s_setprio {prio}")
    else:
        if p.b0:
            wait_vm(lambda t_: t_ == ("w", 1))
            pstamp(a, p, 7)
            v = pr(1); stream(v[:p.split], wl(3)); rest = v[p.split:]
        else:
            stream([], wl(3)); rest = pr(1)
    late = [0]
    for t in range(10):
        if not p.xv: wait_vm(lambda t_: t_[0] == "x" and t_[1] <= t)
        a(f"s_waitcnt lgkmcnt({late[0]})"); late[0] = 0
        st3(a, p, 1+t)
        a("s_barrier")
        bstamps(a, p, t)
        if t % 2 == X:
            c = t + 2
            xw = xwr(t - 1 + XL) if p.xv == 1 else []
            if p.xv == 3:
                xw = xwr(t - 3 + XL); m = []
                w4 = wl(c+2) if c < 10 else []
                while xw or w4:
                    if xw: m.append(xw.pop(0))
                    if w4: m.append(w4.pop(0))
                if c < 10:
                    wait_vm(lambda t_: t_ == ("w", c))
                    v = pr(c); stream(v[:p.split], m); rest = v[p.split:]
                else: stream([], m)
            elif c < 10:
                wait_vm(lambda t_: t_ == ("w", c))
                v = pr(c); v1 = v[:p.split]; rest = v[p.split:]
                k = len(v1)*p.xwpos//100
                w4 = wl(c+2); kw = (len(w4)*p.xwpos + 99)//100
                stream(v1[:k], w4[:kw]); stream(v1[k:], xw + w4[kw:])
            else: stream([], xw)
            if xw and XL >= 3: late[0] = len(xw)
        else:
            c = t + 1
            if c < 10:
                wait_vm(lambda t_: t_ == ("w", c))
                if p.dprio: a(f"s_setprio {p.dprio}")
                x = xs(t+XL)
                if p.xv == 2: stream([], xwr(t - 2 + XL))
                stream(rest, x[:p.xb])
                x = x[p.xb:]
                if p.walt:
                    for r in range(4):
                        writes(c, r)
                        if x: emit(x.pop(0)())
                else: writes(c)
                if p.dprio: a(f"s_setprio {prio}")
                stream([], x)
    if p.flags:
        order = list(range(nb))
        if p.two:
            order = [0, 2, 1, 3, 4] if nb == 5 else [0, 3, 1, 4, 2, 5]
            a("s_movk_i32 s3, 0x0101"); a(f"v_subrev_u32 v29, {WB}, v{vR}")
        for b in order:
            off = stage_off(p, nb, b); r0 = DR + 4*b
            lab = f"L_poll{nb}_{X}_{b}"
            if p.two and nb == 5 and b == 4: a("s_mov_b32 s3, 0x01010101")
            if p.poll:
                a(f"s_branch {lab}_in"); a.label(lab + "_s"); a(f"s_sleep {p.poll % 10}"); a.label(lab + "_in")
                a(f"ds_read_b32 v28, v5 offset:{4*b}"); a("s_waitcnt lgkmcnt(0)"); a("v_cmp_ne_u32 vcc, s3, v28"); a(f"s_cbranch_vccnz {lab}_s")
                a(f"ds_read_b128 v[{r0}:{r0+3}], v{vR} offset:{off-WB}" if off >= WB else f"ds_read_b128 v[{r0}:{r0+3}], v29 offset:{off}")
                a("s_waitcnt lgkmcnt(0)")
                a(f"buffer_store_dwordx4 v[{r0}:{r0+3}], v{vO}, s[24:27], s{90+b} offen {p.oflags}")
                st3(a, p, 1 + b, True)
                continue
            a.label(lab)
            a(f"ds_read_b32 v28, v5 offset:{4*b}")
            a(f"ds_read_b128 v[{r0}:{r0+3}], v{vR} offset:{off-WB}" if off >= WB else f"ds_read_b128 v[{r0}:{r0+3}], v29 offset:{off}")
            a("s_waitcnt lgkmcnt(0)")
            a("v_cmp_ne_u32 vcc, s3, v28")
            a(f"s_cbranch_vccnz {lab}")
            a(f"buffer_store_dwordx4 v[{r0}:{r0+3}], v{vO}, s[24:27], s{90+b} offen {p.oflags}")
            st3(a, p, 1 + b, True)
    for g in ([] if p.flags else groups(p, nb)):
        a("s_barrier")
        for b in g:
            off = ((b//2 + 1) % 3)*WSTAGE + (b % 2)*2048; r0 = DR + 4*b
            a(f"ds_read_b128 v[{r0}:{r0+3}], v{vR} offset:{off}")
        for k, b in enumerate(g):
            r0 = DR + 4*b
            a(f"s_waitcnt lgkmcnt({len(g)-1-k})")
            a(f"buffer_store_dwordx4 v[{r0}:{r0+3}], v{vO}, s[24:27], s{90+b} offen {p.oflags}")
    if p.stamps == 1: stamp(a, p, 5)
    stamp_out(a, p)
    a("s_endpgm")
    return head, a.text()

def cnear(p):
    a = Asm(); vD = 128 + 4*p.NB + 5
    a("v_and_b32 v1, 63, v0")
    pstamp(a, p, 2)
    dma_voff(a, 1, 32, vD, 2, 3)
    a("s_mul_i32 s50, s36, 40960"); a("s_add_u32 s50, s50, s34"); a("s_mul_i32 s57, s3, 10"); a("s_add_u32 s57, s57, s34")
    for b in range(1, 6):
        a(f"s_add_u32 s{50+b}, s{49+b}, 40960"); a(f"s_cmp_eq_u32 s{50+b}, s57"); a(f"s_cselect_b32 s{50+b}, s34, s{50+b}")
    xtable(a, p, 0, 2)
    a("s_add_u32 s31, s37, s3")
    a("s_waitcnt lgkmcnt(0)")
    pstamp(a, p, 5)
    srd(a, 16, 4, 10485760)
    if p.prebar: a("s_barrier")
    for c in range(2):
        for b in range(6):
            if b == 5: a("s_cmp_eq_u32 s3, 20480"); a("s_cbranch_scc1 " + ("L_n1" if c == 0 else "L_c5"))
            a(f"s_add_u32 m0, s{37 if c == 0 else 31}, {b*4096}"); a(f"s_add_u32 s56, s{50+b}, s{40+c}")
            a(f"buffer_load_dwordx4 v{vD}, s[16:19], s56 offen {p.xflags} lds")
        if c == 0: a.label("L_n1")
    a("s_branch L_c6")
    return a.text()

def gen(p):
    lds = p.NS*4096 + 3*WSTAGE + 512 + 256
    assert lds <= 163840
    a = Asm()
    stamp(a, p, 0)
    a("s_load_dwordx4 s[4:7], s[0:1], 0"); a("s_load_dwordx4 s[8:11], s[0:1], 16")
    if p.stamps:
        a("s_load_dwordx4 s[12:15], s[0:1], 32")
        if p.stamps != 3:
            for i in (1,2,4,5,6,7): a(f"s_mov_b32 s{60+2*i}, 0")
    a("v_lshrrev_b32 v1, 6, v0")
    if p.ipf:
        a("s_getpc_b64 s[76:77]"); a.label("L_pc")
        a("s_bfe_u32 s56, s2, 0x30003"); a("s_mul_i32 s56, s56, 6144")
        a("v_and_b32 v2, 3, v0"); a("v_lshl_add_u32 v2, v1, 2, v2"); a("v_lshlrev_b32 v2, 7, v2"); a("v_add_u32 v2, s56, v2")
        a("v_min_u32 v2, L_last - L_pc, v2")
        a("v_mov_b32 v3, s77"); a("v_add_co_u32 v2, vcc, s76, v2"); a("v_addc_co_u32 v3, vcc, 0, v3, vcc")
        a("global_load_dword v167, v[2:3], off")
    if p.map == 0:
        a("s_and_b32 s56, s2, 7"); a("s_lshr_b32 s57, s2, 3"); a("s_lshl_b32 s56, s56, 5"); a("s_add_u32 s56, s56, s57")
        a("v_readfirstlane_b32 s32, v1")
        a("s_cmp_ge_u32 s2, 255"); a("s_cbranch_scc1 L_exit")
        a("s_mul_i32 s57, s56, 205"); a("s_lshr_b32 s57, s57, 10")
        a("s_mul_i32 s58, s57, 5"); a("s_sub_u32 s33, s56, s58")
        if p.rot & 1:
            a("s_add_u32 s58, s33, s57"); a("s_mul_i32 s59, s58, 205"); a("s_lshr_b32 s59, s59, 10"); a("s_mul_i32 s59, s59, 5")
            a("s_sub_u32 s35, s58, s59"); a(f"s_lshl_b32 s35, s35, {7 if p.half else 8}")
        elif p.rot & 4:
            a("s_mul_i32 s59, s57, 205"); a("s_lshr_b32 s59, s59, 10"); a("s_mul_i32 s59, s59, 5")
            a("s_sub_u32 s35, s57, s59"); a(f"s_lshl_b32 s35, s35, {7 if p.half else 8}")
        else: a("s_mov_b32 s35, 0")
        if p.rot & 3: a("s_mov_b32 s36, s33")
        else: a("s_mov_b32 s36, 0")
        if p.early:
            a("s_sub_u32 s58, s57, 1"); a("s_cmp_eq_u32 s57, 0"); a("s_cselect_b32 s57, 50, s58")
        a("s_mul_i32 s34, s57, 204800")
        a("s_cmp_eq_u32 s57, 50"); a("s_cbranch_scc1 L_six")
    else:
        a("s_lshr_b32 s56, s2, 3"); a("s_and_b32 s58, s2, 7")
        a("s_mul_i32 s57, s56, 205"); a("s_lshr_b32 s57, s57, 10")
        a("v_readfirstlane_b32 s32, v1")
        a("s_cmp_ge_u32 s2, 240"); a("s_cbranch_scc1 L_exit")
        a("s_mul_i32 s59, s57, 5"); a("s_sub_u32 s33, s56, s59")
        if p.rot & 1:
            a("s_add_u32 s35, s33, s57"); a("s_sub_u32 s59, s35, 5"); a("s_cmp_ge_u32 s35, 5"); a("s_cselect_b32 s35, s59, s35")
            a("s_cmp_eq_u32 s35, 5"); a("s_cselect_b32 s35, 0, s35"); a(f"s_lshl_b32 s35, s35, {7 if p.half else 8}")
        else: a("s_mov_b32 s35, 0")
        if p.rot & 3: a("s_mov_b32 s36, s33")
        else: a("s_mov_b32 s36, 0")
        a("s_mul_i32 s34, s58, 1310720"); a("s_mul_i32 s59, s57, 204800"); a("s_add_u32 s34, s34, s59")
        a("s_min_u32 s59, s57, 2"); a("s_mul_i32 s59, s59, 40960"); a("s_add_u32 s34, s34, s59")
        a("s_cmp_lt_u32 s57, 2"); a("s_cbranch_scc1 L_six")
    con = consumer2 if p.two else consumer
    PA5, PB5, PA6, PB6 = producer(p, 5, 0), producer(p, 5, 1), producer(p, 6, 0), producer(p, 6, 1)
    if p.near:
        assert p.map == 1 and a.l[-1].strip() == "s_cbranch_scc1 L_six"
        a.l.pop(); a("s_cselect_b32 s3, 6, 5"); a("s_lshl_b32 s3, s3, 12")
        a("s_cmp_lt_u32 s32, 4"); a("s_cbranch_scc1 L_cn")
        a("s_cmp_ge_u32 s32, 8"); a("s_cbranch_scc1 L_bn")
        assert PA5[0] == PA6[0] and PB5[0] == PB6[0]
        far = lambda x: f"  s_cmp_eq_u32 s3, 20480\n  s_cbranch_scc1 L_{x}5\n  s_branch L_{x}6\n"
        body = a.text() + PA5[0] + far("a") + "L_cn:\n" + cnear(p) + "L_bn:\n" + PB5[0] + far("b") + "L_exit:\n  s_endpgm\n"
        body += "L_a6:\n" + PA6[1] + "L_b6:\n" + PB6[1] + "L_c6:\n" + con(p, 6) + "L_a5:\n" + PA5[1] + "L_b5:\n" + PB5[1] + "L_c5:\n" + con(p, 5)
    else:
        a("s_cmp_lt_u32 s32, 4"); a("s_cbranch_scc1 L_c5")
        a("s_cmp_ge_u32 s32, 8"); a("s_cbranch_scc1 L_b5")
        body = a.text() + "".join(PA5) + "L_exit:\n  s_endpgm\nL_b5:\n" + "".join(PB5) + "L_c5:\n" + con(p, 5)
        body += "L_six:\n  s_cmp_lt_u32 s32, 4\n  s_cbranch_scc1 L_c6\n  s_cmp_ge_u32 s32, 8\n  s_cbranch_scc1 L_b6\n"
        body += "".join(PA6) + "L_b6:\n" + "".join(PB6) + "L_c6:\n" + con(p, 6)
    hdr = open("standalone__structured_sparse_n_m__ragged.s.ref").read().split("; Override")[0]
    return hdr + f"""; Generated by my own generator script: tiles of 160(192) rows x 128 columns, 4 MFMA waves + 8 load/prune waves.
; @launch grid=({240 if p.map else 256},1,1) block=(768,1,1) lds={lds}
.amdgcn_target "amdgcn-amd-amdhsa--gfx950"
.text
.globl {KN}
.p2align 8
.type {KN},@function
{KN}:
{body}L_last:
  s_endpgm
.section .rodata,"a"
.p2align 6
.amdhsa_kernel {KN}
  .amdhsa_next_free_vgpr 168
  .amdhsa_next_free_sgpr 100
  .amdhsa_accum_offset 168
  .amdhsa_group_segment_fixed_size 0
  .amdhsa_kernarg_size 48
  .amdhsa_user_sgpr_count 2
  .amdhsa_user_sgpr_kernarg_segment_ptr 1
  .amdhsa_system_sgpr_workgroup_id_x 1
.end_amdhsa_kernel
""", lds

if __name__ == "__main__":
    out = sys.argv[1]
    p = P()
    for kv in sys.argv[2:]:
        k, v = kv.split("=", 1)
        old = getattr(P, k)
        setattr(p, k, v.replace("+", " ") if isinstance(old, str) else int(v))
    s, lds = gen(p)
    open(out, "w").write(s)
    from mk import build
    build(out)
    print(out, "lds", lds, "lines", s.count("\n"))
```

```python
import sys
KN = "standalone__structured_sparse_n_m__ragged_kernel"

class P:
    NB = 5; NS = 27
    xflags = "nt"; wflags = ""; oflags = "sc1"
    rot = 1; stamps = 0; fill = 3; early = 1
    xlead = 3; xlead6 = 2
    cprio = 0; aprio = 0; bprio = 0; proprio = 1
    prebar = 1; b0 = 1; split = 46
    tail = "01,2,3,4"; tail6 = "01,23,4,5"
    diag = ""
    nomfma = 0; noprune = 0; noxread = 0; noload = 0
    WS = 3; near = 0; ipf = 0; cy0 = 0; cy1 = 9; half = 0; map = 0; poll = 0; lags = ""; lags6 = ""; xp = 13; xp6 = 12; gate = 16; wrate = 1; estop = 1; two = 0; walt = 0; tst = 0; flags = 1; xv = 0; xwpos = 100; xreg = 0; now = 0; nox = 0; xb = 2; dprio = 0; nowrite = 0

WSTAGE = 16640
CBS = 4160

class Asm:
    def __init__(s): s.l = []
    def __call__(s, x): s.l.append("  " + x)
    def label(s, x): s.l.append(x + ":")
    def text(s): return "\n".join(s.l) + "\n"

S3 = [96] + [60+2*i for i in range(10)] + [98, 86, 88]
def st3(a, p, i, tail=False):
    if p.stamps == 3 and (tail == bool(p.tst) or i in (0, 10, 11, 12)): a(f"s_memtime s[{S3[i]}:{S3[i]+1}]")
def stamp(a, p, i):
    if p.stamps == 3:
        if i == 0: st3(a, p, 0); a("s_memrealtime s[88:89]")
        return
    if p.stamps: a(f"s_memrealtime s[{60+2*i}:{61+2*i}]")
def pstamp(a, p, i):
    if p.stamps == 2: stamp(a, p, i)
def bstamps(a, p, t):
    if not p.stamps or p.stamps == 3: return
    if p.stamps == 2:
        if t == 0: stamp(a, p, 1)
        return
    if t == 0: stamp(a, p, 1)
    if t == p.cy0: a("s_memtime s[72:73]")
    if t == 5: stamp(a, p, 2)
    if t == 9: stamp(a, p, 4)
    if t == p.cy1: a("s_memtime s[74:75]")
def stamp_out(a, p):
    if not p.stamps: return
    if p.stamps == 3:
        st3(a, p, 11)
        a("s_waitcnt vmcnt(0) lgkmcnt(0)"); st3(a, p, 12); a("s_waitcnt lgkmcnt(0)")
        a("s_mov_b32 s16, s14"); a("s_and_b32 s17, s15, 0xffff"); a("s_mov_b32 s18, 0x100000"); a("s_mov_b32 s19, 0x20000")
        a("s_lshl_b32 s56, s2, 4"); a("s_add_u32 s56, s56, s32"); a("s_lshl_b32 s56, s56, 6")
        for i in range(14): a(f"v_mov_b32 v{4+i}, s{S3[i]}")
        a("v_mov_b32 v3, s56"); a("v_mbcnt_lo_u32_b32 v2, -1, 0"); a("v_mbcnt_hi_u32_b32 v2, -1, v2"); a("s_nop 1"); a("v_cmp_eq_u32 vcc, 0, v2"); a("s_and_saveexec_b64 s[58:59], vcc")
        for i in range(4): a(f"buffer_store_dwordx4 v[{4+4*i}:{7+4*i}], v3, s[16:19], 0 offen offset:{16*i}")
        return
    a("s_waitcnt vmcnt(0) lgkmcnt(0)")
    a("s_memrealtime s[66:67]")
    a("s_waitcnt lgkmcnt(0)")
    if p.diag:
        i, j, K = map(int, p.diag.split(","))
        lab = f"L_spin{len(a.l)}_{id(a)%100000}"
        a(f"s_sub_u32 s56, s{60+2*j}, s{60+2*i}"); a(f"s_mul_i32 s56, s56, {K}") if K >= 0 else a(f"s_lshr_b32 s56, s56, {-K}"); a("s_min_u32 s56, s56, 20000")
        a.label(lab)
        a("s_memrealtime s[58:59]"); a("s_waitcnt lgkmcnt(0)"); a("s_sub_u32 s57, s58, s66"); a("s_cmp_lt_u32 s57, s56"); a(f"s_cbranch_scc1 {lab}")
        return
    a("s_mov_b32 s84, s14"); a("s_and_b32 s85, s15, 0xffff"); a("s_mov_b32 s86, 0x100000"); a("s_mov_b32 s87, 0x20000")
    a("s_lshl_b32 s56, s2, 4"); a("s_add_u32 s56, s56, s32"); a("s_lshl_b32 s56, s56, 5")
    for i in range(8): a(f"v_mov_b32 v{4+i}, s{60+2*i}")
    a("v_mov_b32 v3, s56"); a("v_mbcnt_lo_u32_b32 v2, -1, 0"); a("v_mbcnt_hi_u32_b32 v2, -1, v2"); a("s_nop 1"); a("v_cmp_eq_u32 vcc, 0, v2"); a("s_and_saveexec_b64 s[58:59], vcc")
    a("buffer_store_dwordx4 v[4:7], v3, s[84:87], 0 offen"); a("buffer_store_dwordx4 v[8:11], v3, s[84:87], 0 offen offset:16")

def srd(a, d, ptr, n):
    a(f"s_mov_b32 s{d}, s{ptr}"); a(f"s_and_b32 s{d+1}, s{ptr+1}, 0xffff"); a(f"s_mov_b32 s{d+2}, {n}"); a(f"s_mov_b32 s{d+3}, 0x20000")

def ktable(a, dst, c0, c1, unit, first):
    for c in range(c0, c1):
        if c == 0: a(f"s_mov_b32 s{dst}, s{first}")
        else:
            a(f"s_add_u32 s{dst+c}, s{dst+c-1}, {unit}"); a(f"s_cmp_eq_u32 s{dst+c}, s57"); a(f"s_cselect_b32 s{dst+c}, s58, s{dst+c}")
def xtable(a, p, c0, c1):
    if not p.half:
        a("s_mov_b32 s57, 1280"); a("s_mov_b32 s58, 0"); ktable(a, 40, c0, c1, 128, 35); return
    a("s_movk_i32 s57, 640"); a("s_mov_b32 s58, 0"); ktable(a, 40, c0, min(c1, 5), 128, 35)
    for c in range(max(c0, 5), c1): a(f"s_add_u32 s{40+c}, s{35+c}, 640")
def btable(a, nb):
    a("s_mul_i32 s50, s36, 40960"); a("s_add_u32 s50, s50, s34"); a(f"s_add_u32 s57, s34, {nb*40960}")
    for b in range(1, nb):
        a(f"s_add_u32 s{50+b}, s{49+b}, 40960"); a(f"s_cmp_eq_u32 s{50+b}, s57"); a(f"s_cselect_b32 s{50+b}, s34, s{50+b}")

def dma_voff(a, lane, wave_s, dst, t1, t2):
    a(f"v_lshrrev_b32 v{t1}, 3, v{lane}"); a(f"s_lshl_b32 s56, s{wave_s}, 3"); a(f"v_add_u32 v{t1}, s56, v{t1}")
    a(f"v_lshrrev_b32 v{t2}, 1, v{t1}"); a(f"v_xor_b32 v{t2}, v{t2}, v{lane}"); a(f"v_and_b32 v{t2}, 7, v{t2}")
    a(f"v_mul_u32_u24 v{t1}, 1280, v{t1}"); a(f"v_lshl_add_u32 v{dst}, v{t2}, 4, v{t1}")
    a(f"s_lshl_b32 s37, s{wave_s}, 10")

def slot(p, nb, b, c):
    if p.two: return ((c % (p.NS//nb))*nb + b)*4096
    return ((c*nb + b) % p.NS)*4096
def stage_off(p, nb, b):
    WB = p.NS*4096
    if p.WS == 2:
        assert not p.two and not p.lags and not p.lags6 and p.NS == 31
        return WB + (b//2)*WSTAGE + (b % 2)*2048 if b < 4 else (b % 2)*2048
    if not p.two: return WB + ((b//2 + 1) % 3)*WSTAGE + (b % 2)*2048
    A2 = 0 if nb == 5 else 12*4096
    if nb == 5: return A2 if b == 4 else WB + (1 + b//2)*WSTAGE + (b % 2)*2048
    r, j = divmod(b, 3)
    return A2 + r*2048 if j == 2 else WB + (1 + r)*WSTAGE + j*2048
def sched(p, nb):
    lg = [int(ch) for ch in (p.lags if nb == 5 else p.lags6)] or [0]*nb
    bc = []
    for t in range(9):
        for b in sorted(range(nb), key=lambda b: (-lg[b], b)):
            if t - lg[b] >= 0: bc.append((b, t - lg[b], t))
    for b in sorted(range(nb), key=lambda b: (lg[b], b)):
        for c in range(9 - lg[b], 10): bc.append((b, c, 9))
    mf = [(b, c, s, t) for b, c, t in bc for s in range(4)]
    if max(lg) == 0: P = xl(p, nb)*nb
    else: P = p.xp if nb == 5 else p.xp6
    at = [-1 if i < P else (i - P)//nb for i in range(len(bc))]
    for i, (b, c, t) in enumerate(bc):
        assert at[i] <= max(-1, t - 2), (i, at[i], t)
        if i >= p.NS: assert at[i] >= bc[i - p.NS][2] + 2, (i, at[i], bc[i - p.NS])
    return mf, bc, at, max(2, max(lg) + 1)
def dma_i(p, nb, bc, i, vD):
    b, c, t = bc[i]
    if p.noload: return []
    return [f"s_add_u32 m0, s37, {(i % p.NS)*4096}", f"s_add_u32 s56, s{50+b}, s{40+c}",
            f"buffer_load_dwordx4 v{vD}, s[16:19], s56 offen {p.xflags} lds"]
def dma_txt(p, nb, b, c, vD):
    if p.noload: return []
    if p.nox: return [f"buffer_load_dword v100, v{vD}, s[16:19], 0 offen offset:4095"] if c < 0 else ["s_nop 0"]
    if p.xreg: return [f"s_add_u32 s56, s{50+b}, s{40+c}", f"buffer_load_dwordx4 v[{100+4*b}:{103+4*b}], v{vD}, s[16:19], s56 offen {p.xflags}"]
    return [f"s_add_u32 m0, s37, {slot(p, nb, b, c)}", f"s_add_u32 s56, s{50+b}, s{40+c}",
            f"buffer_load_dwordx4 v{vD}, s[16:19], s56 offen {p.xflags} lds"]
def xl(p, nb):
    v = p.xlead if nb == 5 else p.xlead6
    assert (not p.two or v + 2 <= p.NS//nb) and (v + 2 - p.xv)*nb <= p.NS and v*nb <= p.NS and (p.xv < 2 or v >= p.xv + 1), (v, nb)
    return v
def groups(p, nb): return [[int(ch) for ch in g] for g in (p.tail if nb == 5 else p.tail6).split(",")]

def consumer(p, nb):
    a = Asm(); NB = p.NB; XL = xl(p, nb)
    WB = p.NS*4096; BIAS = WB + p.WS*WSTAGE
    ACC = lambda b: 16*b
    mf, bc, at, nW = sched(p, nb)
    idx_of = {(b, c): i for i, (b, c, _) in enumerate(bc)}
    WF = 128 - 16*nW; XF = 128; VA = XF + 4*NB
    assert WF >= 16*nb
    vX = [VA+i for i in range(4)]; vW = VA+4; vD = VA+5; vO = VA+6; vT = VA+7
    assert vT < 168, vT
    FL = BIAS + 512
    vm = []
    pro = [i for i in range(len(bc)) if at[i] == -1]
    if p.near:
        assert vD == 128 + 4*p.NB + 5 and not p.lags and not p.lags6
        xtable(a, p, 2, max(bc[i][1] for i in pro) + 1)
    else:
        a("v_and_b32 v1, 63, v0")
        pstamp(a, p, 2)
        dma_voff(a, 1, 32, vD, 2, 3)
        btable(a, nb)
        xtable(a, p, 0, max(bc[i][1] for i in pro) + 1)
        a("s_waitcnt lgkmcnt(0)")
        pstamp(a, p, 5)
        srd(a, 16, 4, 10485760)
        if p.prebar: a("s_barrier")
    for i in pro:
        if not (p.near and i < 2*nb):
            for x in dma_i(p, nb, bc, i, vD): a(x)
        vm.append(bc[i][2])
    pstamp(a, p, 6)
    a("v_and_b32 v2, 31, v1"); a("v_lshrrev_b32 v3, 5, v1"); a("v_lshrrev_b32 v4, 1, v2"); a("v_and_b32 v4, 7, v4")
    a("v_xor_b32 v4, v4, v3"); a("v_lshlrev_b32 v4, 4, v4"); a(f"v_lshl_add_u32 v{vX[0]}, v2, 7, v4")
    for s in range(1, 4): a(f"v_xor_b32 v{vX[s]}, {s*32}, v{vX[0]}")
    a("v_lshlrev_b32 v4, 9, v3"); a("v_bfe_u32 v5, v1, 4, 1"); a("v_lshl_add_u32 v4, v5, 5, v4")
    a("v_bfe_u32 v5, v1, 2, 2"); a("v_lshl_add_u32 v4, v5, 6, v4"); a("v_and_b32 v5, 3, v1"); a("v_lshl_add_u32 v4, v5, 3, v4")
    a(f"s_mul_i32 s56, s32, {CBS}"); a(f"s_add_u32 s56, s56, {WB}"); a(f"v_add_u32 v{vW}, s56, v4")
    a("v_bfe_u32 v5, v1, 1, 2"); a("v_xor_b32 v5, v5, v3"); a("v_lshlrev_b32 v5, 4, v5"); a("v_lshl_add_u32 v5, v2, 6, v5")
    a(f"v_add_u32 v{vO}, s56, v5")
    a("s_lshl_b32 s56, s32, 7"); a(f"s_add_u32 s56, s56, {BIAS}"); a("v_lshlrev_b32 v4, 4, v3"); a(f"v_add_u32 v{vT}, s56, v4")
    if p.cprio: a(f"s_setprio {p.cprio}")
    lastW = {}
    for k, (b, c, s, u) in enumerate(mf): lastW[(c, s)] = k
    lg = []
    def wait_lds(tags):
        idx = max([k for k, t_ in enumerate(lg) if t_ in tags], default=-1)
        if idx >= 0:
            a(f"s_waitcnt lgkmcnt({len(lg)-1-idx})"); del lg[:idx+1]
    def lds(txt, tagi):
        if len(lg) >= 15: wait_lds([lg[0]])
        a(txt); lg.append(tagi)
    xbase = [0]*4
    def xread(j):
        b, c, s, u = mf[j]
        off = (idx_of[(b, c)] % p.NS)*4096
        hi = off & ~0xffff
        if xbase[s] != hi:
            a(f"v_xor_b32 v{vX[s]}, 0x10000, v{vX[s]}"); xbase[s] = hi
        r = XF + 4*(j % NB)
        if not p.noxread: lds(f"ds_read_b128 v[{r}:{r+3}], v{vX[s]} offset:{off & 0xffff}", ("x", j))
    def wread(c, s):
        for q in range(2):
            r = WF + 16*(c % nW) + 4*s + 2*q
            lds(f"ds_read_b64_tr_b16 v[{r}:{r+1}], v{vW} offset:{(c%p.WS)*WSTAGE + s*1024 + q*256}", ("w", c, s))
    cur = [-1]
    def boundary(t):
        need = [k for k, c in enumerate(vm) if c <= t]
        if need and not p.noload and not p.nox:
            a(f"s_waitcnt vmcnt({len(vm)-1-max(need)})"); del vm[:max(need)+1]
        wait_lds([x for x in lg if x[0] == "w" and x[1] == t-1])
        st3(a, p, 1+t)
        a("s_barrier")
        bstamps(a, p, t)
        cur[0] = t
    fillq = []
    grp = groups(p, nb); done = set(); gi = [0]
    def epilogue_items(b):
        A = ACC(b); off = stage_off(p, nb, b) - WB
        it = [f"v_cvt_pk_bf16_f32 v{A+k}, v{A+2*k}, v{A+2*k+1}" for k in range(8)]
        if off < 0:
            off += WB
            if b == 4: it = [f"v_subrev_u32 v{vO}, {WB}, v{vO}"] + it; it[0], it[1] = it[1], it[0]; it = it[:2] + it[2:]; it[0:2] = [it[0] + "\n  " + it[1]]
        it = it[:4] + it[4:6] + [f"v_permlane32_swap_b32 v{A}, v{A+2}", f"v_permlane32_swap_b32 v{A+1}, v{A+3}", it[6],
               ("lds", f"ds_write_b128 v{vO}, v[{A}:{A+3}] offset:{off}", ("o", b)), it[7], f"v_xor_b32 v{A+8}, 32, v{vO}", "s_nop 0",
               f"v_permlane32_swap_b32 v{A+4}, v{A+6}", f"v_permlane32_swap_b32 v{A+5}, v{A+7}",
               ("lds", f"ds_write_b128 v{A+8}, v[{A+4}:{A+7}] offset:{off}", ("o", b))]
        if p.flags: it.append(("lds", f"ds_write_b8 v{vD}, v{vT} offset:{4*b}", ("f", b)))
        else: it.append(("done", b))
        return it
    pend = []
    def tailbar():
        g = grp[gi[0]]
        wait_lds([("o", b) for b in g]); a("s_barrier"); gi[0] += 1
    def emit_fill(n, force=False):
        k = 0
        if pend and not force:
            pend[0] -= 1
            if pend[0] <= 0: pend.pop(0); tailbar()
        while fillq and k < n:
            it = fillq[0]
            if isinstance(it, tuple) and it[0] == "gate":
                have = sum(8 if "v_mfma" in x else 1 for x in a.l[it[1]:])
                if have < p.gate:
                    if not force: return
                    if have < 12: a(f"s_nop {12-have-1}")
                fillq.pop(0); continue
            fillq.pop(0)
            if isinstance(it, str): a(it); k += 1
            elif it[0] == "lds":
                lds(it[1], it[2]); k += 1
                if it[2][0] == "f": st3(a, p, 1 + it[2][1], True)
            elif it[0] == "done":
                done.add(it[1])
                g = gi[0] + len(pend)
                if g < len(grp) and all(b in done for b in grp[g]):
                    if force:
                        while pend: pend.pop(0); tailbar()
                        tailbar()
                    else: pend.append(2)
    boundary(0)
    wread(0, 0)
    for q in range(4):
        r = ACC(nb-1) + 4*q
        lds(f"ds_read_b128 v[{r}:{r+3}], v{vT} offset:{q*32}", ("b",))
    nxt = [0]; wq = [(0, 1), (0, 2), (0, 3)]
    def advance(upto):
        while nxt[0] < min(upto, len(mf)):
            c = mf[nxt[0]][3]
            if cur[0] < c:
                boundary(c); wq.extend((c, s) for s in range(4))
            xread(nxt[0]); nxt[0] += 1
            if wq and lastW.get((wq[0][0] - nW, wq[0][1]), -1) < upto - NB: wread(*wq.pop(0))
    advance(NB)
    for j, (b, c, s, u) in enumerate(mf):
        if p.flags and j == 8: a(f"s_add_u32 s56, s32, {FL}"); a(f"v_mov_b32 v{vD}, s56"); a(f"v_mov_b32 v{vT}, 1")
        while (c, s) in wq:
            assert lastW.get((wq[0][0] - nW, wq[0][1]), -1) < j
            wread(*wq.pop(0))
        wait_lds([("x", j), ("w", c, s), ("b",)])
        A = ACC(b); wr = WF + 16*(c % nW) + 4*s; xr = XF + 4*(j % NB)
        C = ACC(nb-1) if (c == 0 and s == 0) else A
        if not p.nomfma: a(f"v_mfma_f32_32x32x16_bf16 v[{A}:{A+15}], v[{wr}:{wr+3}], v[{xr}:{xr+3}], v[{C}:{C+15}]")
        if c == 9 and s == 3:
            fillq.append(("gate", len(a.l))); fillq.extend(epilogue_items(b))
        advance(j + 1 + NB)
        emit_fill(p.fill)
    if p.stamps == 1: stamp(a, p, 5)
    emit_fill(100000, True)
    while pend: pend.pop(0); tailbar()
    assert p.flags or gi[0] == len(grp)
    stamp_out(a, p)
    a("s_endpgm")
    return a.text()

def consumer2(p, nb):
    a = Asm(); NB = p.NB; XL = xl(p, nb)
    WB = p.NS*4096; BIAS = WB + p.WS*WSTAGE; FL = BIAS + 512
    RB = nb//2
    WF = 96; XF = 128; VA = XF + 4*NB
    vX = [VA+i for i in range(4)]; vY = [VA+4+i for i in range(4)]
    vW = [VA+8, VA+9]; vO = [VA+10, VA+11]; vD = VA+12; vT = [VA+13, VA+14]; vF = VA+15
    assert vF < 168, vF
    vm = []
    a("v_and_b32 v1, 63, v0")
    pstamp(a, p, 2)
    dma_voff(a, 1, 32, vD, 2, 3)
    btable(a, nb)
    a("s_mov_b32 s57, 1280"); a("s_mov_b32 s58, 0")
    ktable(a, 40, 0, XL, 128, 35)
    a("s_waitcnt lgkmcnt(0)")
    pstamp(a, p, 5)
    srd(a, 16, 4, 10485760)
    if p.prebar: a("s_barrier")
    for c in range(XL):
        for b in range(nb):
            for x in dma_txt(p, nb, b, c, vD): a(x)
            vm.append(c)
    pstamp(a, p, 6)
    a("s_lshr_b32 s20, s32, 1"); a("s_and_b32 s21, s32, 1")
    a("s_lshl_b32 s22, s21, 1"); a("s_add_u32 s22, s22, s20"); a("s_xor_b32 s23, s22, 1")
    a("v_and_b32 v2, 31, v1"); a("v_lshrrev_b32 v3, 5, v1"); a("v_lshrrev_b32 v4, 1, v2"); a("v_and_b32 v4, 7, v4")
    a("v_xor_b32 v4, v4, v3"); a("v_lshlrev_b32 v4, 4, v4"); a(f"v_lshl_add_u32 v{vY[0]}, v2, 7, v4")
    for s in range(1, 4): a(f"v_xor_b32 v{vY[s]}, {s*32}, v{vY[0]}")
    a(f"s_mul_i32 s56, s20, {RB*4096}")
    for s in range(4): a(f"v_add_u32 v{vX[s]}, s56, v{vY[s]}")
    a("v_lshlrev_b32 v4, 9, v3"); a("v_bfe_u32 v5, v1, 4, 1"); a("v_lshl_add_u32 v4, v5, 5, v4")
    a("v_bfe_u32 v5, v1, 2, 2"); a("v_lshl_add_u32 v4, v5, 6, v4"); a("v_and_b32 v5, 3, v1"); a("v_lshl_add_u32 v4, v5, 3, v4")
    a("v_bfe_u32 v5, v1, 1, 2"); a("v_xor_b32 v5, v5, v3"); a("v_lshlrev_b32 v5, 4, v5"); a("v_lshl_add_u32 v5, v2, 6, v5")
    a("v_lshlrev_b32 v6, 4, v3")
    for q in range(2):
        a(f"s_mul_i32 s24, s{22+q}, {CBS}"); a(f"s_add_u32 s25, s24, {WB}"); a(f"v_add_u32 v{vW[q]}, s25, v4")
        a(f"v_add_u32 v{vO[q]}, s24, v5")
        a(f"s_lshl_b32 s56, s{22+q}, 7"); a(f"s_add_u32 s56, s56, {BIAS}"); a(f"v_add_u32 v{vT[q]}, s56, v6")
    a(f"s_mul_i32 s26, s20, {WSTAGE}"); a(f"s_add_u32 s26, s26, {WB + WSTAGE}")
    a(f"s_lshl_b32 s27, s20, 11")
    if nb == 6: a(f"s_add_u32 s27, s27, {12*4096}")
    else: a("s_mov_b32 s27, 0")
    a(f"s_mul_i32 s28, s20, {4*RB}"); a("s_add_u32 s28, s28, s21"); a(f"s_add_u32 s28, s28, {FL}"); a(f"s_add_u32 s29, s32, {FL+16}")
    if p.cprio: a(f"s_setprio {p.cprio}")
    NX = 3
    tiles = lambda j: [(2*j, 0), (2*j+1, 1)] if (nb == 6 or j < 2) else [(4, 0)]
    hold = [4, 5 if nb == 6 else 3]
    fr = []; mf = []
    for c in range(10):
        order = [(j, s) for s in range(4) for j in range(NX)] if c < 9 else [(j, s) for j in range(NX) for s in range(4)]
        for j, s in order:
            fr.append((j, c, s))
            for i, q in tiles(j): mf.append((i, q, c, s, len(fr)-1))
    lastW = {}; lastF = {}; lastA = {}
    for k, (i, q, c, s, f) in enumerate(mf): lastW[(c, s, q)] = k; lastF[f] = k; lastA[i] = k
    lg = []
    def wait_lds(tags):
        idx = max([k for k, t_ in enumerate(lg) if t_ in tags], default=-1)
        if idx >= 0:
            a(f"s_waitcnt lgkmcnt({len(lg)-1-idx})"); del lg[:idx+1]
    def lds(txt, tagi):
        if len(lg) >= 15: wait_lds([lg[0]])
        a(txt); lg.append(tagi)
    xbase = {}
    def xread(f):
        j, c, s = fr[f]
        shared = nb == 5 and j == 2
        v = vY[s] if shared else vX[s]
        off = slot(p, nb, 4 if shared else j, c)
        hi = off & ~0xffff
        if xbase.get(v, 0) != hi:
            a(f"v_xor_b32 v{v}, 0x10000, v{v}"); xbase[v] = hi
        r = XF + 4*(f % NB)
        if not p.noxread: lds(f"ds_read_b128 v[{r}:{r+3}], v{v} offset:{off & 0xffff}", ("x", f))
    def wread(c, s, q):
        for u in range(2):
            r = WF + 16*q + 4*s + 2*u
            lds(f"ds_read_b64_tr_b16 v[{r}:{r+1}], v{vW[q]} offset:{(c%p.WS)*WSTAGE + s*1024 + u*256}", ("w", c, s, q))
    cur = [-1]
    def boundary(t):
        need = [k for k, c in enumerate(vm) if c <= t]
        if need and not p.noload and not p.nox:
            a(f"s_waitcnt vmcnt({len(vm)-1-max(need)})"); del vm[:max(need)+1]
        st3(a, p, 1+t)
        a("s_barrier")
        bstamps(a, p, t)
        cur[0] = t
    fillq = []
    def epilogue_items(i, q):
        A = 16*i; j = i//2
        base = "s27" if j == 2 else "s26"; off = 0 if j == 2 else j*2048
        it = [f"v_cvt_pk_bf16_f32 v{A+k}, v{A+2*k}, v{A+2*k+1}" for k in range(8)]
        it += [f"v_add_u32 v{A+9}, {base}, v{vO[q]}", f"v_xor_b32 v{A+8}, 32, v{A+9}",
               f"v_permlane32_swap_b32 v{A}, v{A+2}", f"v_permlane32_swap_b32 v{A+1}, v{A+3}",
               ("lds", f"ds_write_b128 v{A+9}, v[{A}:{A+3}] offset:{off}", ("o", i)),
               f"v_permlane32_swap_b32 v{A+4}, v{A+6}", f"v_permlane32_swap_b32 v{A+5}, v{A+7}", ("stop",),
               ("lds", f"ds_write_b128 v{A+8}, v[{A+4}:{A+7}] offset:{off}", ("o", i)), ("stop",)]
        if nb == 5 and j == 2: it += [f"v_mov_b32 v{vF}, s29", ("lds", f"ds_write_b8 v{vF}, v{vD}", ("f", j))]
        elif q == 1: it.append(("lds", f"ds_write_b8 v{vF}, v{vD} offset:{4*j}", ("f", j)))
        return it
    def emit_fill(n, force=False):
        k = 0
        while fillq and k < n:
            it = fillq[0]
            if isinstance(it, tuple) and it[0] == "gate":
                have = len(a.l) - it[1]
                if have < 12:
                    if not force: return
                    a(f"s_nop {12-have-1}")
                fillq.pop(0); continue
            fillq.pop(0)
            if isinstance(it, str): a(it); k += 1
            elif it[0] == "stop":
                if not force and p.estop: return
            elif it[0] == "lds":
                lds(it[1], it[2]); k += 1
                if it[2][0] == "f": st3(a, p, 1 + it[2][1], True)
    boundary(0)
    wread(0, 0, 0); wread(0, 0, 1)
    nxt = [0]; wq = [(0, s, q) for s in range(1, 4) for q in range(2)]
    xread(0); nxt[0] = 1
    for q in range(2):
        for u in range(4):
            r = 16*hold[q] + 4*u
            lds(f"ds_read_b128 v[{r}:{r+3}], v{vT[q]} offset:{u*32}", ("b", q))
    def advance(k):
        while nxt[0] < len(fr) and (nxt[0] < NB or lastF[nxt[0]-NB] < k):
            c = fr[nxt[0]][1]
            if cur[0] < c:
                boundary(c); wq.extend((c, s, q) for s in range(4) for q in range(2))
            xread(nxt[0]); nxt[0] += 1
        n = 0
        while wq and n < p.wrate and lastW.get((wq[0][0]-1, wq[0][1], wq[0][2]), -1) < k:
            wread(*wq.pop(0)); n += 1
    advance(0)
    for k, (i, q, c, s, f) in enumerate(mf):
        if k == 12: a(f"v_mov_b32 v{vF}, s28"); a(f"v_mov_b32 v{vD}, 1")
        while (c, s, q) in wq: wread(*wq.pop(0))
        wait_lds([("x", f), ("w", c, s, q), ("b", q)])
        A = 16*i; wr = WF + 16*q + 4*s; xr = XF + 4*(f % NB)
        C = 16*hold[q] if (c == 0 and s == 0) else A
        if not p.nomfma: a(f"v_mfma_f32_32x32x16_bf16 v[{A}:{A+15}], v[{wr}:{wr+3}], v[{xr}:{xr+3}], v[{C}:{C+15}]")
        if k == lastA[i]:
            fillq.append(("gate", len(a.l))); fillq.extend(epilogue_items(i, q))
        advance(k + 1)
        emit_fill(p.fill)
    if p.stamps == 1: stamp(a, p, 5)
    emit_fill(100000, True)
    stamp_out(a, p)
    a("s_endpgm")
    return a.text()

def prune_all(S, T):
    o = []
    for j0 in (0, 2):
        js = (j0, j0+1)
        A = lambda j, r: T + (j-j0)*8 + r
        U = lambda j, k: T + (j-j0)*8 + 4 + k
        for r in range(4):
            for j in js: o.append(f"v_and_b32 v{A(j,r)}, s38, v{S+4*r+j}")
        for j in js: o.append(f"v_pk_max_u16 v{U(j,0)}, v{A(j,0)}, v{A(j,1)}")
        for j in js: o.append(f"v_pk_min_u16 v{U(j,1)}, v{A(j,0)}, v{A(j,1)}")
        for j in js: o.append(f"v_pk_max_u16 v{U(j,2)}, v{A(j,2)}, v{A(j,3)}")
        for j in js: o.append(f"v_pk_min_u16 v{U(j,3)}, v{A(j,2)}, v{A(j,3)}")
        for j in js: o.append(f"v_pk_min_u16 v{U(j,0)}, v{U(j,0)}, v{U(j,2)}")
        for j in js: o.append(f"v_pk_max_u16 v{U(j,1)}, v{U(j,1)}, v{U(j,3)}")
        for j in js: o.append(f"v_pk_max_u16 v{U(j,0)}, v{U(j,0)}, v{U(j,1)}")
        for r in range(4):
            for j in js: o.append(f"v_pk_sub_i16 v{A(j,r)}, v{A(j,r)}, v{U(j,0)}")
        for r in range(4):
            for j in js: o.append(f"v_pk_ashrrev_i16 v{A(j,r)}, 15, v{A(j,r)} op_sel_hi:[0,1]")
        for r in range(4):
            for j in js: o.append(f"v_bfi_b32 v{S+4*r+j}, v{A(j,r)}, 0, v{S+4*r+j}")
    return o

def producer(p, nb, X):
    a = Asm(); XL = xl(p, nb)
    WB = p.NS*4096; BIAS = WB + p.WS*WSTAGE
    vG = 1; vS = 2; vR = 3; vO = 4; vD = 7; T = 8; ST = 32; DR = 64
    WK = 80
    prio = p.aprio if X == 0 else p.bprio
    if X == 0 and p.proprio: a(f"s_setprio {p.proprio}")
    elif prio: a(f"s_setprio {prio}")
    a(f"s_sub_u32 s39, s32, {4+4*X}"); a("v_and_b32 v6, 63, v0")
    pstamp(a, p, 2)
    a("v_lshrrev_b32 v24, 4, v6"); a("s_lshl_b32 s56, s39, 2"); a("v_add_u32 v24, s56, v24")
    a("v_and_b32 v25, 15, v6"); a("v_mul_u32_u24 v9, 5120, v24"); a(f"v_lshl_add_u32 v{vG}, v25, 4, v9")
    a("s_lshl_b32 s59, s33, 8")
    if p.half:
        xtable(a, p, 0, 1 + X)
        a(f"s_mul_i32 s56, s{40+X}, 640"); a(f"s_add_u32 s{WK}, s56, s59")
    else:
        if X: a("s_add_u32 s58, s59, 81920")
        else: a("s_mov_b32 s58, s59")
        a("s_mul_i32 s56, s35, 640"); a(f"s_add_u32 s{WK}, s56, s58")
    if X == 0: a("v_lshlrev_b32 v10, 2, v6")
    a("s_waitcnt lgkmcnt(0)")
    pstamp(a, p, 5)
    srd(a, 20, 6, 819200)
    vm = []
    SR = lambda c: ST + 16*((c//2) % 2)
    def wload1(c, r):
        vm.append(("w", c))
        if p.noload or p.now: return []
        return [f"buffer_load_dwordx4 v[{SR(c)+4*r}:{SR(c)+4*r+3}], v{vG}, s[20:23], s{WK+c//2} offen offset:{r*1280} {p.wflags}"]
    XR = lambda b, c: 96 + 24*((c//2) % 2) + 4*b
    def xdma(b, c):
        vm.append(("x", c))
        if p.xv: return [f"s_add_u32 s56, s{50+b}, s{40+c}", f"buffer_load_dwordx4 v[{XR(b,c)}:{XR(b,c)+3}], v{vD}, s[16:19], s56 offen {p.xflags}"]
        return dma_txt(p, nb, b, c, vD)
    def xwr(c):
        if not p.xv or c >= 10 or c < XL: return []
        def one(b):
            if b == 0: wait_vm(lambda t_: t_ == ("x", c))
            off = slot(p, nb, b, c)
            return [f"ds_write_b128 v{30 + (off >> 16)}, v[{XR(b,c)}:{XR(b,c)+3}] offset:{off & 0xffff}"]
        return [(lambda b=b: one(b)) for b in range(nb)]
    def emit(l):
        for y in l: a(y)
    if X == 0:
        for r in range(4): emit(wload1(0, r))
        srd(a, 28, 8, 1280)
        a("buffer_load_dword v27, v10, s[28:31], s59 offen"); vm.append("bias")
        if p.prebar: a("s_barrier")
    else:
        if p.prebar: a("s_barrier")
        for r in range(4): emit(wload1(1, r))
    head = a.text(); a.l = []
    if p.half:
        xtable(a, p, 1 + X, 10)
        for k in range(1, 5): a(f"s_mul_i32 s56, s{40+X+2*k}, 640"); a(f"s_add_u32 s{WK+k}, s56, s59")
    else:
        a("s_add_u32 s57, s58, 819200")
        ktable(a, WK, 1, 5, 163840, WK)
    pstamp(a, p, 6)
    a("s_mov_b32 s38, 0x7fff7fff")
    srd(a, 16, 4, 10485760)
    dma_voff(a, 6, 39, vD, 12, 13)
    btable(a, nb)
    if not p.half: xtable(a, p, 0, 10)
    for b in range(nb): a(f"s_add_u32 s{90+b}, s{50+b}, s59")
    srd(a, 24, 10, 10485760)
    a("v_lshrrev_b32 v9, 2, v25"); a(f"v_mul_u32_u24 v9, {CBS}, v9"); a("v_lshl_add_u32 v14, v24, 8, v9"); a("v_and_b32 v12, 3, v25")
    a("v_lshl_add_u32 v14, v12, 4, v14"); a(f"v_add_u32 v{vS}, {WB}, v14")
    a("v_lshrrev_b32 v13, 4, v6"); a("s_lshl_b32 s56, s39, 3")
    if X: a("s_add_u32 s56, s56, 4")
    a("v_add_u32 v13, s56, v13")
    a("v_lshrrev_b32 v14, 1, v13"); a("v_xor_b32 v14, v14, v12"); a("v_and_b32 v14, 3, v14"); a("v_lshlrev_b32 v14, 4, v14")
    a("v_lshl_add_u32 v14, v13, 6, v14"); a("v_add_u32 v14, v14, v9"); a(f"v_add_u32 v{vR}, {WB}, v14")
    a("v_mul_u32_u24 v13, 1280, v13"); a(f"v_lshl_add_u32 v{vO}, v25, 4, v13")
    if X == 0: a("v_lshlrev_b32 v26, 3, v6"); a(f"v_add_u32 v26, {BIAS}, v26")
    if p.flags:
        a(f"v_mov_b32 v5, {BIAS + 512}"); a("s_mov_b32 s3, 0x01010101")
        if X == 1: a("v_lshl_add_u32 v28, v6, 2, v5"); a("v_mov_b32 v29, 0"); a("ds_write_b32 v28, v29")
    if p.xv: a("v_lshlrev_b32 v30, 4, v6"); a("v_add_u32 v30, s37, v30"); a("v_add_u32 v31, 0x10000, v30")
    def wait_vm(pred):
        idx = max([k for k, t_ in enumerate(vm) if pred(t_)], default=-1)
        if idx >= 0:
            n = len(vm)-1-idx
            if p.noload: n = 0
            if p.now: n = sum(1 for t_ in vm[idx+1:] if t_[0] != "w")
            if p.nox: n = sum(1 for t_ in vm[idx+1:] if t_[0] != "x")
            a(f"s_waitcnt vmcnt({n})"); del vm[:idx+1]
    def pr(c): return [] if p.noprune else prune_all(SR(c), T)
    def writes(c, only=None):
        if p.nowrite: return
        for r in (range(4) if only is None else [only]): a(f"ds_write_b128 v{vS}, v[{SR(c)+4*r}:{SR(c)+4*r+3}] offset:{(c%p.WS)*WSTAGE + r*64}")
    def stream(valu, mem):
        n = len(mem); k = 0
        for i, x in enumerate(valu):
            while k < n and i * n >= k * len(valu):
                emit(mem[k]()); k += 1
            a(x)
        while k < n:
            emit(mem[k]()); k += 1
    wl = lambda c: [(lambda r=r: wload1(c, r)) for r in range(4)] if c < 10 else []
    xs = lambda c: [(lambda b=b: xdma(b, c)) for b in range(nb)] if c < 10 else []
    if not p.two and not p.xv:
        mf_, bc, at, nW = sched(p, nb)
        def xdi(i):
            vm.append(("x", bc[i][2])); return dma_i(p, nb, bc, i, vD)
        xs = lambda c: [(lambda i=i: xdi(i)) for i in range(len(bc)) if at[i] == c - XL]
    rest = []
    if X == 0:
        wait_vm(lambda t_: t_ == ("w", 0))
        pstamp(a, p, 7)
        stream(pr(0), wl(2))
        writes(0)
        wait_vm(lambda t_: t_ == "bias")
        a("v_lshlrev_b32 v28, 16, v27"); a("v_and_b32 v29, 0xffff0000, v27"); a("ds_write_b64 v26, v[28:29]")
        if p.proprio != prio: a(f"s_setprio {prio}")
    else:
        if p.b0:
            wait_vm(lambda t_: t_ == ("w", 1))
            pstamp(a, p, 7)
            v = pr(1); stream(v[:p.split], wl(3)); rest = v[p.split:]
        else:
            stream([], wl(3)); rest = pr(1)
    late = [0]
    for t in range(10):
        if not p.xv: wait_vm(lambda t_: t_[0] == "x" and t_[1] <= t)
        a(f"s_waitcnt lgkmcnt({late[0]})"); late[0] = 0
        st3(a, p, 1+t)
        a("s_barrier")
        bstamps(a, p, t)
        if t % 2 == X:
            c = t + 2
            xw = xwr(t - 1 + XL) if p.xv == 1 else []
            if p.xv == 3:
                xw = xwr(t - 3 + XL); m = []
                w4 = wl(c+2) if c < 10 else []
                while xw or w4:
                    if xw: m.append(xw.pop(0))
                    if w4: m.append(w4.pop(0))
                if c < 10:
                    wait_vm(lambda t_: t_ == ("w", c))
                    v = pr(c); stream(v[:p.split], m); rest = v[p.split:]
                else: stream([], m)
            elif c < 10:
                wait_vm(lambda t_: t_ == ("w", c))
                v = pr(c); v1 = v[:p.split]; rest = v[p.split:]
                k = len(v1)*p.xwpos//100
                w4 = wl(c+2); kw = (len(w4)*p.xwpos + 99)//100
                stream(v1[:k], w4[:kw]); stream(v1[k:], xw + w4[kw:])
            else: stream([], xw)
            if xw and XL >= 3: late[0] = len(xw)
        else:
            c = t + 1
            if c < 10:
                wait_vm(lambda t_: t_ == ("w", c))
                if p.dprio: a(f"s_setprio {p.dprio}")
                x = xs(t+XL)
                if p.xv == 2: stream([], xwr(t - 2 + XL))
                stream(rest, x[:p.xb])
                x = x[p.xb:]
                if p.walt:
                    for r in range(4):
                        writes(c, r)
                        if x: emit(x.pop(0)())
                else: writes(c)
                if p.dprio: a(f"s_setprio {prio}")
                stream([], x)
    if p.flags:
        order = list(range(nb))
        if p.two:
            order = [0, 2, 1, 3, 4] if nb == 5 else [0, 3, 1, 4, 2, 5]
            a("s_movk_i32 s3, 0x0101")
        if p.two or p.WS == 2: a(f"v_subrev_u32 v29, {WB}, v{vR}")
        for b in order:
            off = stage_off(p, nb, b); r0 = DR + 4*b
            lab = f"L_poll{nb}_{X}_{b}"
            if p.two and nb == 5 and b == 4: a("s_mov_b32 s3, 0x01010101")
            if p.poll:
                a(f"s_branch {lab}_in"); a.label(lab + "_s"); a(f"s_sleep {p.poll % 10}"); a.label(lab + "_in")
                a(f"ds_read_b32 v28, v5 offset:{4*b}"); a("s_waitcnt lgkmcnt(0)"); a("v_cmp_ne_u32 vcc, s3, v28"); a(f"s_cbranch_vccnz {lab}_s")
                a(f"ds_read_b128 v[{r0}:{r0+3}], v{vR} offset:{off-WB}" if off >= WB else f"ds_read_b128 v[{r0}:{r0+3}], v29 offset:{off}")
                a("s_waitcnt lgkmcnt(0)")
                a(f"buffer_store_dwordx4 v[{r0}:{r0+3}], v{vO}, s[24:27], s{90+b} offen {p.oflags}")
                st3(a, p, 1 + b, True)
                continue
            a.label(lab)
            a(f"ds_read_b32 v28, v5 offset:{4*b}")
            a(f"ds_read_b128 v[{r0}:{r0+3}], v{vR} offset:{off-WB}" if off >= WB else f"ds_read_b128 v[{r0}:{r0+3}], v29 offset:{off}")
            a("s_waitcnt lgkmcnt(0)")
            a("v_cmp_ne_u32 vcc, s3, v28")
            a(f"s_cbranch_vccnz {lab}")
            a(f"buffer_store_dwordx4 v[{r0}:{r0+3}], v{vO}, s[24:27], s{90+b} offen {p.oflags}")
            st3(a, p, 1 + b, True)
    for g in ([] if p.flags else groups(p, nb)):
        a("s_barrier")
        for b in g:
            off = ((b//2 + 1) % 3)*WSTAGE + (b % 2)*2048; r0 = DR + 4*b
            a(f"ds_read_b128 v[{r0}:{r0+3}], v{vR} offset:{off}")
        for k, b in enumerate(g):
            r0 = DR + 4*b
            a(f"s_waitcnt lgkmcnt({len(g)-1-k})")
            a(f"buffer_store_dwordx4 v[{r0}:{r0+3}], v{vO}, s[24:27], s{90+b} offen {p.oflags}")
    if p.stamps == 1: stamp(a, p, 5)
    stamp_out(a, p)
    a("s_endpgm")
    return head, a.text()

def cnear(p):
    a = Asm(); vD = 128 + 4*p.NB + 5
    a("v_and_b32 v1, 63, v0")
    pstamp(a, p, 2)
    dma_voff(a, 1, 32, vD, 2, 3)
    a("s_mul_i32 s50, s36, 40960"); a("s_add_u32 s50, s50, s34"); a("s_mul_i32 s57, s3, 10"); a("s_add_u32 s57, s57, s34")
    for b in range(1, 6):
        a(f"s_add_u32 s{50+b}, s{49+b}, 40960"); a(f"s_cmp_eq_u32 s{50+b}, s57"); a(f"s_cselect_b32 s{50+b}, s34, s{50+b}")
    xtable(a, p, 0, 2)
    a("s_add_u32 s31, s37, s3")
    a("s_waitcnt lgkmcnt(0)")
    pstamp(a, p, 5)
    srd(a, 16, 4, 10485760)
    if p.prebar: a("s_barrier")
    for c in range(2):
        for b in range(6):
            if b == 5: a("s_cmp_eq_u32 s3, 20480"); a("s_cbranch_scc1 " + ("L_n1" if c == 0 else "L_c5"))
            a(f"s_add_u32 m0, s{37 if c == 0 else 31}, {b*4096}"); a(f"s_add_u32 s56, s{50+b}, s{40+c}")
            a(f"buffer_load_dwordx4 v{vD}, s[16:19], s56 offen {p.xflags} lds")
        if c == 0: a.label("L_n1")
    a("s_branch L_c6")
    return a.text()

def gen(p):
    lds = p.NS*4096 + p.WS*WSTAGE + 512 + 256
    assert lds <= 163840
    a = Asm()
    stamp(a, p, 0)
    a("s_load_dwordx4 s[4:7], s[0:1], 0"); a("s_load_dwordx4 s[8:11], s[0:1], 16")
    if p.stamps:
        a("s_load_dwordx4 s[12:15], s[0:1], 32")
        if p.stamps != 3:
            for i in (1,2,4,5,6,7): a(f"s_mov_b32 s{60+2*i}, 0")
    a("v_lshrrev_b32 v1, 6, v0")
    if p.ipf:
        a("s_getpc_b64 s[76:77]"); a.label("L_pc")
        a("s_bfe_u32 s56, s2, 0x30003"); a("s_mul_i32 s56, s56, 6144")
        a("v_and_b32 v2, 3, v0"); a("v_lshl_add_u32 v2, v1, 2, v2"); a("v_lshlrev_b32 v2, 7, v2"); a("v_add_u32 v2, s56, v2")
        a("v_min_u32 v2, L_last - L_pc, v2")
        a("v_mov_b32 v3, s77"); a("v_add_co_u32 v2, vcc, s76, v2"); a("v_addc_co_u32 v3, vcc, 0, v3, vcc")
        a("global_load_dword v167, v[2:3], off")
    if p.map == 0:
        a("s_and_b32 s56, s2, 7"); a("s_lshr_b32 s57, s2, 3"); a("s_lshl_b32 s56, s56, 5"); a("s_add_u32 s56, s56, s57")
        a("v_readfirstlane_b32 s32, v1")
        a("s_cmp_ge_u32 s2, 255"); a("s_cbranch_scc1 L_exit")
        a("s_mul_i32 s57, s56, 205"); a("s_lshr_b32 s57, s57, 10")
        a("s_mul_i32 s58, s57, 5"); a("s_sub_u32 s33, s56, s58")
        if p.rot & 1:
            a("s_add_u32 s58, s33, s57"); a("s_mul_i32 s59, s58, 205"); a("s_lshr_b32 s59, s59, 10"); a("s_mul_i32 s59, s59, 5")
            a("s_sub_u32 s35, s58, s59"); a(f"s_lshl_b32 s35, s35, {7 if p.half else 8}")
        elif p.rot & 4:
            a("s_mul_i32 s59, s57, 205"); a("s_lshr_b32 s59, s59, 10"); a("s_mul_i32 s59, s59, 5")
            a("s_sub_u32 s35, s57, s59"); a(f"s_lshl_b32 s35, s35, {7 if p.half else 8}")
        else: a("s_mov_b32 s35, 0")
        if p.rot & 3: a("s_mov_b32 s36, s33")
        else: a("s_mov_b32 s36, 0")
        if p.early:
            a("s_sub_u32 s58, s57, 1"); a("s_cmp_eq_u32 s57, 0"); a("s_cselect_b32 s57, 50, s58")
        a("s_mul_i32 s34, s57, 204800")
        a("s_cmp_eq_u32 s57, 50"); a("s_cbranch_scc1 L_six")
    else:
        a("s_lshr_b32 s56, s2, 3"); a("s_and_b32 s58, s2, 7")
        a("s_mul_i32 s57, s56, 205"); a("s_lshr_b32 s57, s57, 10")
        a("v_readfirstlane_b32 s32, v1")
        a("s_cmp_ge_u32 s2, 240"); a("s_cbranch_scc1 L_exit")
        a("s_mul_i32 s59, s57, 5"); a("s_sub_u32 s33, s56, s59")
        if p.rot & 1:
            a("s_add_u32 s35, s33, s57"); a("s_sub_u32 s59, s35, 5"); a("s_cmp_ge_u32 s35, 5"); a("s_cselect_b32 s35, s59, s35")
            a("s_cmp_eq_u32 s35, 5"); a("s_cselect_b32 s35, 0, s35"); a(f"s_lshl_b32 s35, s35, {7 if p.half else 8}")
        else: a("s_mov_b32 s35, 0")
        if p.rot & 3: a("s_mov_b32 s36, s33")
        else: a("s_mov_b32 s36, 0")
        a("s_mul_i32 s34, s58, 1310720"); a("s_mul_i32 s59, s57, 204800"); a("s_add_u32 s34, s34, s59")
        a("s_min_u32 s59, s57, 2"); a("s_mul_i32 s59, s59, 40960"); a("s_add_u32 s34, s34, s59")
        a("s_cmp_lt_u32 s57, 2"); a("s_cbranch_scc1 L_six")
    con = consumer2 if p.two else consumer
    PA5, PB5, PA6, PB6 = producer(p, 5, 0), producer(p, 5, 1), producer(p, 6, 0), producer(p, 6, 1)
    if p.near:
        assert p.map == 1 and a.l[-1].strip() == "s_cbranch_scc1 L_six"
        a.l.pop(); a("s_cselect_b32 s3, 6, 5"); a("s_lshl_b32 s3, s3, 12")
        a("s_cmp_lt_u32 s32, 4"); a("s_cbranch_scc1 L_cn")
        a("s_cmp_ge_u32 s32, 8"); a("s_cbranch_scc1 L_bn")
        assert PA5[0] == PA6[0] and PB5[0] == PB6[0]
        far = lambda x: f"  s_cmp_eq_u32 s3, 20480\n  s_cbranch_scc1 L_{x}5\n  s_branch L_{x}6\n"
        body = a.text() + PA5[0] + far("a") + "L_cn:\n" + cnear(p) + "L_bn:\n" + PB5[0] + far("b") + "L_exit:\n  s_endpgm\n"
        body += "L_a6:\n" + PA6[1] + "L_b6:\n" + PB6[1] + "L_c6:\n" + con(p, 6) + "L_a5:\n" + PA5[1] + "L_b5:\n" + PB5[1] + "L_c5:\n" + con(p, 5)
    else:
        a("s_cmp_lt_u32 s32, 4"); a("s_cbranch_scc1 L_c5")
        a("s_cmp_ge_u32 s32, 8"); a("s_cbranch_scc1 L_b5")
        body = a.text() + "".join(PA5) + "L_exit:\n  s_endpgm\nL_b5:\n" + "".join(PB5) + "L_c5:\n" + con(p, 5)
        body += "L_six:\n  s_cmp_lt_u32 s32, 4\n  s_cbranch_scc1 L_c6\n  s_cmp_ge_u32 s32, 8\n  s_cbranch_scc1 L_b6\n"
        body += "".join(PA6) + "L_b6:\n" + "".join(PB6) + "L_c6:\n" + con(p, 6)
    hdr = open("standalone__structured_sparse_n_m__ragged.s.ref").read().split("; Override")[0]
    return hdr + f"""; Generated by my own generator script: tiles of 160(192) rows x 128 columns, 4 MFMA waves + 8 load/prune waves.
; @launch grid=({240 if p.map else 256},1,1) block=(768,1,1) lds={lds}
.amdgcn_target "amdgcn-amd-amdhsa--gfx950"
.text
.globl {KN}
.p2align 8
.type {KN},@function
{KN}:
{body}L_last:
  s_endpgm
.section .rodata,"a"
.p2align 6
.amdhsa_kernel {KN}
  .amdhsa_next_free_vgpr 168
  .amdhsa_next_free_sgpr 100
  .amdhsa_accum_offset 168
  .amdhsa_group_segment_fixed_size 0
  .amdhsa_kernarg_size 48
  .amdhsa_user_sgpr_count 2
  .amdhsa_user_sgpr_kernarg_segment_ptr 1
  .amdhsa_system_sgpr_workgroup_id_x 1
.end_amdhsa_kernel
""", lds

if __name__ == "__main__":
    out = sys.argv[1]
    p = P()
    for kv in sys.argv[2:]:
        k, v = kv.split("=", 1)
        old = getattr(P, k)
        setattr(p, k, v.replace("+", " ") if isinstance(old, str) else int(v))
    s, lds = gen(p)
    open(out, "w").write(s)
    from mk import build
    build(out)
    print(out, "lds", lds, "lines", s.count("\n"))
```

```python
import sys
KN = "standalone__structured_sparse_n_m__ragged_kernel"

class P:
    NB = 5; NS = 27
    xflags = "nt"; wflags = ""; oflags = "sc1"
    rot = 1; stamps = 0; fill = 3; early = 1
    xlead = 3; xlead6 = 2
    cprio = 0; aprio = 0; bprio = 0; proprio = 1
    prebar = 1; b0 = 1; split = 46
    tail = "01,2,3,4"; tail6 = "01,23,4,5"
    diag = ""
    nomfma = 0; noprune = 0; noxread = 0; noload = 0
    pw2 = 0; pw3 = 0; bp0 = 0; cpace = 0; WS = 3; near = 0; ipf = 0; cy0 = 0; cy1 = 9; half = 0; map = 0; poll = 0; lags = ""; lags6 = ""; xp = 13; xp6 = 12; gate = 16; wrate = 1; estop = 1; two = 0; walt = 0; tst = 0; flags = 1; xv = 0; xwpos = 100; xreg = 0; now = 0; nox = 0; xb = 2; dprio = 0; nowrite = 0

WSTAGE = 16640
CBS = 4160

class Asm:
    def __init__(s): s.l = []
    def __call__(s, x): s.l.append("  " + x)
    def label(s, x): s.l.append(x + ":")
    def text(s): return "\n".join(s.l) + "\n"

S3 = [96] + [60+2*i for i in range(10)] + [98, 86, 88]
def st3(a, p, i, tail=False):
    if p.stamps == 3 and (tail == bool(p.tst) or i in (0, 10, 11, 12)): a(f"s_memtime s[{S3[i]}:{S3[i]+1}]")
def stamp(a, p, i):
    if p.stamps == 3:
        if i == 0: st3(a, p, 0); a("s_memrealtime s[88:89]")
        return
    if p.stamps: a(f"s_memrealtime s[{60+2*i}:{61+2*i}]")
def pstamp(a, p, i):
    if p.stamps == 2: stamp(a, p, i)
def bstamps(a, p, t):
    if not p.stamps or p.stamps == 3: return
    if p.stamps == 2:
        if t == 0: stamp(a, p, 1)
        return
    if t == 0: stamp(a, p, 1)
    if t == p.cy0: a("s_memtime s[72:73]")
    if t == 5: stamp(a, p, 2)
    if t == 9: stamp(a, p, 4)
    if t == p.cy1: a("s_memtime s[74:75]")
def stamp_out(a, p):
    if not p.stamps: return
    if p.stamps == 3:
        st3(a, p, 11)
        a("s_waitcnt vmcnt(0) lgkmcnt(0)"); st3(a, p, 12); a("s_waitcnt lgkmcnt(0)")
        a("s_mov_b32 s16, s14"); a("s_and_b32 s17, s15, 0xffff"); a("s_mov_b32 s18, 0x100000"); a("s_mov_b32 s19, 0x20000")
        a("s_lshl_b32 s56, s2, 4"); a("s_add_u32 s56, s56, s32"); a("s_lshl_b32 s56, s56, 6")
        for i in range(14): a(f"v_mov_b32 v{4+i}, s{S3[i]}")
        a("v_mov_b32 v3, s56"); a("v_mbcnt_lo_u32_b32 v2, -1, 0"); a("v_mbcnt_hi_u32_b32 v2, -1, v2"); a("s_nop 1"); a("v_cmp_eq_u32 vcc, 0, v2"); a("s_and_saveexec_b64 s[58:59], vcc")
        for i in range(4): a(f"buffer_store_dwordx4 v[{4+4*i}:{7+4*i}], v3, s[16:19], 0 offen offset:{16*i}")
        return
    a("s_waitcnt vmcnt(0) lgkmcnt(0)")
    a("s_memrealtime s[66:67]")
    a("s_waitcnt lgkmcnt(0)")
    if p.diag:
        i, j, K = map(int, p.diag.split(","))
        lab = f"L_spin{len(a.l)}_{id(a)%100000}"
        a(f"s_sub_u32 s56, s{60+2*j}, s{60+2*i}"); a(f"s_mul_i32 s56, s56, {K}") if K >= 0 else a(f"s_lshr_b32 s56, s56, {-K}"); a("s_min_u32 s56, s56, 20000")
        a.label(lab)
        a("s_memrealtime s[58:59]"); a("s_waitcnt lgkmcnt(0)"); a("s_sub_u32 s57, s58, s66"); a("s_cmp_lt_u32 s57, s56"); a(f"s_cbranch_scc1 {lab}")
        return
    a("s_mov_b32 s84, s14"); a("s_and_b32 s85, s15, 0xffff"); a("s_mov_b32 s86, 0x100000"); a("s_mov_b32 s87, 0x20000")
    a("s_lshl_b32 s56, s2, 4"); a("s_add_u32 s56, s56, s32"); a("s_lshl_b32 s56, s56, 5")
    for i in range(8): a(f"v_mov_b32 v{4+i}, s{60+2*i}")
    a("v_mov_b32 v3, s56"); a("v_mbcnt_lo_u32_b32 v2, -1, 0"); a("v_mbcnt_hi_u32_b32 v2, -1, v2"); a("s_nop 1"); a("v_cmp_eq_u32 vcc, 0, v2"); a("s_and_saveexec_b64 s[58:59], vcc")
    a("buffer_store_dwordx4 v[4:7], v3, s[84:87], 0 offen"); a("buffer_store_dwordx4 v[8:11], v3, s[84:87], 0 offen offset:16")

def srd(a, d, ptr, n):
    a(f"s_mov_b32 s{d}, s{ptr}"); a(f"s_and_b32 s{d+1}, s{ptr+1}, 0xffff"); a(f"s_mov_b32 s{d+2}, {n}"); a(f"s_mov_b32 s{d+3}, 0x20000")

def ktable(a, dst, c0, c1, unit, first):
    for c in range(c0, c1):
        if c == 0: a(f"s_mov_b32 s{dst}, s{first}")
        else:
            a(f"s_add_u32 s{dst+c}, s{dst+c-1}, {unit}"); a(f"s_cmp_eq_u32 s{dst+c}, s57"); a(f"s_cselect_b32 s{dst+c}, s58, s{dst+c}")
def xtable(a, p, c0, c1):
    if not p.half:
        a("s_mov_b32 s57, 1280"); a("s_mov_b32 s58, 0"); ktable(a, 40, c0, c1, 128, 35); return
    a("s_movk_i32 s57, 640"); a("s_mov_b32 s58, 0"); ktable(a, 40, c0, min(c1, 5), 128, 35)
    for c in range(max(c0, 5), c1): a(f"s_add_u32 s{40+c}, s{35+c}, 640")
def btable(a, nb):
    a("s_mul_i32 s50, s36, 40960"); a("s_add_u32 s50, s50, s34"); a(f"s_add_u32 s57, s34, {nb*40960}")
    for b in range(1, nb):
        a(f"s_add_u32 s{50+b}, s{49+b}, 40960"); a(f"s_cmp_eq_u32 s{50+b}, s57"); a(f"s_cselect_b32 s{50+b}, s34, s{50+b}")

def dma_voff(a, lane, wave_s, dst, t1, t2):
    a(f"v_lshrrev_b32 v{t1}, 3, v{lane}"); a(f"s_lshl_b32 s56, s{wave_s}, 3"); a(f"v_add_u32 v{t1}, s56, v{t1}")
    a(f"v_lshrrev_b32 v{t2}, 1, v{t1}"); a(f"v_xor_b32 v{t2}, v{t2}, v{lane}"); a(f"v_and_b32 v{t2}, 7, v{t2}")
    a(f"v_mul_u32_u24 v{t1}, 1280, v{t1}"); a(f"v_lshl_add_u32 v{dst}, v{t2}, 4, v{t1}")
    a(f"s_lshl_b32 s37, s{wave_s}, 10")

def slot(p, nb, b, c):
    if p.two: return ((c % (p.NS//nb))*nb + b)*4096
    return ((c*nb + b) % p.NS)*4096
def stage_off(p, nb, b):
    WB = p.NS*4096
    if p.WS == 2:
        assert not p.two and not p.lags and not p.lags6 and p.NS == 31
        return WB + (b//2)*WSTAGE + (b % 2)*2048 if b < 4 else (b % 2)*2048
    if not p.two: return WB + ((b//2 + 1) % 3)*WSTAGE + (b % 2)*2048
    A2 = 0 if nb == 5 else 12*4096
    if nb == 5: return A2 if b == 4 else WB + (1 + b//2)*WSTAGE + (b % 2)*2048
    r, j = divmod(b, 3)
    return A2 + r*2048 if j == 2 else WB + (1 + r)*WSTAGE + j*2048
def sched(p, nb):
    lg = [int(ch) for ch in (p.lags if nb == 5 else p.lags6)] or [0]*nb
    bc = []
    for t in range(9):
        for b in sorted(range(nb), key=lambda b: (-lg[b], b)):
            if t - lg[b] >= 0: bc.append((b, t - lg[b], t))
    for b in sorted(range(nb), key=lambda b: (lg[b], b)):
        for c in range(9 - lg[b], 10): bc.append((b, c, 9))
    mf = [(b, c, s, t) for b, c, t in bc for s in range(4)]
    if max(lg) == 0: P = xl(p, nb)*nb
    else: P = p.xp if nb == 5 else p.xp6
    at = [-1 if i < P else (i - P)//nb for i in range(len(bc))]
    for i, (b, c, t) in enumerate(bc):
        assert at[i] <= max(-1, t - 2), (i, at[i], t)
        if i >= p.NS: assert at[i] >= bc[i - p.NS][2] + 2, (i, at[i], bc[i - p.NS])
    return mf, bc, at, max(2, max(lg) + 1)
def dma_i(p, nb, bc, i, vD):
    b, c, t = bc[i]
    if p.noload: return []
    return [f"s_add_u32 m0, s37, {(i % p.NS)*4096}", f"s_add_u32 s56, s{50+b}, s{40+c}",
            f"buffer_load_dwordx4 v{vD}, s[16:19], s56 offen {p.xflags} lds"]
def dma_txt(p, nb, b, c, vD):
    if p.noload: return []
    if p.nox: return [f"buffer_load_dword v100, v{vD}, s[16:19], 0 offen offset:4095"] if c < 0 else ["s_nop 0"]
    if p.xreg: return [f"s_add_u32 s56, s{50+b}, s{40+c}", f"buffer_load_dwordx4 v[{100+4*b}:{103+4*b}], v{vD}, s[16:19], s56 offen {p.xflags}"]
    return [f"s_add_u32 m0, s37, {slot(p, nb, b, c)}", f"s_add_u32 s56, s{50+b}, s{40+c}",
            f"buffer_load_dwordx4 v{vD}, s[16:19], s56 offen {p.xflags} lds"]
def xl(p, nb):
    v = p.xlead if nb == 5 else p.xlead6
    assert (not p.two or v + 2 <= p.NS//nb) and (v + 2 - p.xv)*nb <= p.NS and v*nb <= p.NS and (p.xv < 2 or v >= p.xv + 1), (v, nb)
    return v
def groups(p, nb): return [[int(ch) for ch in g] for g in (p.tail if nb == 5 else p.tail6).split(",")]

def consumer(p, nb):
    a = Asm(); NB = p.NB; XL = xl(p, nb)
    WB = p.NS*4096; BIAS = WB + p.WS*WSTAGE
    ACC = lambda b: 16*b
    mf, bc, at, nW = sched(p, nb)
    idx_of = {(b, c): i for i, (b, c, _) in enumerate(bc)}
    WF = 128 - 16*nW; XF = 128; VA = XF + 4*NB
    assert WF >= 16*nb
    vX = [VA+i for i in range(4)]; vW = VA+4; vD = VA+5; vO = VA+6; vT = VA+7
    assert vT < 168, vT
    FL = BIAS + 512
    vm = []
    pro = [i for i in range(len(bc)) if at[i] == -1]
    if p.near:
        assert vD == 128 + 4*p.NB + 5 and not p.lags and not p.lags6
        xtable(a, p, 2, max(bc[i][1] for i in pro) + 1)
    else:
        a("v_and_b32 v1, 63, v0")
        pstamp(a, p, 2)
        dma_voff(a, 1, 32, vD, 2, 3)
        btable(a, nb)
        xtable(a, p, 0, max(bc[i][1] for i in pro) + 1)
        a("s_waitcnt lgkmcnt(0)")
        pstamp(a, p, 5)
        srd(a, 16, 4, 10485760)
        if p.prebar: a("s_barrier")
    for i in pro:
        if p.cpace and i == 2*nb: a(f"s_waitcnt vmcnt({nb if p.cpace == 1 else 0})")
        if not (p.near and i < 2*nb):
            for x in dma_i(p, nb, bc, i, vD): a(x)
        vm.append(bc[i][2])
    pstamp(a, p, 6)
    a("v_and_b32 v2, 31, v1"); a("v_lshrrev_b32 v3, 5, v1"); a("v_lshrrev_b32 v4, 1, v2"); a("v_and_b32 v4, 7, v4")
    a("v_xor_b32 v4, v4, v3"); a("v_lshlrev_b32 v4, 4, v4"); a(f"v_lshl_add_u32 v{vX[0]}, v2, 7, v4")
    for s in range(1, 4): a(f"v_xor_b32 v{vX[s]}, {s*32}, v{vX[0]}")
    a("v_lshlrev_b32 v4, 9, v3"); a("v_bfe_u32 v5, v1, 4, 1"); a("v_lshl_add_u32 v4, v5, 5, v4")
    a("v_bfe_u32 v5, v1, 2, 2"); a("v_lshl_add_u32 v4, v5, 6, v4"); a("v_and_b32 v5, 3, v1"); a("v_lshl_add_u32 v4, v5, 3, v4")
    a(f"s_mul_i32 s56, s32, {CBS}"); a(f"s_add_u32 s56, s56, {WB}"); a(f"v_add_u32 v{vW}, s56, v4")
    a("v_bfe_u32 v5, v1, 1, 2"); a("v_xor_b32 v5, v5, v3"); a("v_lshlrev_b32 v5, 4, v5"); a("v_lshl_add_u32 v5, v2, 6, v5")
    a(f"v_add_u32 v{vO}, s56, v5")
    a("s_lshl_b32 s56, s32, 7"); a(f"s_add_u32 s56, s56, {BIAS}"); a("v_lshlrev_b32 v4, 4, v3"); a(f"v_add_u32 v{vT}, s56, v4")
    if p.cprio: a(f"s_setprio {p.cprio}")
    lastW = {}
    for k, (b, c, s, u) in enumerate(mf): lastW[(c, s)] = k
    lg = []
    def wait_lds(tags):
        idx = max([k for k, t_ in enumerate(lg) if t_ in tags], default=-1)
        if idx >= 0:
            a(f"s_waitcnt lgkmcnt({len(lg)-1-idx})"); del lg[:idx+1]
    def lds(txt, tagi):
        if len(lg) >= 15: wait_lds([lg[0]])
        a(txt); lg.append(tagi)
    xbase = [0]*4
    def xread(j):
        b, c, s, u = mf[j]
        off = (idx_of[(b, c)] % p.NS)*4096
        hi = off & ~0xffff
        if xbase[s] != hi:
            a(f"v_xor_b32 v{vX[s]}, 0x10000, v{vX[s]}"); xbase[s] = hi
        r = XF + 4*(j % NB)
        if not p.noxread: lds(f"ds_read_b128 v[{r}:{r+3}], v{vX[s]} offset:{off & 0xffff}", ("x", j))
    def wread(c, s):
        for q in range(2):
            r = WF + 16*(c % nW) + 4*s + 2*q
            lds(f"ds_read_b64_tr_b16 v[{r}:{r+1}], v{vW} offset:{(c%p.WS)*WSTAGE + s*1024 + q*256}", ("w", c, s))
    cur = [-1]
    def boundary(t):
        need = [k for k, c in enumerate(vm) if c <= t]
        if need and not p.noload and not p.nox:
            a(f"s_waitcnt vmcnt({len(vm)-1-max(need)})"); del vm[:max(need)+1]
        wait_lds([x for x in lg if x[0] == "w" and x[1] == t-1])
        st3(a, p, 1+t)
        a("s_barrier")
        bstamps(a, p, t)
        cur[0] = t
    fillq = []
    grp = groups(p, nb); done = set(); gi = [0]
    def epilogue_items(b):
        A = ACC(b); off = stage_off(p, nb, b) - WB
        it = [f"v_cvt_pk_bf16_f32 v{A+k}, v{A+2*k}, v{A+2*k+1}" for k in range(8)]
        if off < 0:
            off += WB
            if b == 4: it = [f"v_subrev_u32 v{vO}, {WB}, v{vO}"] + it; it[0], it[1] = it[1], it[0]; it = it[:2] + it[2:]; it[0:2] = [it[0] + "\n  " + it[1]]
        it = it[:4] + it[4:6] + [f"v_permlane32_swap_b32 v{A}, v{A+2}", f"v_permlane32_swap_b32 v{A+1}, v{A+3}", it[6],
               ("lds", f"ds_write_b128 v{vO}, v[{A}:{A+3}] offset:{off}", ("o", b)), it[7], f"v_xor_b32 v{A+8}, 32, v{vO}", "s_nop 0",
               f"v_permlane32_swap_b32 v{A+4}, v{A+6}", f"v_permlane32_swap_b32 v{A+5}, v{A+7}",
               ("lds", f"ds_write_b128 v{A+8}, v[{A+4}:{A+7}] offset:{off}", ("o", b))]
        if p.flags: it.append(("lds", f"ds_write_b8 v{vD}, v{vT} offset:{4*b}", ("f", b)))
        else: it.append(("done", b))
        return it
    pend = []
    def tailbar():
        g = grp[gi[0]]
        wait_lds([("o", b) for b in g]); a("s_barrier"); gi[0] += 1
    def emit_fill(n, force=False):
        k = 0
        if pend and not force:
            pend[0] -= 1
            if pend[0] <= 0: pend.pop(0); tailbar()
        while fillq and k < n:
            it = fillq[0]
            if isinstance(it, tuple) and it[0] == "gate":
                have = sum(8 if "v_mfma" in x else 1 for x in a.l[it[1]:])
                if have < p.gate:
                    if not force: return
                    if have < 12: a(f"s_nop {12-have-1}")
                fillq.pop(0); continue
            fillq.pop(0)
            if isinstance(it, str): a(it); k += 1
            elif it[0] == "lds":
                lds(it[1], it[2]); k += 1
                if it[2][0] == "f": st3(a, p, 1 + it[2][1], True)
            elif it[0] == "done":
                done.add(it[1])
                g = gi[0] + len(pend)
                if g < len(grp) and all(b in done for b in grp[g]):
                    if force:
                        while pend: pend.pop(0); tailbar()
                        tailbar()
                    else: pend.append(2)
    boundary(0)
    wread(0, 0)
    for q in range(4):
        r = ACC(nb-1) + 4*q
        lds(f"ds_read_b128 v[{r}:{r+3}], v{vT} offset:{q*32}", ("b",))
    nxt = [0]; wq = [(0, 1), (0, 2), (0, 3)]
    def advance(upto):
        while nxt[0] < min(upto, len(mf)):
            c = mf[nxt[0]][3]
            if cur[0] < c:
                boundary(c); wq.extend((c, s) for s in range(4))
            xread(nxt[0]); nxt[0] += 1
            if wq and lastW.get((wq[0][0] - nW, wq[0][1]), -1) < upto - NB: wread(*wq.pop(0))
    advance(NB)
    for j, (b, c, s, u) in enumerate(mf):
        if p.flags and j == 8: a(f"s_add_u32 s56, s32, {FL}"); a(f"v_mov_b32 v{vD}, s56"); a(f"v_mov_b32 v{vT}, 1")
        while (c, s) in wq:
            assert lastW.get((wq[0][0] - nW, wq[0][1]), -1) < j
            wread(*wq.pop(0))
        wait_lds([("x", j), ("w", c, s), ("b",)])
        A = ACC(b); wr = WF + 16*(c % nW) + 4*s; xr = XF + 4*(j % NB)
        C = ACC(nb-1) if (c == 0 and s == 0) else A
        if not p.nomfma: a(f"v_mfma_f32_32x32x16_bf16 v[{A}:{A+15}], v[{wr}:{wr+3}], v[{xr}:{xr+3}], v[{C}:{C+15}]")
        if c == 9 and s == 3:
            fillq.append(("gate", len(a.l))); fillq.extend(epilogue_items(b))
        advance(j + 1 + NB)
        emit_fill(p.fill)
    if p.stamps == 1: stamp(a, p, 5)
    emit_fill(100000, True)
    while pend: pend.pop(0); tailbar()
    assert p.flags or gi[0] == len(grp)
    stamp_out(a, p)
    a("s_endpgm")
    return a.text()

def consumer2(p, nb):
    a = Asm(); NB = p.NB; XL = xl(p, nb)
    WB = p.NS*4096; BIAS = WB + p.WS*WSTAGE; FL = BIAS + 512
    RB = nb//2
    WF = 96; XF = 128; VA = XF + 4*NB
    vX = [VA+i for i in range(4)]; vY = [VA+4+i for i in range(4)]
    vW = [VA+8, VA+9]; vO = [VA+10, VA+11]; vD = VA+12; vT = [VA+13, VA+14]; vF = VA+15
    assert vF < 168, vF
    vm = []
    a("v_and_b32 v1, 63, v0")
    pstamp(a, p, 2)
    dma_voff(a, 1, 32, vD, 2, 3)
    btable(a, nb)
    a("s_mov_b32 s57, 1280"); a("s_mov_b32 s58, 0")
    ktable(a, 40, 0, XL, 128, 35)
    a("s_waitcnt lgkmcnt(0)")
    pstamp(a, p, 5)
    srd(a, 16, 4, 10485760)
    if p.prebar: a("s_barrier")
    for c in range(XL):
        for b in range(nb):
            for x in dma_txt(p, nb, b, c, vD): a(x)
            vm.append(c)
    pstamp(a, p, 6)
    a("s_lshr_b32 s20, s32, 1"); a("s_and_b32 s21, s32, 1")
    a("s_lshl_b32 s22, s21, 1"); a("s_add_u32 s22, s22, s20"); a("s_xor_b32 s23, s22, 1")
    a("v_and_b32 v2, 31, v1"); a("v_lshrrev_b32 v3, 5, v1"); a("v_lshrrev_b32 v4, 1, v2"); a("v_and_b32 v4, 7, v4")
    a("v_xor_b32 v4, v4, v3"); a("v_lshlrev_b32 v4, 4, v4"); a(f"v_lshl_add_u32 v{vY[0]}, v2, 7, v4")
    for s in range(1, 4): a(f"v_xor_b32 v{vY[s]}, {s*32}, v{vY[0]}")
    a(f"s_mul_i32 s56, s20, {RB*4096}")
    for s in range(4): a(f"v_add_u32 v{vX[s]}, s56, v{vY[s]}")
    a("v_lshlrev_b32 v4, 9, v3"); a("v_bfe_u32 v5, v1, 4, 1"); a("v_lshl_add_u32 v4, v5, 5, v4")
    a("v_bfe_u32 v5, v1, 2, 2"); a("v_lshl_add_u32 v4, v5, 6, v4"); a("v_and_b32 v5, 3, v1"); a("v_lshl_add_u32 v4, v5, 3, v4")
    a("v_bfe_u32 v5, v1, 1, 2"); a("v_xor_b32 v5, v5, v3"); a("v_lshlrev_b32 v5, 4, v5"); a("v_lshl_add_u32 v5, v2, 6, v5")
    a("v_lshlrev_b32 v6, 4, v3")
    for q in range(2):
        a(f"s_mul_i32 s24, s{22+q}, {CBS}"); a(f"s_add_u32 s25, s24, {WB}"); a(f"v_add_u32 v{vW[q]}, s25, v4")
        a(f"v_add_u32 v{vO[q]}, s24, v5")
        a(f"s_lshl_b32 s56, s{22+q}, 7"); a(f"s_add_u32 s56, s56, {BIAS}"); a(f"v_add_u32 v{vT[q]}, s56, v6")
    a(f"s_mul_i32 s26, s20, {WSTAGE}"); a(f"s_add_u32 s26, s26, {WB + WSTAGE}")
    a(f"s_lshl_b32 s27, s20, 11")
    if nb == 6: a(f"s_add_u32 s27, s27, {12*4096}")
    else: a("s_mov_b32 s27, 0")
    a(f"s_mul_i32 s28, s20, {4*RB}"); a("s_add_u32 s28, s28, s21"); a(f"s_add_u32 s28, s28, {FL}"); a(f"s_add_u32 s29, s32, {FL+16}")
    if p.cprio: a(f"s_setprio {p.cprio}")
    NX = 3
    tiles = lambda j: [(2*j, 0), (2*j+1, 1)] if (nb == 6 or j < 2) else [(4, 0)]
    hold = [4, 5 if nb == 6 else 3]
    fr = []; mf = []
    for c in range(10):
        order = [(j, s) for s in range(4) for j in range(NX)] if c < 9 else [(j, s) for j in range(NX) for s in range(4)]
        for j, s in order:
            fr.append((j, c, s))
            for i, q in tiles(j): mf.append((i, q, c, s, len(fr)-1))
    lastW = {}; lastF = {}; lastA = {}
    for k, (i, q, c, s, f) in enumerate(mf): lastW[(c, s, q)] = k; lastF[f] = k; lastA[i] = k
    lg = []
    def wait_lds(tags):
        idx = max([k for k, t_ in enumerate(lg) if t_ in tags], default=-1)
        if idx >= 0:
            a(f"s_waitcnt lgkmcnt({len(lg)-1-idx})"); del lg[:idx+1]
    def lds(txt, tagi):
        if len(lg) >= 15: wait_lds([lg[0]])
        a(txt); lg.append(tagi)
    xbase = {}
    def xread(f):
        j, c, s = fr[f]
        shared = nb == 5 and j == 2
        v = vY[s] if shared else vX[s]
        off = slot(p, nb, 4 if shared else j, c)
        hi = off & ~0xffff
        if xbase.get(v, 0) != hi:
            a(f"v_xor_b32 v{v}, 0x10000, v{v}"); xbase[v] = hi
        r = XF + 4*(f % NB)
        if not p.noxread: lds(f"ds_read_b128 v[{r}:{r+3}], v{v} offset:{off & 0xffff}", ("x", f))
    def wread(c, s, q):
        for u in range(2):
            r = WF + 16*q + 4*s + 2*u
            lds(f"ds_read_b64_tr_b16 v[{r}:{r+1}], v{vW[q]} offset:{(c%p.WS)*WSTAGE + s*1024 + u*256}", ("w", c, s, q))
    cur = [-1]
    def boundary(t):
        need = [k for k, c in enumerate(vm) if c <= t]
        if need and not p.noload and not p.nox:
            a(f"s_waitcnt vmcnt({len(vm)-1-max(need)})"); del vm[:max(need)+1]
        st3(a, p, 1+t)
        a("s_barrier")
        bstamps(a, p, t)
        cur[0] = t
    fillq = []
    def epilogue_items(i, q):
        A = 16*i; j = i//2
        base = "s27" if j == 2 else "s26"; off = 0 if j == 2 else j*2048
        it = [f"v_cvt_pk_bf16_f32 v{A+k}, v{A+2*k}, v{A+2*k+1}" for k in range(8)]
        it += [f"v_add_u32 v{A+9}, {base}, v{vO[q]}", f"v_xor_b32 v{A+8}, 32, v{A+9}",
               f"v_permlane32_swap_b32 v{A}, v{A+2}", f"v_permlane32_swap_b32 v{A+1}, v{A+3}",
               ("lds", f"ds_write_b128 v{A+9}, v[{A}:{A+3}] offset:{off}", ("o", i)),
               f"v_permlane32_swap_b32 v{A+4}, v{A+6}", f"v_permlane32_swap_b32 v{A+5}, v{A+7}", ("stop",),
               ("lds", f"ds_write_b128 v{A+8}, v[{A+4}:{A+7}] offset:{off}", ("o", i)), ("stop",)]
        if nb == 5 and j == 2: it += [f"v_mov_b32 v{vF}, s29", ("lds", f"ds_write_b8 v{vF}, v{vD}", ("f", j))]
        elif q == 1: it.append(("lds", f"ds_write_b8 v{vF}, v{vD} offset:{4*j}", ("f", j)))
        return it
    def emit_fill(n, force=False):
        k = 0
        while fillq and k < n:
            it = fillq[0]
            if isinstance(it, tuple) and it[0] == "gate":
                have = len(a.l) - it[1]
                if have < 12:
                    if not force: return
                    a(f"s_nop {12-have-1}")
                fillq.pop(0); continue
            fillq.pop(0)
            if isinstance(it, str): a(it); k += 1
            elif it[0] == "stop":
                if not force and p.estop: return
            elif it[0] == "lds":
                lds(it[1], it[2]); k += 1
                if it[2][0] == "f": st3(a, p, 1 + it[2][1], True)
    boundary(0)
    wread(0, 0, 0); wread(0, 0, 1)
    nxt = [0]; wq = [(0, s, q) for s in range(1, 4) for q in range(2)]
    xread(0); nxt[0] = 1
    for q in range(2):
        for u in range(4):
            r = 16*hold[q] + 4*u
            lds(f"ds_read_b128 v[{r}:{r+3}], v{vT[q]} offset:{u*32}", ("b", q))
    def advance(k):
        while nxt[0] < len(fr) and (nxt[0] < NB or lastF[nxt[0]-NB] < k):
            c = fr[nxt[0]][1]
            if cur[0] < c:
                boundary(c); wq.extend((c, s, q) for s in range(4) for q in range(2))
            xread(nxt[0]); nxt[0] += 1
        n = 0
        while wq and n < p.wrate and lastW.get((wq[0][0]-1, wq[0][1], wq[0][2]), -1) < k:
            wread(*wq.pop(0)); n += 1
    advance(0)
    for k, (i, q, c, s, f) in enumerate(mf):
        if k == 12: a(f"v_mov_b32 v{vF}, s28"); a(f"v_mov_b32 v{vD}, 1")
        while (c, s, q) in wq: wread(*wq.pop(0))
        wait_lds([("x", f), ("w", c, s, q), ("b", q)])
        A = 16*i; wr = WF + 16*q + 4*s; xr = XF + 4*(f % NB)
        C = 16*hold[q] if (c == 0 and s == 0) else A
        if not p.nomfma: a(f"v_mfma_f32_32x32x16_bf16 v[{A}:{A+15}], v[{wr}:{wr+3}], v[{xr}:{xr+3}], v[{C}:{C+15}]")
        if k == lastA[i]:
            fillq.append(("gate", len(a.l))); fillq.extend(epilogue_items(i, q))
        advance(k + 1)
        emit_fill(p.fill)
    if p.stamps == 1: stamp(a, p, 5)
    emit_fill(100000, True)
    stamp_out(a, p)
    a("s_endpgm")
    return a.text()

def prune_all(S, T):
    o = []
    for j0 in (0, 2):
        js = (j0, j0+1)
        A = lambda j, r: T + (j-j0)*8 + r
        U = lambda j, k: T + (j-j0)*8 + 4 + k
        for r in range(4):
            for j in js: o.append(f"v_and_b32 v{A(j,r)}, s38, v{S+4*r+j}")
        for j in js: o.append(f"v_pk_max_u16 v{U(j,0)}, v{A(j,0)}, v{A(j,1)}")
        for j in js: o.append(f"v_pk_min_u16 v{U(j,1)}, v{A(j,0)}, v{A(j,1)}")
        for j in js: o.append(f"v_pk_max_u16 v{U(j,2)}, v{A(j,2)}, v{A(j,3)}")
        for j in js: o.append(f"v_pk_min_u16 v{U(j,3)}, v{A(j,2)}, v{A(j,3)}")
        for j in js: o.append(f"v_pk_min_u16 v{U(j,0)}, v{U(j,0)}, v{U(j,2)}")
        for j in js: o.append(f"v_pk_max_u16 v{U(j,1)}, v{U(j,1)}, v{U(j,3)}")
        for j in js: o.append(f"v_pk_max_u16 v{U(j,0)}, v{U(j,0)}, v{U(j,1)}")
        for r in range(4):
            for j in js: o.append(f"v_pk_sub_i16 v{A(j,r)}, v{A(j,r)}, v{U(j,0)}")
        for r in range(4):
            for j in js: o.append(f"v_pk_ashrrev_i16 v{A(j,r)}, 15, v{A(j,r)} op_sel_hi:[0,1]")
        for r in range(4):
            for j in js: o.append(f"v_bfi_b32 v{S+4*r+j}, v{A(j,r)}, 0, v{S+4*r+j}")
    return o

def producer(p, nb, X):
    a = Asm(); XL = xl(p, nb)
    WB = p.NS*4096; BIAS = WB + p.WS*WSTAGE
    vG = 1; vS = 2; vR = 3; vO = 4; vD = 7; T = 8; ST = 32; DR = 64
    WK = 80
    prio = p.aprio if X == 0 else p.bprio
    if X == 0 and p.proprio: a(f"s_setprio {p.proprio}")
    elif X == 1 and p.bp0: a(f"s_setprio {p.bp0}")
    elif prio: a(f"s_setprio {prio}")
    a(f"s_sub_u32 s39, s32, {4+4*X}"); a("v_and_b32 v6, 63, v0")
    pstamp(a, p, 2)
    a("v_lshrrev_b32 v24, 4, v6"); a("s_lshl_b32 s56, s39, 2"); a("v_add_u32 v24, s56, v24")
    a("v_and_b32 v25, 15, v6"); a("v_mul_u32_u24 v9, 5120, v24"); a(f"v_lshl_add_u32 v{vG}, v25, 4, v9")
    a("s_lshl_b32 s59, s33, 8")
    if p.half:
        early2 = (p.pw2 if X == 0 else p.pw3 == 1)
        xtable(a, p, 0, 1 + X + 2*early2)
        a(f"s_mul_i32 s56, s{40+X}, 640"); a(f"s_add_u32 s{WK}, s56, s59")
        if early2: a(f"s_mul_i32 s56, s{42+X}, 640"); a(f"s_add_u32 s{WK+1}, s56, s59")
    else:
        if X: a("s_add_u32 s58, s59, 81920")
        else: a("s_mov_b32 s58, s59")
        a("s_mul_i32 s56, s35, 640"); a(f"s_add_u32 s{WK}, s56, s58")
    if X == 0: a("v_lshlrev_b32 v10, 2, v6")
    a("s_waitcnt lgkmcnt(0)")
    pstamp(a, p, 5)
    srd(a, 20, 6, 819200)
    vm = []
    SR = lambda c: ST + 16*((c//2) % 2)
    def wload1(c, r):
        vm.append(("w", c))
        if p.noload or p.now: return []
        return [f"buffer_load_dwordx4 v[{SR(c)+4*r}:{SR(c)+4*r+3}], v{vG}, s[20:23], s{WK+c//2} offen offset:{r*1280} {p.wflags}"]
    XR = lambda b, c: 96 + 24*((c//2) % 2) + 4*b
    def xdma(b, c):
        vm.append(("x", c))
        if p.xv: return [f"s_add_u32 s56, s{50+b}, s{40+c}", f"buffer_load_dwordx4 v[{XR(b,c)}:{XR(b,c)+3}], v{vD}, s[16:19], s56 offen {p.xflags}"]
        return dma_txt(p, nb, b, c, vD)
    def xwr(c):
        if not p.xv or c >= 10 or c < XL: return []
        def one(b):
            if b == 0: wait_vm(lambda t_: t_ == ("x", c))
            off = slot(p, nb, b, c)
            return [f"ds_write_b128 v{30 + (off >> 16)}, v[{XR(b,c)}:{XR(b,c)+3}] offset:{off & 0xffff}"]
        return [(lambda b=b: one(b)) for b in range(nb)]
    def emit(l):
        for y in l: a(y)
    if X == 0:
        for r in range(4): emit(wload1(0, r))
        srd(a, 28, 8, 1280)
        a("buffer_load_dword v27, v10, s[28:31], s59 offen"); vm.append("bias")
        if p.pw2:
            for r in range(4): emit(wload1(2, r))
        if p.prebar: a("s_barrier")
    else:
        if p.prebar: a("s_barrier")
        for r in range(4): emit(wload1(1, r))
        if p.pw3 == 1:
            for r in range(4): emit(wload1(3, r))
    head = a.text(); a.l = []
    if p.half:
        xtable(a, p, 1 + X + 2*early2, 10)
        for k in range(1 + early2, 5): a(f"s_mul_i32 s56, s{40+X+2*k}, 640"); a(f"s_add_u32 s{WK+k}, s56, s59")
    else:
        a("s_add_u32 s57, s58, 819200")
        ktable(a, WK, 1, 5, 163840, WK)
    pstamp(a, p, 6)
    a("s_mov_b32 s38, 0x7fff7fff")
    srd(a, 16, 4, 10485760)
    dma_voff(a, 6, 39, vD, 12, 13)
    btable(a, nb)
    if not p.half: xtable(a, p, 0, 10)
    for b in range(nb): a(f"s_add_u32 s{90+b}, s{50+b}, s59")
    srd(a, 24, 10, 10485760)
    a("v_lshrrev_b32 v9, 2, v25"); a(f"v_mul_u32_u24 v9, {CBS}, v9"); a("v_lshl_add_u32 v14, v24, 8, v9"); a("v_and_b32 v12, 3, v25")
    a("v_lshl_add_u32 v14, v12, 4, v14"); a(f"v_add_u32 v{vS}, {WB}, v14")
    a("v_lshrrev_b32 v13, 4, v6"); a("s_lshl_b32 s56, s39, 3")
    if X: a("s_add_u32 s56, s56, 4")
    a("v_add_u32 v13, s56, v13")
    a("v_lshrrev_b32 v14, 1, v13"); a("v_xor_b32 v14, v14, v12"); a("v_and_b32 v14, 3, v14"); a("v_lshlrev_b32 v14, 4, v14")
    a("v_lshl_add_u32 v14, v13, 6, v14"); a("v_add_u32 v14, v14, v9"); a(f"v_add_u32 v{vR}, {WB}, v14")
    a("v_mul_u32_u24 v13, 1280, v13"); a(f"v_lshl_add_u32 v{vO}, v25, 4, v13")
    if X == 0: a("v_lshlrev_b32 v26, 3, v6"); a(f"v_add_u32 v26, {BIAS}, v26")
    if p.flags:
        a(f"v_mov_b32 v5, {BIAS + 512}"); a("s_mov_b32 s3, 0x01010101")
        if X == 1: a("v_lshl_add_u32 v28, v6, 2, v5"); a("v_mov_b32 v29, 0"); a("ds_write_b32 v28, v29")
    if p.xv: a("v_lshlrev_b32 v30, 4, v6"); a("v_add_u32 v30, s37, v30"); a("v_add_u32 v31, 0x10000, v30")
    def wait_vm(pred):
        idx = max([k for k, t_ in enumerate(vm) if pred(t_)], default=-1)
        if idx >= 0:
            n = len(vm)-1-idx
            if p.noload: n = 0
            if p.now: n = sum(1 for t_ in vm[idx+1:] if t_[0] != "w")
            if p.nox: n = sum(1 for t_ in vm[idx+1:] if t_[0] != "x")
            a(f"s_waitcnt vmcnt({n})"); del vm[:idx+1]
    def pr(c): return [] if p.noprune else prune_all(SR(c), T)
    def writes(c, only=None):
        if p.nowrite: return
        for r in (range(4) if only is None else [only]): a(f"ds_write_b128 v{vS}, v[{SR(c)+4*r}:{SR(c)+4*r+3}] offset:{(c%p.WS)*WSTAGE + r*64}")
    def stream(valu, mem):
        n = len(mem); k = 0
        for i, x in enumerate(valu):
            while k < n and i * n >= k * len(valu):
                emit(mem[k]()); k += 1
            a(x)
        while k < n:
            emit(mem[k]()); k += 1
    wl = lambda c: [(lambda r=r: wload1(c, r)) for r in range(4)] if c < 10 else []
    xs = lambda c: [(lambda b=b: xdma(b, c)) for b in range(nb)] if c < 10 else []
    if not p.two and not p.xv:
        mf_, bc, at, nW = sched(p, nb)
        def xdi(i):
            vm.append(("x", bc[i][2])); return dma_i(p, nb, bc, i, vD)
        xs = lambda c: [(lambda i=i: xdi(i)) for i in range(len(bc)) if at[i] == c - XL]
    rest = []
    if X == 0:
        wait_vm(lambda t_: t_ == ("w", 0))
        pstamp(a, p, 7)
        stream(pr(0), [] if p.pw2 else wl(2))
        writes(0)
        wait_vm(lambda t_: t_ == "bias")
        a("v_lshlrev_b32 v28, 16, v27"); a("v_and_b32 v29, 0xffff0000, v27"); a("ds_write_b64 v26, v[28:29]")
        if p.proprio != prio: a(f"s_setprio {prio}")
    else:
        if p.b0:
            wait_vm(lambda t_: t_ == ("w", 1))
            pstamp(a, p, 7)
            v = pr(1); stream(v[:p.split], [] if p.pw3 else wl(3)); rest = v[p.split:]
        else:
            stream([], [] if p.pw3 else wl(3)); rest = pr(1)
        if p.bp0: a(f"s_setprio {prio}")
    late = [0]
    for t in range(10):
        if not p.xv: wait_vm(lambda t_: t_[0] == "x" and t_[1] <= t)
        a(f"s_waitcnt lgkmcnt({late[0]})"); late[0] = 0
        st3(a, p, 1+t)
        a("s_barrier")
        bstamps(a, p, t)
        if t % 2 == X:
            c = t + 2
            xw = xwr(t - 1 + XL) if p.xv == 1 else []
            if p.xv == 3:
                xw = xwr(t - 3 + XL); m = []
                w4 = wl(c+2) if c < 10 else []
                while xw or w4:
                    if xw: m.append(xw.pop(0))
                    if w4: m.append(w4.pop(0))
                if c < 10:
                    wait_vm(lambda t_: t_ == ("w", c))
                    v = pr(c); stream(v[:p.split], m); rest = v[p.split:]
                else: stream([], m)
            elif c < 10:
                wait_vm(lambda t_: t_ == ("w", c))
                v = pr(c); v1 = v[:p.split]; rest = v[p.split:]
                k = len(v1)*p.xwpos//100
                w4 = wl(c+2); kw = (len(w4)*p.xwpos + 99)//100
                stream(v1[:k], w4[:kw]); stream(v1[k:], xw + w4[kw:])
            else: stream([], xw)
            if xw and XL >= 3: late[0] = len(xw)
        else:
            c = t + 1
            if c < 10:
                wait_vm(lambda t_: t_ == ("w", c))
                if p.dprio: a(f"s_setprio {p.dprio}")
                x = xs(t+XL)
                if t == 0 and p.pw3 == 2: stream([], wl(3))
                if p.xv == 2: stream([], xwr(t - 2 + XL))
                stream(rest, x[:p.xb])
                x = x[p.xb:]
                if p.walt:
                    for r in range(4):
                        writes(c, r)
                        if x: emit(x.pop(0)())
                else: writes(c)
                if p.dprio: a(f"s_setprio {prio}")
                stream([], x)
    if p.flags:
        order = list(range(nb))
        if p.two:
            order = [0, 2, 1, 3, 4] if nb == 5 else [0, 3, 1, 4, 2, 5]
            a("s_movk_i32 s3, 0x0101")
        if p.two or p.WS == 2: a(f"v_subrev_u32 v29, {WB}, v{vR}")
        for b in order:
            off = stage_off(p, nb, b); r0 = DR + 4*b
            lab = f"L_poll{nb}_{X}_{b}"
            if p.two and nb == 5 and b == 4: a("s_mov_b32 s3, 0x01010101")
            if p.poll:
                a(f"s_branch {lab}_in"); a.label(lab + "_s"); a(f"s_sleep {p.poll % 10}"); a.label(lab + "_in")
                a(f"ds_read_b32 v28, v5 offset:{4*b}"); a("s_waitcnt lgkmcnt(0)"); a("v_cmp_ne_u32 vcc, s3, v28"); a(f"s_cbranch_vccnz {lab}_s")
                a(f"ds_read_b128 v[{r0}:{r0+3}], v{vR} offset:{off-WB}" if off >= WB else f"ds_read_b128 v[{r0}:{r0+3}], v29 offset:{off}")
                a("s_waitcnt lgkmcnt(0)")
                a(f"buffer_store_dwordx4 v[{r0}:{r0+3}], v{vO}, s[24:27], s{90+b} offen {p.oflags}")
                st3(a, p, 1 + b, True)
                continue
            a.label(lab)
            a(f"ds_read_b32 v28, v5 offset:{4*b}")
            a(f"ds_read_b128 v[{r0}:{r0+3}], v{vR} offset:{off-WB}" if off >= WB else f"ds_read_b128 v[{r0}:{r0+3}], v29 offset:{off}")
            a("s_waitcnt lgkmcnt(0)")
            a("v_cmp_ne_u32 vcc, s3, v28")
            a(f"s_cbranch_vccnz {lab}")
            a(f"buffer_store_dwordx4 v[{r0}:{r0+3}], v{vO}, s[24:27], s{90+b} offen {p.oflags}")
            st3(a, p, 1 + b, True)
    for g in ([] if p.flags else groups(p, nb)):
        a("s_barrier")
        for b in g:
            off = ((b//2 + 1) % 3)*WSTAGE + (b % 2)*2048; r0 = DR + 4*b
            a(f"ds_read_b128 v[{r0}:{r0+3}], v{vR} offset:{off}")
        for k, b in enumerate(g):
            r0 = DR + 4*b
            a(f"s_waitcnt lgkmcnt({len(g)-1-k})")
            a(f"buffer_store_dwordx4 v[{r0}:{r0+3}], v{vO}, s[24:27], s{90+b} offen {p.oflags}")
    if p.stamps == 1: stamp(a, p, 5)
    stamp_out(a, p)
    a("s_endpgm")
    return head, a.text()

def cnear(p):
    a = Asm(); vD = 128 + 4*p.NB + 5
    a("v_and_b32 v1, 63, v0")
    pstamp(a, p, 2)
    dma_voff(a, 1, 32, vD, 2, 3)
    a("s_mul_i32 s50, s36, 40960"); a("s_add_u32 s50, s50, s34"); a("s_mul_i32 s57, s3, 10"); a("s_add_u32 s57, s57, s34")
    for b in range(1, 6):
        a(f"s_add_u32 s{50+b}, s{49+b}, 40960"); a(f"s_cmp_eq_u32 s{50+b}, s57"); a(f"s_cselect_b32 s{50+b}, s34, s{50+b}")
    xtable(a, p, 0, 2)
    a("s_add_u32 s31, s37, s3")
    a("s_waitcnt lgkmcnt(0)")
    pstamp(a, p, 5)
    srd(a, 16, 4, 10485760)
    if p.prebar: a("s_barrier")
    for c in range(2):
        for b in range(6):
            if b == 5: a("s_cmp_eq_u32 s3, 20480"); a("s_cbranch_scc1 " + ("L_n1" if c == 0 else "L_c5"))
            a(f"s_add_u32 m0, s{37 if c == 0 else 31}, {b*4096}"); a(f"s_add_u32 s56, s{50+b}, s{40+c}")
            a(f"buffer_load_dwordx4 v{vD}, s[16:19], s56 offen {p.xflags} lds")
        if c == 0: a.label("L_n1")
    a("s_branch L_c6")
    return a.text()

def gen(p):
    lds = p.NS*4096 + p.WS*WSTAGE + 512 + 256
    assert lds <= 163840
    a = Asm()
    stamp(a, p, 0)
    a("s_load_dwordx4 s[4:7], s[0:1], 0"); a("s_load_dwordx4 s[8:11], s[0:1], 16")
    if p.stamps:
        a("s_load_dwordx4 s[12:15], s[0:1], 32")
        if p.stamps != 3:
            for i in (1,2,4,5,6,7): a(f"s_mov_b32 s{60+2*i}, 0")
    a("v_lshrrev_b32 v1, 6, v0")
    if p.ipf:
        a("s_getpc_b64 s[76:77]"); a.label("L_pc")
        a("s_bfe_u32 s56, s2, 0x30003"); a("s_mul_i32 s56, s56, 6144")
        a("v_and_b32 v2, 3, v0"); a("v_lshl_add_u32 v2, v1, 2, v2"); a("v_lshlrev_b32 v2, 7, v2"); a("v_add_u32 v2, s56, v2")
        a("v_min_u32 v2, L_last - L_pc, v2")
        a("v_mov_b32 v3, s77"); a("v_add_co_u32 v2, vcc, s76, v2"); a("v_addc_co_u32 v3, vcc, 0, v3, vcc")
        a("global_load_dword v167, v[2:3], off")
    if p.map == 0:
        a("s_and_b32 s56, s2, 7"); a("s_lshr_b32 s57, s2, 3"); a("s_lshl_b32 s56, s56, 5"); a("s_add_u32 s56, s56, s57")
        a("v_readfirstlane_b32 s32, v1")
        a("s_cmp_ge_u32 s2, 255"); a("s_cbranch_scc1 L_exit")
        a("s_mul_i32 s57, s56, 205"); a("s_lshr_b32 s57, s57, 10")
        a("s_mul_i32 s58, s57, 5"); a("s_sub_u32 s33, s56, s58")
        if p.rot & 1:
            a("s_add_u32 s58, s33, s57"); a("s_mul_i32 s59, s58, 205"); a("s_lshr_b32 s59, s59, 10"); a("s_mul_i32 s59, s59, 5")
            a("s_sub_u32 s35, s58, s59"); a(f"s_lshl_b32 s35, s35, {7 if p.half else 8}")
        elif p.rot & 4:
            a("s_mul_i32 s59, s57, 205"); a("s_lshr_b32 s59, s59, 10"); a("s_mul_i32 s59, s59, 5")
            a("s_sub_u32 s35, s57, s59"); a(f"s_lshl_b32 s35, s35, {7 if p.half else 8}")
        else: a("s_mov_b32 s35, 0")
        if p.rot & 3: a("s_mov_b32 s36, s33")
        else: a("s_mov_b32 s36, 0")
        if p.early:
            a("s_sub_u32 s58, s57, 1"); a("s_cmp_eq_u32 s57, 0"); a("s_cselect_b32 s57, 50, s58")
        a("s_mul_i32 s34, s57, 204800")
        a("s_cmp_eq_u32 s57, 50"); a("s_cbranch_scc1 L_six")
    else:
        a("s_lshr_b32 s56, s2, 3"); a("s_and_b32 s58, s2, 7")
        a("s_mul_i32 s57, s56, 205"); a("s_lshr_b32 s57, s57, 10")
        a("v_readfirstlane_b32 s32, v1")
        a("s_cmp_ge_u32 s2, 240"); a("s_cbranch_scc1 L_exit")
        a("s_mul_i32 s59, s57, 5"); a("s_sub_u32 s33, s56, s59")
        if p.rot & 1:
            a("s_add_u32 s35, s33, s57"); a("s_sub_u32 s59, s35, 5"); a("s_cmp_ge_u32 s35, 5"); a("s_cselect_b32 s35, s59, s35")
            a("s_cmp_eq_u32 s35, 5"); a("s_cselect_b32 s35, 0, s35"); a(f"s_lshl_b32 s35, s35, {7 if p.half else 8}")
        else: a("s_mov_b32 s35, 0")
        if p.rot & 3: a("s_mov_b32 s36, s33")
        else: a("s_mov_b32 s36, 0")
        a("s_mul_i32 s34, s58, 1310720"); a("s_mul_i32 s59, s57, 204800"); a("s_add_u32 s34, s34, s59")
        a("s_min_u32 s59, s57, 2"); a("s_mul_i32 s59, s59, 40960"); a("s_add_u32 s34, s34, s59")
        a("s_cmp_lt_u32 s57, 2"); a("s_cbranch_scc1 L_six")
    con = consumer2 if p.two else consumer
    PA5, PB5, PA6, PB6 = producer(p, 5, 0), producer(p, 5, 1), producer(p, 6, 0), producer(p, 6, 1)
    if p.near:
        assert p.map == 1 and a.l[-1].strip() == "s_cbranch_scc1 L_six"
        a.l.pop(); a("s_cselect_b32 s3, 6, 5"); a("s_lshl_b32 s3, s3, 12")
        a("s_cmp_lt_u32 s32, 4"); a("s_cbranch_scc1 L_cn")
        a("s_cmp_ge_u32 s32, 8"); a("s_cbranch_scc1 L_bn")
        assert PA5[0] == PA6[0] and PB5[0] == PB6[0]
        far = lambda x: f"  s_cmp_eq_u32 s3, 20480\n  s_cbranch_scc1 L_{x}5\n  s_branch L_{x}6\n"
        body = a.text() + PA5[0] + far("a") + "L_cn:\n" + cnear(p) + "L_bn:\n" + PB5[0] + far("b") + "L_exit:\n  s_endpgm\n"
        body += "L_a6:\n" + PA6[1] + "L_b6:\n" + PB6[1] + "L_c6:\n" + con(p, 6) + "L_a5:\n" + PA5[1] + "L_b5:\n" + PB5[1] + "L_c5:\n" + con(p, 5)
    else:
        a("s_cmp_lt_u32 s32, 4"); a("s_cbranch_scc1 L_c5")
        a("s_cmp_ge_u32 s32, 8"); a("s_cbranch_scc1 L_b5")
        body = a.text() + "".join(PA5) + "L_exit:\n  s_endpgm\nL_b5:\n" + "".join(PB5) + "L_c5:\n" + con(p, 5)
        body += "L_six:\n  s_cmp_lt_u32 s32, 4\n  s_cbranch_scc1 L_c6\n  s_cmp_ge_u32 s32, 8\n  s_cbranch_scc1 L_b6\n"
        body += "".join(PA6) + "L_b6:\n" + "".join(PB6) + "L_c6:\n" + con(p, 6)
    hdr = open("standalone__structured_sparse_n_m__ragged.s.ref").read().split("; Override")[0]
    return hdr + f"""; Generated by my own generator script: tiles of 160(192) rows x 128 columns, 4 MFMA waves + 8 load/prune waves.
; @launch grid=({240 if p.map else 256},1,1) block=(768,1,1) lds={lds}
.amdgcn_target "amdgcn-amd-amdhsa--gfx950"
.text
.globl {KN}
.p2align 8
.type {KN},@function
{KN}:
{body}L_last:
  s_endpgm
.section .rodata,"a"
.p2align 6
.amdhsa_kernel {KN}
  .amdhsa_next_free_vgpr 168
  .amdhsa_next_free_sgpr 100
  .amdhsa_accum_offset 168
  .amdhsa_group_segment_fixed_size 0
  .amdhsa_kernarg_size 48
  .amdhsa_user_sgpr_count 2
  .amdhsa_user_sgpr_kernarg_segment_ptr 1
  .amdhsa_system_sgpr_workgroup_id_x 1
.end_amdhsa_kernel
""", lds

if __name__ == "__main__":
    out = sys.argv[1]
    p = P()
    for kv in sys.argv[2:]:
        k, v = kv.split("=", 1)
        old = getattr(P, k)
        setattr(p, k, v.replace("+", " ") if isinstance(old, str) else int(v))
    s, lds = gen(p)
    open(out, "w").write(s)
    from mk import build
    build(out)
    print(out, "lds", lds, "lines", s.count("\n"))
```

```python
import sys
KN = "standalone__structured_sparse_n_m__ragged_kernel"

class P:
    NB = 5; NS = 27
    xflags = "nt"; wflags = ""; oflags = "sc1"
    rot = 1; stamps = 0; fill = 3; early = 1
    xlead = 3; xlead6 = 2
    cprio = 0; aprio = 0; bprio = 0; proprio = 1
    prebar = 1; b0 = 1; split = 46
    tail = "01,2,3,4"; tail6 = "01,23,4,5"
    diag = ""
    nomfma = 0; noprune = 0; noxread = 0; noload = 0
    late = 0; pfw = -2; pfx = -2; pfx6 = -2; pw2 = 0; pw3 = 0; bp0 = 0; cpace = 0; WS = 3; near = 0; ipf = 0; cy0 = 0; cy1 = 9; half = 0; map = 0; poll = 0; lags = ""; lags6 = ""; xp = 13; xp6 = 12; gate = 16; wrate = 1; estop = 1; two = 0; walt = 0; tst = 0; flags = 1; xv = 0; xwpos = 100; xreg = 0; now = 0; nox = 0; xb = 2; dprio = 0; nowrite = 0

WSTAGE = 16640
CBS = 4160

class Asm:
    def __init__(s): s.l = []
    def __call__(s, x): s.l.append("  " + x)
    def label(s, x): s.l.append(x + ":")
    def text(s): return "\n".join(s.l) + "\n"

S3 = [96] + [60+2*i for i in range(10)] + [98, 86, 88]
def st3(a, p, i, tail=False):
    if p.stamps == 3 and (tail == bool(p.tst) or i in (0, 10, 11, 12)): a(f"s_memtime s[{S3[i]}:{S3[i]+1}]")
def stamp(a, p, i):
    if p.stamps == 3:
        if i == 0: st3(a, p, 0); a("s_memrealtime s[88:89]")
        return
    if p.stamps: a(f"s_memrealtime s[{60+2*i}:{61+2*i}]")
def pstamp(a, p, i):
    if p.stamps == 2: stamp(a, p, i)
def bstamps(a, p, t):
    if not p.stamps or p.stamps == 3: return
    if p.stamps == 2:
        if t == 0: stamp(a, p, 1)
        return
    if t == 0: stamp(a, p, 1)
    if t == p.cy0: a("s_memtime s[72:73]")
    if t == 5: stamp(a, p, 2)
    if t == 9: stamp(a, p, 4)
    if t == p.cy1: a("s_memtime s[74:75]")
def stamp_out(a, p):
    if not p.stamps: return
    if p.stamps == 3:
        st3(a, p, 11)
        a("s_waitcnt vmcnt(0) lgkmcnt(0)"); st3(a, p, 12); a("s_waitcnt lgkmcnt(0)")
        a("s_mov_b32 s16, s14"); a("s_and_b32 s17, s15, 0xffff"); a("s_mov_b32 s18, 0x100000"); a("s_mov_b32 s19, 0x20000")
        a("s_lshl_b32 s56, s2, 4"); a("s_add_u32 s56, s56, s32"); a("s_lshl_b32 s56, s56, 6")
        for i in range(14): a(f"v_mov_b32 v{4+i}, s{S3[i]}")
        a("v_mov_b32 v3, s56"); a("v_mbcnt_lo_u32_b32 v2, -1, 0"); a("v_mbcnt_hi_u32_b32 v2, -1, v2"); a("s_nop 1"); a("v_cmp_eq_u32 vcc, 0, v2"); a("s_and_saveexec_b64 s[58:59], vcc")
        for i in range(4): a(f"buffer_store_dwordx4 v[{4+4*i}:{7+4*i}], v3, s[16:19], 0 offen offset:{16*i}")
        return
    a("s_waitcnt vmcnt(0) lgkmcnt(0)")
    a("s_memrealtime s[66:67]")
    a("s_waitcnt lgkmcnt(0)")
    if p.diag:
        i, j, K = map(int, p.diag.split(","))
        lab = f"L_spin{len(a.l)}_{id(a)%100000}"
        a(f"s_sub_u32 s56, s{60+2*j}, s{60+2*i}"); a(f"s_mul_i32 s56, s56, {K}") if K >= 0 else a(f"s_lshr_b32 s56, s56, {-K}"); a("s_min_u32 s56, s56, 20000")
        a.label(lab)
        a("s_memrealtime s[58:59]"); a("s_waitcnt lgkmcnt(0)"); a("s_sub_u32 s57, s58, s66"); a("s_cmp_lt_u32 s57, s56"); a(f"s_cbranch_scc1 {lab}")
        return
    a("s_mov_b32 s84, s14"); a("s_and_b32 s85, s15, 0xffff"); a("s_mov_b32 s86, 0x100000"); a("s_mov_b32 s87, 0x20000")
    a("s_lshl_b32 s56, s2, 4"); a("s_add_u32 s56, s56, s32"); a("s_lshl_b32 s56, s56, 5")
    for i in range(8): a(f"v_mov_b32 v{4+i}, s{60+2*i}")
    a("v_mov_b32 v3, s56"); a("v_mbcnt_lo_u32_b32 v2, -1, 0"); a("v_mbcnt_hi_u32_b32 v2, -1, v2"); a("s_nop 1"); a("v_cmp_eq_u32 vcc, 0, v2"); a("s_and_saveexec_b64 s[58:59], vcc")
    a("buffer_store_dwordx4 v[4:7], v3, s[84:87], 0 offen"); a("buffer_store_dwordx4 v[8:11], v3, s[84:87], 0 offen offset:16")

def srd(a, d, ptr, n):
    a(f"s_mov_b32 s{d}, s{ptr}"); a(f"s_and_b32 s{d+1}, s{ptr+1}, 0xffff"); a(f"s_mov_b32 s{d+2}, {n}"); a(f"s_mov_b32 s{d+3}, 0x20000")

def ktable(a, dst, c0, c1, unit, first):
    for c in range(c0, c1):
        if c == 0: a(f"s_mov_b32 s{dst}, s{first}")
        else:
            a(f"s_add_u32 s{dst+c}, s{dst+c-1}, {unit}"); a(f"s_cmp_eq_u32 s{dst+c}, s57"); a(f"s_cselect_b32 s{dst+c}, s58, s{dst+c}")
def xtable(a, p, c0, c1):
    if not p.half:
        a("s_mov_b32 s57, 1280"); a("s_mov_b32 s58, 0"); ktable(a, 40, c0, c1, 128, 35); return
    a("s_movk_i32 s57, 640"); a("s_mov_b32 s58, 0"); ktable(a, 40, c0, min(c1, 5), 128, 35)
    for c in range(max(c0, 5), c1): a(f"s_add_u32 s{40+c}, s{35+c}, 640")
def btable(a, nb):
    a("s_mul_i32 s50, s36, 40960"); a("s_add_u32 s50, s50, s34"); a(f"s_add_u32 s57, s34, {nb*40960}")
    for b in range(1, nb):
        a(f"s_add_u32 s{50+b}, s{49+b}, 40960"); a(f"s_cmp_eq_u32 s{50+b}, s57"); a(f"s_cselect_b32 s{50+b}, s34, s{50+b}")

def dma_voff(a, lane, wave_s, dst, t1, t2):
    a(f"v_lshrrev_b32 v{t1}, 3, v{lane}"); a(f"s_lshl_b32 s56, s{wave_s}, 3"); a(f"v_add_u32 v{t1}, s56, v{t1}")
    a(f"v_lshrrev_b32 v{t2}, 1, v{t1}"); a(f"v_xor_b32 v{t2}, v{t2}, v{lane}"); a(f"v_and_b32 v{t2}, 7, v{t2}")
    a(f"v_mul_u32_u24 v{t1}, 1280, v{t1}"); a(f"v_lshl_add_u32 v{dst}, v{t2}, 4, v{t1}")
    a(f"s_lshl_b32 s37, s{wave_s}, 10")

def slot(p, nb, b, c):
    if p.two: return ((c % (p.NS//nb))*nb + b)*4096
    return ((c*nb + b) % p.NS)*4096
def stage_off(p, nb, b):
    WB = p.NS*4096
    if p.WS == 2:
        assert not p.two and p.NS == 31 and sched(p, nb)[1][35][2] < 9 and nb*10 <= 62
        return WB + (b//2)*WSTAGE + (b % 2)*2048 if b < 4 else (b % 2)*2048
    if not p.two: return WB + ((b//2 + 1) % 3)*WSTAGE + (b % 2)*2048
    A2 = 0 if nb == 5 else 12*4096
    if nb == 5: return A2 if b == 4 else WB + (1 + b//2)*WSTAGE + (b % 2)*2048
    r, j = divmod(b, 3)
    return A2 + r*2048 if j == 2 else WB + (1 + r)*WSTAGE + j*2048
def sched(p, nb):
    lg = [int(ch) for ch in (p.lags if nb == 5 else p.lags6)] or [0]*nb
    bc = []
    for t in range(9):
        if p.late:
            bc.extend((b, t, t) for b in range(nb) if t < 9 - lg[b]); continue
        for b in sorted(range(nb), key=lambda b: (-lg[b], b)):
            if t - lg[b] >= 0: bc.append((b, t - lg[b], t))
    for b in sorted(range(nb), key=lambda b: (lg[b], b)):
        for c in range(9 - lg[b], 10): bc.append((b, c, 9))
    mf = [(b, c, s, t) for b, c, t in bc for s in range(4)]
    if max(lg) == 0 or p.late: P = xl(p, nb)*nb
    else: P = p.xp if nb == 5 else p.xp6
    at = [-1 if i < P else (i - P)//nb for i in range(len(bc))]
    for i, (b, c, t) in enumerate(bc):
        assert at[i] <= max(-1, t - 2), (i, at[i], t)
        if i >= p.NS: assert at[i] >= bc[i - p.NS][2] + 2, (i, at[i], bc[i - p.NS])
    return mf, bc, at, max(2, max(lg) + 1)
def dma_i(p, nb, bc, i, vD):
    b, c, t = bc[i]
    if p.noload: return []
    return [f"s_add_u32 m0, s37, {(i % p.NS)*4096}", f"s_add_u32 s56, s{50+b}, s{40+c}",
            f"buffer_load_dwordx4 v{vD}, s[16:19], s56 offen {p.xflags} lds"]
def dma_txt(p, nb, b, c, vD):
    if p.noload: return []
    if p.nox: return [f"buffer_load_dword v100, v{vD}, s[16:19], 0 offen offset:4095"] if c < 0 else ["s_nop 0"]
    if p.xreg: return [f"s_add_u32 s56, s{50+b}, s{40+c}", f"buffer_load_dwordx4 v[{100+4*b}:{103+4*b}], v{vD}, s[16:19], s56 offen {p.xflags}"]
    return [f"s_add_u32 m0, s37, {slot(p, nb, b, c)}", f"s_add_u32 s56, s{50+b}, s{40+c}",
            f"buffer_load_dwordx4 v{vD}, s[16:19], s56 offen {p.xflags} lds"]
def xl(p, nb):
    v = p.xlead if nb == 5 else p.xlead6
    assert (not p.two or v + 2 <= p.NS//nb) and (v + 2 - p.xv)*nb <= p.NS and v*nb <= p.NS and (p.xv < 2 or v >= p.xv + 1), (v, nb)
    return v
def groups(p, nb): return [[int(ch) for ch in g] for g in (p.tail if nb == 5 else p.tail6).split(",")]

def consumer(p, nb):
    a = Asm(); NB = p.NB; XL = xl(p, nb)
    WB = p.NS*4096; BIAS = WB + p.WS*WSTAGE
    ACC = lambda b: 16*b
    mf, bc, at, nW = sched(p, nb)
    idx_of = {(b, c): i for i, (b, c, _) in enumerate(bc)}
    WF = 128 - 16*nW; XF = 128; VA = XF + 4*NB
    assert WF >= 16*nb
    vX = [VA+i for i in range(4)]; vW = VA+4; vD = VA+5; vO = VA+6; vT = VA+7
    assert vT < 168, vT
    FL = BIAS + 512
    vm = []
    pro = [i for i in range(len(bc)) if at[i] == -1]
    if p.near:
        assert vD == 128 + 4*p.NB + 5 and [(b, c) for b, c, _ in bc[:2*nb]] == [(b, c) for c in range(2) for b in range(nb)] and len(pro) >= 2*nb
        xtable(a, p, 2, max(bc[i][1] for i in pro) + 1)
    else:
        a("v_and_b32 v1, 63, v0")
        pstamp(a, p, 2)
        dma_voff(a, 1, 32, vD, 2, 3)
        btable(a, nb)
        xtable(a, p, 0, max(bc[i][1] for i in pro) + 1)
        a("s_waitcnt lgkmcnt(0)")
        pstamp(a, p, 5)
        srd(a, 16, 4, 10485760)
        if p.prebar: a("s_barrier")
    for i in pro:
        if p.cpace and i == 2*nb: a(f"s_waitcnt vmcnt({nb if p.cpace == 1 else 0})")
        if not (p.near and i < 2*nb):
            for x in dma_i(p, nb, bc, i, vD): a(x)
        vm.append(bc[i][2])
    pfx = p.pfx if nb == 5 else p.pfx6
    if p.pfw > -2:
        srd(a, 20, 6, 819200)
        a("v_lshrrev_b32 v2, 2, v1"); a("s_lshl_b32 s56, s32, 4"); a("v_add_u32 v2, s56, v2"); a("v_mul_u32_u24 v2, 1280, v2")
        a("v_and_b32 v3, 3, v1"); a("v_lshl_add_u32 v166, v3, 6, v2")
        a("s_add_u32 s24, s35, 640"); a("s_mul_i32 s24, s24, 640"); a("s_lshl_b32 s56, s33, 8"); a("s_add_u32 s24, s24, s56")
    if pfx > -2:
        a("s_lshl_b32 s56, s32, 6"); a("v_add_u32 v2, s56, v1"); a(f"v_min_u32 v2, {nb*32-1}, v2"); a("v_mul_u32_u24 v165, 1280, v2")
        a("s_add_u32 s25, s35, 640"); a("s_add_u32 s25, s25, s34")
    def prefetch(t):
        if p.pfw == t: a("buffer_load_dword v164, v166, s[20:23], s24 offen"); vm.append(99)
        if pfx == t: a("buffer_load_dword v163, v165, s[16:19], s25 offen"); vm.append(99)
    prefetch(-1)
    pstamp(a, p, 6)
    a("v_and_b32 v2, 31, v1"); a("v_lshrrev_b32 v3, 5, v1"); a("v_lshrrev_b32 v4, 1, v2"); a("v_and_b32 v4, 7, v4")
    a("v_xor_b32 v4, v4, v3"); a("v_lshlrev_b32 v4, 4, v4"); a(f"v_lshl_add_u32 v{vX[0]}, v2, 7, v4")
    for s in range(1, 4): a(f"v_xor_b32 v{vX[s]}, {s*32}, v{vX[0]}")
    a("v_lshlrev_b32 v4, 9, v3"); a("v_bfe_u32 v5, v1, 4, 1"); a("v_lshl_add_u32 v4, v5, 5, v4")
    a("v_bfe_u32 v5, v1, 2, 2"); a("v_lshl_add_u32 v4, v5, 6, v4"); a("v_and_b32 v5, 3, v1"); a("v_lshl_add_u32 v4, v5, 3, v4")
    a(f"s_mul_i32 s56, s32, {CBS}"); a(f"s_add_u32 s56, s56, {WB}"); a(f"v_add_u32 v{vW}, s56, v4")
    a("v_bfe_u32 v5, v1, 1, 2"); a("v_xor_b32 v5, v5, v3"); a("v_lshlrev_b32 v5, 4, v5"); a("v_lshl_add_u32 v5, v2, 6, v5")
    a(f"v_add_u32 v{vO}, s56, v5")
    a("s_lshl_b32 s56, s32, 7"); a(f"s_add_u32 s56, s56, {BIAS}"); a("v_lshlrev_b32 v4, 4, v3"); a(f"v_add_u32 v{vT}, s56, v4")
    if p.cprio: a(f"s_setprio {p.cprio}")
    lastW = {}
    for k, (b, c, s, u) in enumerate(mf): lastW[(c, s)] = k
    lg = []
    def wait_lds(tags):
        idx = max([k for k, t_ in enumerate(lg) if t_ in tags], default=-1)
        if idx >= 0:
            a(f"s_waitcnt lgkmcnt({len(lg)-1-idx})"); del lg[:idx+1]
    def lds(txt, tagi):
        if len(lg) >= 15: wait_lds([lg[0]])
        a(txt); lg.append(tagi)
    xbase = [0]*4
    def xread(j):
        b, c, s, u = mf[j]
        off = (idx_of[(b, c)] % p.NS)*4096
        hi = off & ~0xffff
        if xbase[s] != hi:
            a(f"v_xor_b32 v{vX[s]}, 0x10000, v{vX[s]}"); xbase[s] = hi
        r = XF + 4*(j % NB)
        if not p.noxread: lds(f"ds_read_b128 v[{r}:{r+3}], v{vX[s]} offset:{off & 0xffff}", ("x", j))
    def wread(c, s):
        for q in range(2):
            r = WF + 16*(c % nW) + 4*s + 2*q
            lds(f"ds_read_b64_tr_b16 v[{r}:{r+1}], v{vW} offset:{(c%p.WS)*WSTAGE + s*1024 + q*256}", ("w", c, s))
    cur = [-1]
    def boundary(t):
        need = [k for k, c in enumerate(vm) if c <= t]
        if need and not p.noload and not p.nox:
            a(f"s_waitcnt vmcnt({len(vm)-1-max(need)})"); del vm[:max(need)+1]
        wait_lds([x for x in lg if x[0] == "w" and x[1] == t-1])
        st3(a, p, 1+t)
        a("s_barrier")
        bstamps(a, p, t)
        prefetch(t)
        cur[0] = t
    fillq = []
    grp = groups(p, nb); done = set(); gi = [0]
    def epilogue_items(b):
        A = ACC(b); off = stage_off(p, nb, b) - WB
        it = [f"v_cvt_pk_bf16_f32 v{A+k}, v{A+2*k}, v{A+2*k+1}" for k in range(8)]
        if off < 0:
            off += WB
            if b == 4: it = [f"v_subrev_u32 v{vO}, {WB}, v{vO}"] + it; it[0], it[1] = it[1], it[0]; it = it[:2] + it[2:]; it[0:2] = [it[0] + "\n  " + it[1]]
        it = it[:4] + it[4:6] + [f"v_permlane32_swap_b32 v{A}, v{A+2}", f"v_permlane32_swap_b32 v{A+1}, v{A+3}", it[6],
               ("lds", f"ds_write_b128 v{vO}, v[{A}:{A+3}] offset:{off}", ("o", b)), it[7], f"v_xor_b32 v{A+8}, 32, v{vO}", "s_nop 0",
               f"v_permlane32_swap_b32 v{A+4}, v{A+6}", f"v_permlane32_swap_b32 v{A+5}, v{A+7}",
               ("lds", f"ds_write_b128 v{A+8}, v[{A+4}:{A+7}] offset:{off}", ("o", b))]
        if p.flags: it.append(("lds", f"ds_write_b8 v{vD}, v{vT} offset:{4*b}", ("f", b)))
        else: it.append(("done", b))
        return it
    pend = []
    def tailbar():
        g = grp[gi[0]]
        wait_lds([("o", b) for b in g]); a("s_barrier"); gi[0] += 1
    def emit_fill(n, force=False):
        k = 0
        if pend and not force:
            pend[0] -= 1
            if pend[0] <= 0: pend.pop(0); tailbar()
        while fillq and k < n:
            it = fillq[0]
            if isinstance(it, tuple) and it[0] == "gate":
                have = sum(8 if "v_mfma" in x else 1 for x in a.l[it[1]:])
                if have < p.gate:
                    if not force: return
                    if have < 12: a(f"s_nop {12-have-1}")
                fillq.pop(0); continue
            fillq.pop(0)
            if isinstance(it, str): a(it); k += 1
            elif it[0] == "lds":
                lds(it[1], it[2]); k += 1
                if it[2][0] == "f": st3(a, p, 1 + it[2][1], True)
            elif it[0] == "done":
                done.add(it[1])
                g = gi[0] + len(pend)
                if g < len(grp) and all(b in done for b in grp[g]):
                    if force:
                        while pend: pend.pop(0); tailbar()
                        tailbar()
                    else: pend.append(2)
    boundary(0)
    wread(0, 0)
    for q in range(4):
        r = ACC(nb-1) + 4*q
        lds(f"ds_read_b128 v[{r}:{r+3}], v{vT} offset:{q*32}", ("b",))
    nxt = [0]; wq = [(0, 1), (0, 2), (0, 3)]
    def advance(upto):
        while nxt[0] < min(upto, len(mf)):
            c = mf[nxt[0]][3]
            if cur[0] < c:
                boundary(c); wq.extend((c, s) for s in range(4))
            xread(nxt[0]); nxt[0] += 1
            if wq and lastW.get((wq[0][0] - nW, wq[0][1]), -1) < upto - NB: wread(*wq.pop(0))
    advance(NB)
    for j, (b, c, s, u) in enumerate(mf):
        if p.flags and j == 8: a(f"s_add_u32 s56, s32, {FL}"); a(f"v_mov_b32 v{vD}, s56"); a(f"v_mov_b32 v{vT}, 1")
        while (c, s) in wq:
            assert lastW.get((wq[0][0] - nW, wq[0][1]), -1) < j
            wread(*wq.pop(0))
        wait_lds([("x", j), ("w", c, s), ("b",)])
        A = ACC(b); wr = WF + 16*(c % nW) + 4*s; xr = XF + 4*(j % NB)
        C = ACC(nb-1) if (c == 0 and s == 0) else A
        if not p.nomfma: a(f"v_mfma_f32_32x32x16_bf16 v[{A}:{A+15}], v[{wr}:{wr+3}], v[{xr}:{xr+3}], v[{C}:{C+15}]")
        if c == 9 and s == 3:
            fillq.append(("gate", len(a.l))); fillq.extend(epilogue_items(b))
        advance(j + 1 + NB)
        emit_fill(p.fill)
    if p.stamps == 1: stamp(a, p, 5)
    emit_fill(100000, True)
    while pend: pend.pop(0); tailbar()
    assert p.flags or gi[0] == len(grp)
    stamp_out(a, p)
    a("s_endpgm")
    return a.text()

def consumer2(p, nb):
    a = Asm(); NB = p.NB; XL = xl(p, nb)
    WB = p.NS*4096; BIAS = WB + p.WS*WSTAGE; FL = BIAS + 512
    RB = nb//2
    WF = 96; XF = 128; VA = XF + 4*NB
    vX = [VA+i for i in range(4)]; vY = [VA+4+i for i in range(4)]
    vW = [VA+8, VA+9]; vO = [VA+10, VA+11]; vD = VA+12; vT = [VA+13, VA+14]; vF = VA+15
    assert vF < 168, vF
    vm = []
    a("v_and_b32 v1, 63, v0")
    pstamp(a, p, 2)
    dma_voff(a, 1, 32, vD, 2, 3)
    btable(a, nb)
    a("s_mov_b32 s57, 1280"); a("s_mov_b32 s58, 0")
    ktable(a, 40, 0, XL, 128, 35)
    a("s_waitcnt lgkmcnt(0)")
    pstamp(a, p, 5)
    srd(a, 16, 4, 10485760)
    if p.prebar: a("s_barrier")
    for c in range(XL):
        for b in range(nb):
            for x in dma_txt(p, nb, b, c, vD): a(x)
            vm.append(c)
    pstamp(a, p, 6)
    a("s_lshr_b32 s20, s32, 1"); a("s_and_b32 s21, s32, 1")
    a("s_lshl_b32 s22, s21, 1"); a("s_add_u32 s22, s22, s20"); a("s_xor_b32 s23, s22, 1")
    a("v_and_b32 v2, 31, v1"); a("v_lshrrev_b32 v3, 5, v1"); a("v_lshrrev_b32 v4, 1, v2"); a("v_and_b32 v4, 7, v4")
    a("v_xor_b32 v4, v4, v3"); a("v_lshlrev_b32 v4, 4, v4"); a(f"v_lshl_add_u32 v{vY[0]}, v2, 7, v4")
    for s in range(1, 4): a(f"v_xor_b32 v{vY[s]}, {s*32}, v{vY[0]}")
    a(f"s_mul_i32 s56, s20, {RB*4096}")
    for s in range(4): a(f"v_add_u32 v{vX[s]}, s56, v{vY[s]}")
    a("v_lshlrev_b32 v4, 9, v3"); a("v_bfe_u32 v5, v1, 4, 1"); a("v_lshl_add_u32 v4, v5, 5, v4")
    a("v_bfe_u32 v5, v1, 2, 2"); a("v_lshl_add_u32 v4, v5, 6, v4"); a("v_and_b32 v5, 3, v1"); a("v_lshl_add_u32 v4, v5, 3, v4")
    a("v_bfe_u32 v5, v1, 1, 2"); a("v_xor_b32 v5, v5, v3"); a("v_lshlrev_b32 v5, 4, v5"); a("v_lshl_add_u32 v5, v2, 6, v5")
    a("v_lshlrev_b32 v6, 4, v3")
    for q in range(2):
        a(f"s_mul_i32 s24, s{22+q}, {CBS}"); a(f"s_add_u32 s25, s24, {WB}"); a(f"v_add_u32 v{vW[q]}, s25, v4")
        a(f"v_add_u32 v{vO[q]}, s24, v5")
        a(f"s_lshl_b32 s56, s{22+q}, 7"); a(f"s_add_u32 s56, s56, {BIAS}"); a(f"v_add_u32 v{vT[q]}, s56, v6")
    a(f"s_mul_i32 s26, s20, {WSTAGE}"); a(f"s_add_u32 s26, s26, {WB + WSTAGE}")
    a(f"s_lshl_b32 s27, s20, 11")
    if nb == 6: a(f"s_add_u32 s27, s27, {12*4096}")
    else: a("s_mov_b32 s27, 0")
    a(f"s_mul_i32 s28, s20, {4*RB}"); a("s_add_u32 s28, s28, s21"); a(f"s_add_u32 s28, s28, {FL}"); a(f"s_add_u32 s29, s32, {FL+16}")
    if p.cprio: a(f"s_setprio {p.cprio}")
    NX = 3
    tiles = lambda j: [(2*j, 0), (2*j+1, 1)] if (nb == 6 or j < 2) else [(4, 0)]
    hold = [4, 5 if nb == 6 else 3]
    fr = []; mf = []
    for c in range(10):
        order = [(j, s) for s in range(4) for j in range(NX)] if c < 9 else [(j, s) for j in range(NX) for s in range(4)]
        for j, s in order:
            fr.append((j, c, s))
            for i, q in tiles(j): mf.append((i, q, c, s, len(fr)-1))
    lastW = {}; lastF = {}; lastA = {}
    for k, (i, q, c, s, f) in enumerate(mf): lastW[(c, s, q)] = k; lastF[f] = k; lastA[i] = k
    lg = []
    def wait_lds(tags):
        idx = max([k for k, t_ in enumerate(lg) if t_ in tags], default=-1)
        if idx >= 0:
            a(f"s_waitcnt lgkmcnt({len(lg)-1-idx})"); del lg[:idx+1]
    def lds(txt, tagi):
        if len(lg) >= 15: wait_lds([lg[0]])
        a(txt); lg.append(tagi)
    xbase = {}
    def xread(f):
        j, c, s = fr[f]
        shared = nb == 5 and j == 2
        v = vY[s] if shared else vX[s]
        off = slot(p, nb, 4 if shared else j, c)
        hi = off & ~0xffff
        if xbase.get(v, 0) != hi:
            a(f"v_xor_b32 v{v}, 0x10000, v{v}"); xbase[v] = hi
        r = XF + 4*(f % NB)
        if not p.noxread: lds(f"ds_read_b128 v[{r}:{r+3}], v{v} offset:{off & 0xffff}", ("x", f))
    def wread(c, s, q):
        for u in range(2):
            r = WF + 16*q + 4*s + 2*u
            lds(f"ds_read_b64_tr_b16 v[{r}:{r+1}], v{vW[q]} offset:{(c%p.WS)*WSTAGE + s*1024 + u*256}", ("w", c, s, q))
    cur = [-1]
    def boundary(t):
        need = [k for k, c in enumerate(vm) if c <= t]
        if need and not p.noload and not p.nox:
            a(f"s_waitcnt vmcnt({len(vm)-1-max(need)})"); del vm[:max(need)+1]
        st3(a, p, 1+t)
        a("s_barrier")
        bstamps(a, p, t)
        cur[0] = t
    fillq = []
    def epilogue_items(i, q):
        A = 16*i; j = i//2
        base = "s27" if j == 2 else "s26"; off = 0 if j == 2 else j*2048
        it = [f"v_cvt_pk_bf16_f32 v{A+k}, v{A+2*k}, v{A+2*k+1}" for k in range(8)]
        it += [f"v_add_u32 v{A+9}, {base}, v{vO[q]}", f"v_xor_b32 v{A+8}, 32, v{A+9}",
               f"v_permlane32_swap_b32 v{A}, v{A+2}", f"v_permlane32_swap_b32 v{A+1}, v{A+3}",
               ("lds", f"ds_write_b128 v{A+9}, v[{A}:{A+3}] offset:{off}", ("o", i)),
               f"v_permlane32_swap_b32 v{A+4}, v{A+6}", f"v_permlane32_swap_b32 v{A+5}, v{A+7}", ("stop",),
               ("lds", f"ds_write_b128 v{A+8}, v[{A+4}:{A+7}] offset:{off}", ("o", i)), ("stop",)]
        if nb == 5 and j == 2: it += [f"v_mov_b32 v{vF}, s29", ("lds", f"ds_write_b8 v{vF}, v{vD}", ("f", j))]
        elif q == 1: it.append(("lds", f"ds_write_b8 v{vF}, v{vD} offset:{4*j}", ("f", j)))
        return it
    def emit_fill(n, force=False):
        k = 0
        while fillq and k < n:
            it = fillq[0]
            if isinstance(it, tuple) and it[0] == "gate":
                have = len(a.l) - it[1]
                if have < 12:
                    if not force: return
                    a(f"s_nop {12-have-1}")
                fillq.pop(0); continue
            fillq.pop(0)
            if isinstance(it, str): a(it); k += 1
            elif it[0] == "stop":
                if not force and p.estop: return
            elif it[0] == "lds":
                lds(it[1], it[2]); k += 1
                if it[2][0] == "f": st3(a, p, 1 + it[2][1], True)
    boundary(0)
    wread(0, 0, 0); wread(0, 0, 1)
    nxt = [0]; wq = [(0, s, q) for s in range(1, 4) for q in range(2)]
    xread(0); nxt[0] = 1
    for q in range(2):
        for u in range(4):
            r = 16*hold[q] + 4*u
            lds(f"ds_read_b128 v[{r}:{r+3}], v{vT[q]} offset:{u*32}", ("b", q))
    def advance(k):
        while nxt[0] < len(fr) and (nxt[0] < NB or lastF[nxt[0]-NB] < k):
            c = fr[nxt[0]][1]
            if cur[0] < c:
                boundary(c); wq.extend((c, s, q) for s in range(4) for q in range(2))
            xread(nxt[0]); nxt[0] += 1
        n = 0
        while wq and n < p.wrate and lastW.get((wq[0][0]-1, wq[0][1], wq[0][2]), -1) < k:
            wread(*wq.pop(0)); n += 1
    advance(0)
    for k, (i, q, c, s, f) in enumerate(mf):
        if k == 12: a(f"v_mov_b32 v{vF}, s28"); a(f"v_mov_b32 v{vD}, 1")
        while (c, s, q) in wq: wread(*wq.pop(0))
        wait_lds([("x", f), ("w", c, s, q), ("b", q)])
        A = 16*i; wr = WF + 16*q + 4*s; xr = XF + 4*(f % NB)
        C = 16*hold[q] if (c == 0 and s == 0) else A
        if not p.nomfma: a(f"v_mfma_f32_32x32x16_bf16 v[{A}:{A+15}], v[{wr}:{wr+3}], v[{xr}:{xr+3}], v[{C}:{C+15}]")
        if k == lastA[i]:
            fillq.append(("gate", len(a.l))); fillq.extend(epilogue_items(i, q))
        advance(k + 1)
        emit_fill(p.fill)
    if p.stamps == 1: stamp(a, p, 5)
    emit_fill(100000, True)
    stamp_out(a, p)
    a("s_endpgm")
    return a.text()

def prune_all(S, T):
    o = []
    for j0 in (0, 2):
        js = (j0, j0+1)
        A = lambda j, r: T + (j-j0)*8 + r
        U = lambda j, k: T + (j-j0)*8 + 4 + k
        for r in range(4):
            for j in js: o.append(f"v_and_b32 v{A(j,r)}, s38, v{S+4*r+j}")
        for j in js: o.append(f"v_pk_max_u16 v{U(j,0)}, v{A(j,0)}, v{A(j,1)}")
        for j in js: o.append(f"v_pk_min_u16 v{U(j,1)}, v{A(j,0)}, v{A(j,1)}")
        for j in js: o.append(f"v_pk_max_u16 v{U(j,2)}, v{A(j,2)}, v{A(j,3)}")
        for j in js: o.append(f"v_pk_min_u16 v{U(j,3)}, v{A(j,2)}, v{A(j,3)}")
        for j in js: o.append(f"v_pk_min_u16 v{U(j,0)}, v{U(j,0)}, v{U(j,2)}")
        for j in js: o.append(f"v_pk_max_u16 v{U(j,1)}, v{U(j,1)}, v{U(j,3)}")
        for j in js: o.append(f"v_pk_max_u16 v{U(j,0)}, v{U(j,0)}, v{U(j,1)}")
        for r in range(4):
            for j in js: o.append(f"v_pk_sub_i16 v{A(j,r)}, v{A(j,r)}, v{U(j,0)}")
        for r in range(4):
            for j in js: o.append(f"v_pk_ashrrev_i16 v{A(j,r)}, 15, v{A(j,r)} op_sel_hi:[0,1]")
        for r in range(4):
            for j in js: o.append(f"v_bfi_b32 v{S+4*r+j}, v{A(j,r)}, 0, v{S+4*r+j}")
    return o

def producer(p, nb, X):
    a = Asm(); XL = xl(p, nb)
    WB = p.NS*4096; BIAS = WB + p.WS*WSTAGE
    vG = 1; vS = 2; vR = 3; vO = 4; vD = 7; T = 8; ST = 32; DR = 64
    WK = 80
    prio = p.aprio if X == 0 else p.bprio
    if X == 0 and p.proprio: a(f"s_setprio {p.proprio}")
    elif X == 1 and p.bp0: a(f"s_setprio {p.bp0}")
    elif prio: a(f"s_setprio {prio}")
    a(f"s_sub_u32 s39, s32, {4+4*X}"); a("v_and_b32 v6, 63, v0")
    pstamp(a, p, 2)
    a("v_lshrrev_b32 v24, 4, v6"); a("s_lshl_b32 s56, s39, 2"); a("v_add_u32 v24, s56, v24")
    a("v_and_b32 v25, 15, v6"); a("v_mul_u32_u24 v9, 5120, v24"); a(f"v_lshl_add_u32 v{vG}, v25, 4, v9")
    a("s_lshl_b32 s59, s33, 8")
    if p.half:
        early2 = (p.pw2 if X == 0 else p.pw3 == 1)
        xtable(a, p, 0, 1 + X + 2*early2)
        a(f"s_mul_i32 s56, s{40+X}, 640"); a(f"s_add_u32 s{WK}, s56, s59")
        if early2: a(f"s_mul_i32 s56, s{42+X}, 640"); a(f"s_add_u32 s{WK+1}, s56, s59")
    else:
        if X: a("s_add_u32 s58, s59, 81920")
        else: a("s_mov_b32 s58, s59")
        a("s_mul_i32 s56, s35, 640"); a(f"s_add_u32 s{WK}, s56, s58")
    if X == 0: a("v_lshlrev_b32 v10, 2, v6")
    a("s_waitcnt lgkmcnt(0)")
    pstamp(a, p, 5)
    srd(a, 20, 6, 819200)
    vm = []
    SR = lambda c: ST + 16*((c//2) % 2)
    def wload1(c, r):
        vm.append(("w", c))
        if p.noload or p.now: return []
        return [f"buffer_load_dwordx4 v[{SR(c)+4*r}:{SR(c)+4*r+3}], v{vG}, s[20:23], s{WK+c//2} offen offset:{r*1280} {p.wflags}"]
    XR = lambda b, c: 96 + 24*((c//2) % 2) + 4*b
    def xdma(b, c):
        vm.append(("x", c))
        if p.xv: return [f"s_add_u32 s56, s{50+b}, s{40+c}", f"buffer_load_dwordx4 v[{XR(b,c)}:{XR(b,c)+3}], v{vD}, s[16:19], s56 offen {p.xflags}"]
        return dma_txt(p, nb, b, c, vD)
    def xwr(c):
        if not p.xv or c >= 10 or c < XL: return []
        def one(b):
            if b == 0: wait_vm(lambda t_: t_ == ("x", c))
            off = slot(p, nb, b, c)
            return [f"ds_write_b128 v{30 + (off >> 16)}, v[{XR(b,c)}:{XR(b,c)+3}] offset:{off & 0xffff}"]
        return [(lambda b=b: one(b)) for b in range(nb)]
    def emit(l):
        for y in l: a(y)
    if X == 0:
        for r in range(4): emit(wload1(0, r))
        srd(a, 28, 8, 1280)
        a("buffer_load_dword v27, v10, s[28:31], s59 offen"); vm.append("bias")
        if p.pw2:
            for r in range(4): emit(wload1(2, r))
        if p.prebar: a("s_barrier")
    else:
        if p.prebar: a("s_barrier")
        for r in range(4): emit(wload1(1, r))
        if p.pw3 == 1:
            for r in range(4): emit(wload1(3, r))
    head = a.text(); a.l = []
    if p.half:
        xtable(a, p, 1 + X + 2*early2, 10)
        for k in range(1 + early2, 5): a(f"s_mul_i32 s56, s{40+X+2*k}, 640"); a(f"s_add_u32 s{WK+k}, s56, s59")
    else:
        a("s_add_u32 s57, s58, 819200")
        ktable(a, WK, 1, 5, 163840, WK)
    pstamp(a, p, 6)
    a("s_mov_b32 s38, 0x7fff7fff")
    srd(a, 16, 4, 10485760)
    dma_voff(a, 6, 39, vD, 12, 13)
    btable(a, nb)
    if not p.half: xtable(a, p, 0, 10)
    for b in range(nb): a(f"s_add_u32 s{90+b}, s{50+b}, s59")
    srd(a, 24, 10, 10485760)
    a("v_lshrrev_b32 v9, 2, v25"); a(f"v_mul_u32_u24 v9, {CBS}, v9"); a("v_lshl_add_u32 v14, v24, 8, v9"); a("v_and_b32 v12, 3, v25")
    a("v_lshl_add_u32 v14, v12, 4, v14"); a(f"v_add_u32 v{vS}, {WB}, v14")
    a("v_lshrrev_b32 v13, 4, v6"); a("s_lshl_b32 s56, s39, 3")
    if X: a("s_add_u32 s56, s56, 4")
    a("v_add_u32 v13, s56, v13")
    a("v_lshrrev_b32 v14, 1, v13"); a("v_xor_b32 v14, v14, v12"); a("v_and_b32 v14, 3, v14"); a("v_lshlrev_b32 v14, 4, v14")
    a("v_lshl_add_u32 v14, v13, 6, v14"); a("v_add_u32 v14, v14, v9"); a(f"v_add_u32 v{vR}, {WB}, v14")
    a("v_mul_u32_u24 v13, 1280, v13"); a(f"v_lshl_add_u32 v{vO}, v25, 4, v13")
    if X == 0: a("v_lshlrev_b32 v26, 3, v6"); a(f"v_add_u32 v26, {BIAS}, v26")
    if p.flags:
        a(f"v_mov_b32 v5, {BIAS + 512}"); a("s_mov_b32 s3, 0x01010101")
        if X == 1: a("v_lshl_add_u32 v28, v6, 2, v5"); a("v_mov_b32 v29, 0"); a("ds_write_b32 v28, v29")
    if p.xv: a("v_lshlrev_b32 v30, 4, v6"); a("v_add_u32 v30, s37, v30"); a("v_add_u32 v31, 0x10000, v30")
    def wait_vm(pred):
        idx = max([k for k, t_ in enumerate(vm) if pred(t_)], default=-1)
        if idx >= 0:
            n = len(vm)-1-idx
            if p.noload: n = 0
            if p.now: n = sum(1 for t_ in vm[idx+1:] if t_[0] != "w")
            if p.nox: n = sum(1 for t_ in vm[idx+1:] if t_[0] != "x")
            a(f"s_waitcnt vmcnt({n})"); del vm[:idx+1]
    def pr(c): return [] if p.noprune else prune_all(SR(c), T)
    def writes(c, only=None):
        if p.nowrite: return
        for r in (range(4) if only is None else [only]): a(f"ds_write_b128 v{vS}, v[{SR(c)+4*r}:{SR(c)+4*r+3}] offset:{(c%p.WS)*WSTAGE + r*64}")
    def stream(valu, mem):
        n = len(mem); k = 0
        for i, x in enumerate(valu):
            while k < n and i * n >= k * len(valu):
                emit(mem[k]()); k += 1
            a(x)
        while k < n:
            emit(mem[k]()); k += 1
    wl = lambda c: [(lambda r=r: wload1(c, r)) for r in range(4)] if c < 10 else []
    xs = lambda c: [(lambda b=b: xdma(b, c)) for b in range(nb)] if c < 10 else []
    if not p.two and not p.xv:
        mf_, bc, at, nW = sched(p, nb)
        def xdi(i):
            vm.append(("x", bc[i][2])); return dma_i(p, nb, bc, i, vD)
        xs = lambda c: [(lambda i=i: xdi(i)) for i in range(len(bc)) if at[i] == c - XL]
    rest = []
    if X == 0:
        wait_vm(lambda t_: t_ == ("w", 0))
        pstamp(a, p, 7)
        stream(pr(0), [] if p.pw2 else wl(2))
        writes(0)
        wait_vm(lambda t_: t_ == "bias")
        a("v_lshlrev_b32 v28, 16, v27"); a("v_and_b32 v29, 0xffff0000, v27"); a("ds_write_b64 v26, v[28:29]")
        if p.proprio != prio: a(f"s_setprio {prio}")
    else:
        if p.b0:
            wait_vm(lambda t_: t_ == ("w", 1))
            pstamp(a, p, 7)
            v = pr(1); stream(v[:p.split], [] if p.pw3 else wl(3)); rest = v[p.split:]
        else:
            stream([], [] if p.pw3 else wl(3)); rest = pr(1)
        if p.bp0: a(f"s_setprio {prio}")
    late = [0]
    for t in range(10):
        if not p.xv: wait_vm(lambda t_: t_[0] == "x" and t_[1] <= t)
        a(f"s_waitcnt lgkmcnt({late[0]})"); late[0] = 0
        st3(a, p, 1+t)
        a("s_barrier")
        bstamps(a, p, t)
        if t % 2 == X:
            c = t + 2
            xw = xwr(t - 1 + XL) if p.xv == 1 else []
            if p.xv == 3:
                xw = xwr(t - 3 + XL); m = []
                w4 = wl(c+2) if c < 10 else []
                while xw or w4:
                    if xw: m.append(xw.pop(0))
                    if w4: m.append(w4.pop(0))
                if c < 10:
                    wait_vm(lambda t_: t_ == ("w", c))
                    v = pr(c); stream(v[:p.split], m); rest = v[p.split:]
                else: stream([], m)
            elif c < 10:
                wait_vm(lambda t_: t_ == ("w", c))
                v = pr(c); v1 = v[:p.split]; rest = v[p.split:]
                k = len(v1)*p.xwpos//100
                w4 = wl(c+2); kw = (len(w4)*p.xwpos + 99)//100
                stream(v1[:k], w4[:kw]); stream(v1[k:], xw + w4[kw:])
            else: stream([], xw)
            if xw and XL >= 3: late[0] = len(xw)
        else:
            c = t + 1
            if c < 10:
                wait_vm(lambda t_: t_ == ("w", c))
                if p.dprio: a(f"s_setprio {p.dprio}")
                x = xs(t+XL)
                if t == 0 and p.pw3 == 2: stream([], wl(3))
                if p.xv == 2: stream([], xwr(t - 2 + XL))
                stream(rest, x[:p.xb])
                x = x[p.xb:]
                if p.walt:
                    for r in range(4):
                        writes(c, r)
                        if x: emit(x.pop(0)())
                else: writes(c)
                if p.dprio: a(f"s_setprio {prio}")
                stream([], x)
    if p.flags:
        order = list(range(nb))
        if p.two:
            order = [0, 2, 1, 3, 4] if nb == 5 else [0, 3, 1, 4, 2, 5]
            a("s_movk_i32 s3, 0x0101")
        if p.two or p.WS == 2: a(f"v_subrev_u32 v29, {WB}, v{vR}")
        for b in order:
            off = stage_off(p, nb, b); r0 = DR + 4*b
            lab = f"L_poll{nb}_{X}_{b}"
            if p.two and nb == 5 and b == 4: a("s_mov_b32 s3, 0x01010101")
            if p.poll:
                a(f"s_branch {lab}_in"); a.label(lab + "_s"); a(f"s_sleep {p.poll % 10}"); a.label(lab + "_in")
                a(f"ds_read_b32 v28, v5 offset:{4*b}"); a("s_waitcnt lgkmcnt(0)"); a("v_cmp_ne_u32 vcc, s3, v28"); a(f"s_cbranch_vccnz {lab}_s")
                a(f"ds_read_b128 v[{r0}:{r0+3}], v{vR} offset:{off-WB}" if off >= WB else f"ds_read_b128 v[{r0}:{r0+3}], v29 offset:{off}")
                a("s_waitcnt lgkmcnt(0)")
                a(f"buffer_store_dwordx4 v[{r0}:{r0+3}], v{vO}, s[24:27], s{90+b} offen {p.oflags}")
                st3(a, p, 1 + b, True)
                continue
            a.label(lab)
            a(f"ds_read_b32 v28, v5 offset:{4*b}")
            a(f"ds_read_b128 v[{r0}:{r0+3}], v{vR} offset:{off-WB}" if off >= WB else f"ds_read_b128 v[{r0}:{r0+3}], v29 offset:{off}")
            a("s_waitcnt lgkmcnt(0)")
            a("v_cmp_ne_u32 vcc, s3, v28")
            a(f"s_cbranch_vccnz {lab}")
            a(f"buffer_store_dwordx4 v[{r0}:{r0+3}], v{vO}, s[24:27], s{90+b} offen {p.oflags}")
            st3(a, p, 1 + b, True)
    for g in ([] if p.flags else groups(p, nb)):
        a("s_barrier")
        for b in g:
            off = ((b//2 + 1) % 3)*WSTAGE + (b % 2)*2048; r0 = DR + 4*b
            a(f"ds_read_b128 v[{r0}:{r0+3}], v{vR} offset:{off}")
        for k, b in enumerate(g):
            r0 = DR + 4*b
            a(f"s_waitcnt lgkmcnt({len(g)-1-k})")
            a(f"buffer_store_dwordx4 v[{r0}:{r0+3}], v{vO}, s[24:27], s{90+b} offen {p.oflags}")
    if p.stamps == 1: stamp(a, p, 5)
    stamp_out(a, p)
    a("s_endpgm")
    return head, a.text()

def cnear(p):
    a = Asm(); vD = 128 + 4*p.NB + 5
    a("v_and_b32 v1, 63, v0")
    pstamp(a, p, 2)
    dma_voff(a, 1, 32, vD, 2, 3)
    a("s_mul_i32 s50, s36, 40960"); a("s_add_u32 s50, s50, s34"); a("s_mul_i32 s57, s3, 10"); a("s_add_u32 s57, s57, s34")
    for b in range(1, 6):
        a(f"s_add_u32 s{50+b}, s{49+b}, 40960"); a(f"s_cmp_eq_u32 s{50+b}, s57"); a(f"s_cselect_b32 s{50+b}, s34, s{50+b}")
    xtable(a, p, 0, 2)
    a("s_add_u32 s31, s37, s3")
    a("s_waitcnt lgkmcnt(0)")
    pstamp(a, p, 5)
    srd(a, 16, 4, 10485760)
    if p.prebar: a("s_barrier")
    for c in range(2):
        for b in range(6):
            if b == 5: a("s_cmp_eq_u32 s3, 20480"); a("s_cbranch_scc1 " + ("L_n1" if c == 0 else "L_c5"))
            a(f"s_add_u32 m0, s{37 if c == 0 else 31}, {b*4096}"); a(f"s_add_u32 s56, s{50+b}, s{40+c}")
            a(f"buffer_load_dwordx4 v{vD}, s[16:19], s56 offen {p.xflags} lds")
        if c == 0: a.label("L_n1")
    a("s_branch L_c6")
    return a.text()

def gen(p):
    lds = p.NS*4096 + p.WS*WSTAGE + 512 + 256
    assert lds <= 163840
    a = Asm()
    stamp(a, p, 0)
    a("s_load_dwordx4 s[4:7], s[0:1], 0"); a("s_load_dwordx4 s[8:11], s[0:1], 16")
    if p.stamps:
        a("s_load_dwordx4 s[12:15], s[0:1], 32")
        if p.stamps != 3:
            for i in (1,2,4,5,6,7): a(f"s_mov_b32 s{60+2*i}, 0")
    a("v_lshrrev_b32 v1, 6, v0")
    if p.ipf:
        a("s_getpc_b64 s[76:77]"); a.label("L_pc")
        a("s_bfe_u32 s56, s2, 0x30003"); a("s_mul_i32 s56, s56, 6144")
        a("v_and_b32 v2, 3, v0"); a("v_lshl_add_u32 v2, v1, 2, v2"); a("v_lshlrev_b32 v2, 7, v2"); a("v_add_u32 v2, s56, v2")
        a("v_min_u32 v2, L_last - L_pc, v2")
        a("v_mov_b32 v3, s77"); a("v_add_co_u32 v2, vcc, s76, v2"); a("v_addc_co_u32 v3, vcc, 0, v3, vcc")
        a("global_load_dword v167, v[2:3], off")
    if p.map == 0:
        a("s_and_b32 s56, s2, 7"); a("s_lshr_b32 s57, s2, 3"); a("s_lshl_b32 s56, s56, 5"); a("s_add_u32 s56, s56, s57")
        a("v_readfirstlane_b32 s32, v1")
        a("s_cmp_ge_u32 s2, 255"); a("s_cbranch_scc1 L_exit")
        a("s_mul_i32 s57, s56, 205"); a("s_lshr_b32 s57, s57, 10")
        a("s_mul_i32 s58, s57, 5"); a("s_sub_u32 s33, s56, s58")
        if p.rot & 1:
            a("s_add_u32 s58, s33, s57"); a("s_mul_i32 s59, s58, 205"); a("s_lshr_b32 s59, s59, 10"); a("s_mul_i32 s59, s59, 5")
            a("s_sub_u32 s35, s58, s59"); a(f"s_lshl_b32 s35, s35, {7 if p.half else 8}")
        elif p.rot & 4:
            a("s_mul_i32 s59, s57, 205"); a("s_lshr_b32 s59, s59, 10"); a("s_mul_i32 s59, s59, 5")
            a("s_sub_u32 s35, s57, s59"); a(f"s_lshl_b32 s35, s35, {7 if p.half else 8}")
        else: a("s_mov_b32 s35, 0")
        if p.rot & 3: a("s_mov_b32 s36, s33")
        else: a("s_mov_b32 s36, 0")
        if p.early:
            a("s_sub_u32 s58, s57, 1"); a("s_cmp_eq_u32 s57, 0"); a("s_cselect_b32 s57, 50, s58")
        a("s_mul_i32 s34, s57, 204800")
        a("s_cmp_eq_u32 s57, 50"); a("s_cbranch_scc1 L_six")
    else:
        a("s_lshr_b32 s56, s2, 3"); a("s_and_b32 s58, s2, 7")
        a("s_mul_i32 s57, s56, 205"); a("s_lshr_b32 s57, s57, 10")
        a("v_readfirstlane_b32 s32, v1")
        a("s_cmp_ge_u32 s2, 240"); a("s_cbranch_scc1 L_exit")
        a("s_mul_i32 s59, s57, 5"); a("s_sub_u32 s33, s56, s59")
        if p.rot & 1:
            a("s_add_u32 s35, s33, s57"); a("s_sub_u32 s59, s35, 5"); a("s_cmp_ge_u32 s35, 5"); a("s_cselect_b32 s35, s59, s35")
            a("s_cmp_eq_u32 s35, 5"); a("s_cselect_b32 s35, 0, s35"); a(f"s_lshl_b32 s35, s35, {7 if p.half else 8}")
        else: a("s_mov_b32 s35, 0")
        if p.rot & 3: a("s_mov_b32 s36, s33")
        else: a("s_mov_b32 s36, 0")
        a("s_mul_i32 s34, s58, 1310720"); a("s_mul_i32 s59, s57, 204800"); a("s_add_u32 s34, s34, s59")
        a("s_min_u32 s59, s57, 2"); a("s_mul_i32 s59, s59, 40960"); a("s_add_u32 s34, s34, s59")
        a("s_cmp_lt_u32 s57, 2"); a("s_cbranch_scc1 L_six")
    con = consumer2 if p.two else consumer
    PA5, PB5, PA6, PB6 = producer(p, 5, 0), producer(p, 5, 1), producer(p, 6, 0), producer(p, 6, 1)
    if p.near:
        assert p.map == 1 and a.l[-1].strip() == "s_cbranch_scc1 L_six"
        a.l.pop(); a("s_cselect_b32 s3, 6, 5"); a("s_lshl_b32 s3, s3, 12")
        a("s_cmp_lt_u32 s32, 4"); a("s_cbranch_scc1 L_cn")
        a("s_cmp_ge_u32 s32, 8"); a("s_cbranch_scc1 L_bn")
        assert PA5[0] == PA6[0] and PB5[0] == PB6[0]
        far = lambda x: f"  s_cmp_eq_u32 s3, 20480\n  s_cbranch_scc1 L_{x}5\n  s_branch L_{x}6\n"
        body = a.text() + PA5[0] + far("a") + "L_cn:\n" + cnear(p) + "L_bn:\n" + PB5[0] + far("b") + "L_exit:\n  s_endpgm\n"
        body += "L_a6:\n" + PA6[1] + "L_b6:\n" + PB6[1] + "L_c6:\n" + con(p, 6) + "L_a5:\n" + PA5[1] + "L_b5:\n" + PB5[1] + "L_c5:\n" + con(p, 5)
    else:
        a("s_cmp_lt_u32 s32, 4"); a("s_cbranch_scc1 L_c5")
        a("s_cmp_ge_u32 s32, 8"); a("s_cbranch_scc1 L_b5")
        body = a.text() + "".join(PA5) + "L_exit:\n  s_endpgm\nL_b5:\n" + "".join(PB5) + "L_c5:\n" + con(p, 5)
        body += "L_six:\n  s_cmp_lt_u32 s32, 4\n  s_cbranch_scc1 L_c6\n  s_cmp_ge_u32 s32, 8\n  s_cbranch_scc1 L_b6\n"
        body += "".join(PA6) + "L_b6:\n" + "".join(PB6) + "L_c6:\n" + con(p, 6)
    hdr = open("standalone__structured_sparse_n_m__ragged.s.ref").read().split("; Override")[0]
    return hdr + f"""; Generated by my own generator script: tiles of 160(192) rows x 128 columns, 4 MFMA waves + 8 load/prune waves.
; @launch grid=({240 if p.map else 256},1,1) block=(768,1,1) lds={lds}
.amdgcn_target "amdgcn-amd-amdhsa--gfx950"
.text
.globl {KN}
.p2align 8
.type {KN},@function
{KN}:
{body}L_last:
  s_endpgm
.section .rodata,"a"
.p2align 6
.amdhsa_kernel {KN}
  .amdhsa_next_free_vgpr 168
  .amdhsa_next_free_sgpr 100
  .amdhsa_accum_offset 168
  .amdhsa_group_segment_fixed_size 0
  .amdhsa_kernarg_size 48
  .amdhsa_user_sgpr_count 2
  .amdhsa_user_sgpr_kernarg_segment_ptr 1
  .amdhsa_system_sgpr_workgroup_id_x 1
.end_amdhsa_kernel
""", lds

if __name__ == "__main__":
    out = sys.argv[1]
    p = P()
    for kv in sys.argv[2:]:
        k, v = kv.split("=", 1)
        old = getattr(P, k)
        setattr(p, k, v.replace("+", " ") if isinstance(old, str) else int(v))
    s, lds = gen(p)
    open(out, "w").write(s)
    from mk import build
    build(out)
    print(out, "lds", lds, "lines", s.count("\n"))
```
